```python
import torch

def _softmax(x, axis=-1):
    return torch.softmax(x, dim=axis)
def _gelu(x):
    return torch.nn.functional.gelu(x, approximate="tanh")
def _silu(x):
    return torch.nn.functional.silu(x)
def _sigmoid(x):
    return torch.sigmoid(x)
def _layernorm(x, axis=-1, eps=1e-5):
    m = x.mean(dim=axis, keepdim=True)
    v = x.var(dim=axis, keepdim=True, unbiased=False)
    return (x - m) / torch.sqrt(v + eps)
def _scatter_add(tgt, idx, src, axis=0):
    return tgt.clone().index_add_(axis, idx, src)
def _segment_sum(src, seg, n):
    out = torch.zeros((n,) + src.shape[1:], dtype=src.dtype)
    return out.index_add_(0, seg, src)
def _pad(x, pw):
    flat = tuple(v for pair in reversed(pw) for v in pair)
    return torch.nn.functional.pad(x, flat)

kernel_name = 'standalone__mha_block__prompt'

def setup_inputs():

    _w = (lambda a: (lambda t: t.to(torch.bfloat16) if t.is_floating_point() else t)(torch.as_tensor(a)))
    B, S, D, H = 1, 2048, 512, 32
    return {
        "x": _w((lambda *s: torch.randn(*s, dtype=torch.bfloat16) * 0.2)(B, S, D)),
        "wqkv": _w((lambda *s: torch.randn(*s, dtype=torch.bfloat16) * 0.2)(D, 3 * D)),
        "wo": _w((lambda *s: torch.randn(*s, dtype=torch.bfloat16) * 0.05)(D, D)),
    }

def reference(x, wqkv, wo):
    B, S, D = x.shape
    H = 32
    Dh = D // H
    qkv = (lambda x, *d: x.permute(*d))((x @ wqkv).reshape(B, S, 3, H, Dh), 2, 0, 3, 1, 4)
    q, k, v = qkv[0], qkv[1], qkv[2]
    scores = torch.einsum("bhqd,bhkd->bhqk", q, k) * (Dh ** -0.5)
    p = _softmax(scores, axis=-1)
    o = torch.einsum("bhqk,bhkd->bhqd", p, v)
    return (lambda x, *d: x.permute(*d))(o, 0, 2, 1, 3).reshape(B, S, D) @ wo
```

```python
import math, struct, sys

def f2u(x): return struct.unpack("<I", struct.pack("<f", x))[0]

KV_OFF = 0
Q_OFF = 4 << 20
O_OFF = 6 << 20
CSCALE = 0.25 * math.log2(math.e)

class Asm:
    def __init__(self): self.l = []
    def __call__(self, s): self.l.append("    " + s)
    def label(self, s): self.l.append(s + ":")
    def raw(self, s): self.l.append(s)
    def c(self, s): self.l.append("    ; " + s)
    def text(self): return "\n".join(self.l) + "\n"

def vr(a, n): return f"v[{a}:{a+n-1}]"

def srd(a, d, base, size, off=0):
    if off:
        a(f"s_add_u32 s{d}, s{base}, {hex(off)}")
        a(f"s_addc_u32 s{d+1}, s{base+1}, 0")
        a(f"s_and_b32 s{d+1}, s{d+1}, 0xffff")
    else:
        a(f"s_mov_b32 s{d}, s{base}")
        a(f"s_and_b32 s{d+1}, s{base+1}, 0xffff")
    a(f"s_mov_b32 s{d+2}, {hex(size)}")
    a(f"s_mov_b32 s{d+3}, 0x00020000")

def kernel_head(a, name):
    a.raw(f".globl {name}")
    a.raw(".p2align 8")
    a.raw(f".type {name},@function")
    a.label(name)

def desc(name, nvgpr, nsgpr=64):
    return f"""
.amdhsa_kernel {name}
  .amdhsa_next_free_vgpr {nvgpr}
  .amdhsa_next_free_sgpr {nsgpr}
  .amdhsa_accum_offset {(nvgpr+3)//4*4}
  .amdhsa_group_segment_fixed_size 0
  .amdhsa_kernarg_size 48
  .amdhsa_user_sgpr_count 2
  .amdhsa_user_sgpr_kernarg_segment_ptr 1
  .amdhsa_system_sgpr_workgroup_id_x 1
.end_amdhsa_kernel
"""

def gen_qkv(a):
    name = "qkv_kernel"
    kernel_head(a, name)
    a("s_cmp_ge_u32 s2, 256")
    a("s_cbranch_scc1 L_qkv_end")
    a("s_load_dwordx4 s[4:7], s[0:1], 0")
    a("s_load_dwordx2 s[8:9], s[0:1], 40")
    a("s_and_b32 s3, s2, 7")
    a("s_lshr_b32 s10, s2, 3")
    a("s_lshr_b32 s11, s3, 1")
    a("s_lshl_b32 s11, s11, 2")
    a("s_lshr_b32 s28, s10, 3")
    a("s_add_u32 s28, s28, s11")
    a("s_and_b32 s11, s3, 1")
    a("s_lshl_b32 s11, s11, 3")
    a("s_and_b32 s29, s10, 7")
    a("s_add_u32 s29, s29, s11")
    a("v_lshrrev_b32 v1, 6, v0")
    a("v_and_b32 v0, 63, v0")
    a("v_readfirstlane_b32 s30, v1")
    a("v_lshrrev_b32 v10, 3, v0")
    a("v_and_b32 v11, 7, v0")
    a("v_lshrrev_b32 v12, 4, v0")
    a("v_xor_b32 v13, v11, v12")
    a("v_xor_b32 v14, 4, v13")
    a("s_lshl_b32 s31, s28, 7")
    a("s_lshl_b32 s32, s30, 5")
    a("s_add_u32 s31, s31, s32")
    a("v_add_u32 v15, s31, v10")
    a("v_lshlrev_b32 v15, 10, v15")
    a("v_lshl_add_u32 v2, v13, 4, v15")
    a("v_lshl_add_u32 v3, v14, 4, v15")
    a("v_add_u32 v4, 16384, v2")
    a("v_add_u32 v3, 8192, v3")
    a("v_add_u32 v5, 16384, v3")
    a("v_lshrrev_b32 v10, 2, v0")
    a("s_lshl_b32 s32, s30, 4")
    a("v_add_u32 v10, s32, v10")
    a("v_mul_u32_u24 v10, 3072, v10")
    a("v_and_b32 v11, 3, v0")
    a("v_lshl_add_u32 v6, v11, 4, v10")
    a("s_lshl_b32 s32, s29, 6")
    a("v_add_u32 v6, s32, v6")
    a("s_waitcnt lgkmcnt(0)")
    srd(a, 12, 4, 2048*1024)
    srd(a, 16, 6, 512*3072)
    srd(a, 20, 8, 8 << 20)
    XB = 98304
    a("s_lshl_b32 s33, s30, 10")
    a("s_lshl_b32 s34, s30, 12")
    a(f"s_add_u32 s34, s34, {XB}")
    def dma_w(c):
        a(f"s_mov_b32 s35, {c*64*3072}")
        for t in range(3):
            a(f"s_add_u32 m0, s33, {t*32768 + c*4096 - t*1024}")
            a("s_nop 0")
            a(f"buffer_load_dwordx4 v6, s[16:19], s35 offen offset:{t*1024} lds")
    def dma_x(c):
        slot = c % 4
        for i in range(4):
            a(f"s_add_u32 m0, s34, {slot*16384 + i*1024 - c*128}")
            a("s_nop 0")
            a(f"buffer_load_dwordx4 v{2+i}, s[12:15], 0 offen offset:{c*128} lds")
    for c in range(4):
        dma_w(c); dma_x(c)
    for c in range(4, 8):
        dma_w(c)
    a("v_lshrrev_b32 v10, 5, v0")
    a("v_bfe_u32 v11, v0, 2, 2")
    a("v_lshl_add_u32 v10, v10, 3, v11")
    a("v_lshlrev_b32 v10, 6, v10")
    a("v_bfe_u32 v11, v0, 4, 1")
    a("v_lshl_add_u32 v10, v11, 5, v10")
    a("v_and_b32 v11, 3, v0")
    a("v_lshl_add_u32 v8, v11, 3, v10")
    a("v_add_u32 v8, 65536, v8")
    a("v_and_b32 v12, 1, v0")
    a("v_bfe_u32 v13, v0, 1, 1")
    a("v_lshl_add_u32 v12, v12, 1, v13")
    a("v_lshl_add_u32 v7, v12, 3, v10")
    a("v_and_b32 v10, 31, v0")
    a("v_bfe_u32 v11, v0, 1, 3")
    a("v_lshrrev_b32 v12, 5, v0")
    a("v_xor_b32 v11, v11, v12")
    a("v_lshlrev_b32 v10, 7, v10")
    a("v_add_u32 v10, s34, v10")
    for s in range(4):
        a(f"v_xor_b32 v12, {2*s}, v11")
        a(f"v_lshl_add_u32 v{16+s}, v12, 4, v10")
    ACC = 32
    for i in range(48):
        a(f"v_mov_b32 v{ACC+i}, 0")
    def frag(j): return 80 + 16*j
    def reads(c, s, j):
        f = frag(j); k0 = 64*c + 16*s
        a(f"ds_read_b128 {vr(f,4)}, v{16+s} offset:{(c%4)*16384}")
        for t in range(3):
            base = "v7" if t < 2 else "v8"
            off = (t*32768 if t < 2 else 0) + k0*64
            a(f"ds_read_b64_tr_b16 {vr(f+4+4*t,2)}, {base} offset:{off}")
            a(f"ds_read_b64_tr_b16 {vr(f+6+4*t,2)}, {base} offset:{off+256}")
    issued = []
    for c in range(4): issued += [("w", c)]*3 + [("x", c)]*4
    for c in range(4, 8): issued += [("w", c)]*3
    def wait_chunk(c):
        last = max(i for i, t in enumerate(issued) if t[1] == c)
        n = len(issued) - 1 - last
        a(f"s_waitcnt vmcnt({n})")
        a("s_barrier")
    step = 0
    wait_chunk(0)
    reads(0, 0, 0)
    for c in range(8):
        for s in range(4):
            j = step % 2
            nc, ns = (c, s+1) if s < 3 else (c+1, 0)
            if nc < 8:
                if ns == 0:
                    wait_chunk(nc)
                reads(nc, ns, 1-j)
                a("s_waitcnt lgkmcnt(7)")
            else:
                a("s_waitcnt lgkmcnt(0)")
            f = frag(j)
            a(f"v_mfma_f32_32x32x16_bf16 {vr(ACC,16)}, {vr(f+4,4)}, {vr(f,4)}, {vr(ACC,16)}")
            a(f"v_mfma_f32_32x32x16_bf16 {vr(ACC+16,16)}, {vr(f+8,4)}, {vr(f,4)}, {vr(ACC+16,16)}")
            a(f"v_mfma_f32_32x32x16_bf16 {vr(ACC+32,16)}, {vr(f,4)}, {vr(f+12,4)}, {vr(ACC+32,16)}")
            if s == 3 and c + 4 < 8:
                dma_x(c+4); issued += [("x", c+4)]*4
            step += 1
    a("s_lshl_b32 s36, s28, 2")
    a("s_add_u32 s36, s36, s30")
    a("s_lshl_b32 s37, s29, 1")
    a("s_lshl_b32 s38, s37, 16")
    a("s_lshl_b32 s39, s36, 10")
    a("s_add_u32 s38, s38, s39")
    a(f"s_add_u32 s38, s38, {hex(Q_OFF)}")
    a("s_add_u32 s39, s38, 65536")
    a("s_lshl_b32 s40, s37, 17")
    a("s_lshl_b32 s41, s36, 11")
    a("s_add_u32 s40, s40, s41")
    a("s_add_u32 s41, s40, 131072")
    a("v_lshlrev_b32 v2, 4, v0")
    a("v_and_b32 v10, 0x33, v0")
    a("v_bfe_u32 v11, v0, 2, 1")
    a("v_bfe_u32 v12, v0, 3, 1")
    a("v_lshl_add_u32 v10, v11, 3, v10")
    a("v_lshl_add_u32 v10, v12, 2, v10")
    a("v_lshlrev_b32 v3, 4, v10")
    a("v_bfe_u32 v10, v0, 4, 1")
    a("v_lshlrev_b32 v10, 17, v10")
    a("v_lshrrev_b32 v11, 5, v0")
    a("v_lshl_add_u32 v10, v11, 8, v10")
    a("v_and_b32 v11, 15, v0")
    a("v_lshl_add_u32 v4, v11, 4, v10")
    a(f"s_mov_b32 s42, {hex(f2u(CSCALE))}")
    a("s_nop 7")
    for i in range(16):
        a(f"v_mul_f32 v{ACC+i}, s42, v{ACC+i}")
    for t in range(3):
        for i in range(8):
            a(f"v_cvt_pk_bf16_f32 v{80+8*t+i}, v{ACC+16*t+2*i}, v{ACC+16*t+2*i+1}")
    a(f"buffer_store_dwordx4 v[88:91], v3, s[20:23], s40 offen")
    a(f"buffer_store_dwordx4 v[92:95], v3, s[20:23], s41 offen")
    a(f"buffer_store_dwordx4 v[96:99], v4, s[20:23], s40 offen offset:1024")
    a(f"buffer_store_dwordx4 v[100:103], v4, s[20:23], s40 offen offset:1536")
    a(f"buffer_store_dwordx4 v[80:83], v2, s[20:23], s38 offen")
    a(f"buffer_store_dwordx4 v[84:87], v2, s[20:23], s39 offen")
    a.label("L_qkv_end")
    a("s_endpgm")
    return desc(name, 112)

def gen_attn(a):
    name = "attn_kernel"
    kernel_head(a, name)
    a("s_cmp_ge_u32 s2, 256")
    a("s_cbranch_scc1 L_attn_end")
    a("s_load_dwordx2 s[8:9], s[0:1], 40")
    a("s_and_b32 s3, s2, 7")
    a("s_lshl_b32 s3, s3, 2")
    a("s_lshr_b32 s28, s2, 6")
    a("s_add_u32 s28, s28, s3")
    a("s_bfe_u32 s29, s2, 0x30003")
    a("v_lshrrev_b32 v1, 6, v0")
    a("v_and_b32 v0, 63, v0")
    a("v_readfirstlane_b32 s30, v1")
    a("v_lshlrev_b32 v2, 4, v0")
    a("s_lshl_b32 s31, s29, 3")
    a("s_add_u32 s31, s31, s30")
    a("s_lshl_b32 s32, s28, 16")
    a("s_lshl_b32 s33, s31, 10")
    a("s_add_u32 s32, s32, s33")
    a(f"s_add_u32 s32, s32, {hex(Q_OFF)}")
    a("s_lshl_b32 s33, s28, 17")
    a("s_lshl_b32 s34, s30, 11")
    a("s_add_u32 s33, s33, s34")
    a("s_waitcnt lgkmcnt(0)")
    srd(a, 20, 8, 8 << 20)
    QF = 4; KF = 8; V0 = 16; V1 = 24; IDX = 3
    S = [32, 48]; O = 64; C = 80
    a(f"buffer_load_dwordx4 {vr(QF,4)}, v2, s[20:23], s32 offen")
    for g in range(8):
        a(f"s_add_u32 m0, s34, {g*16384}")
        a(f"s_add_u32 s35, s33, {g*16384}")
        a(f"buffer_load_dwordx4 v2, s[20:23], s35 offen lds")
        a(f"buffer_load_dwordx4 v2, s[20:23], s35 offen offset:1024 lds")
    a("v_lshrrev_b32 v96, 5, v0")
    a("v_and_b32 v97, 15, v0")
    a("v_lshlrev_b32 v96, 8, v96")
    a("v_lshl_add_u32 v97, v97, 4, v96")
    a("v_add_u32 v99, 1024, v97")
    a("v_mov_b32 v98, v2")
    a(f"v_mov_b32 v{IDX}, 0xdddddddd")
    for i in range(16):
        a(f"v_mov_b32 v{V0+i}, 0x3f803f80")
    for i in range(16):
        a(f"v_mov_b32 v{C+i}, 0")
    a("s_mov_b32 s40, 0xffff")
    a("s_mov_b32 s41, 0xffff")
    a("s_mov_b32 s37, 0")
    a("s_waitcnt vmcnt(14)")
    a("s_barrier")
    a.label("L_attn_pass")
    VK, VV = 100, 101
    a(f"v_mov_b32 v{VK}, v98")
    a(f"v_mov_b32 v{VV}, v99")
    for i in range(16):
        a(f"v_mov_b32 v{O+i}, 0")
    def rdK(t_rel, j): a(f"ds_read_b128 {vr(KF+4*j,4)}, v{VK} offset:{t_rel*2048}")
    def rdV(t_rel, j):
        a("s_mov_b64 exec, s[40:41]")
        a(f"ds_read_b128 {vr(V0+4*j,4)}, v{VV} offset:{t_rel*2048}")
        a(f"ds_read_b128 {vr(V1+4*j,4)}, v{VV} offset:{t_rel*2048+512}")
        a("s_mov_b64 exec, -1")
    def qk(j, buf): a(f"v_mfma_f32_32x32x16_bf16 {vr(S[buf],16)}, {vr(KF+4*j,4)}, {vr(QF,4)}, {vr(C,16)}")
    def pv0(j, buf): a(f"v_smfmac_f32_32x32x32_bf16 {vr(O,16)}, {vr(V0+4*j,4)}, {vr(S[buf],8)}, v{IDX}")
    def pv1(j, buf): a(f"v_smfmac_f32_32x32x32_bf16 {vr(O,16)}, {vr(V1+4*j,4)}, {vr(S[buf]+8,8)}, v{IDX}")
    def ex(buf, i): a(f"v_exp_f32 v{S[buf]+i}, v{S[buf]+i}")
    rdK(0, 0); rdK(1, 1); rdV(0, 0)
    for i in range(8):
        a(f"v_mov_b32 v{S[1]+8+i}, 0")
    a("s_waitcnt lgkmcnt(3)")
    qk(0, 0)
    a("s_mov_b32 s36, 0")
    a("s_nop 7")
    a("s_nop 3")
    a.raw(".p2align 6")
    a.label("L_attn_loop")
    for u in range(8):
        b = u % 2
        if u == 6:
            a("s_cmp_lg_u32 s36, s37")
            a(f"s_cbranch_scc1 L_attn_nobar")
            a("s_waitcnt vmcnt(0)")
            a("s_barrier")
            a.label("L_attn_nobar")
        rdK(u+2, b)
        ex(b, 0); ex(b, 1)
        pv1(1-b, 1-b)
        ex(b, 2)
        rdV(u+1, 1-b)
        ex(b, 3); ex(b, 4)
        a("s_waitcnt lgkmcnt(5)")
        qk(1-b, 1-b)
        for i in range(5, 11): ex(b, i)
        a("s_waitcnt lgkmcnt(3)")
        pv0(b, b)
        for i in range(11, 16): ex(b, i)
    a(f"v_add_u32 v{VK}, 16384, v{VK}")
    a(f"v_add_u32 v{VV}, 16384, v{VV}")
    a("s_add_u32 s36, s36, 1")
    a("s_cmp_lt_u32 s36, 8")
    a("s_cbranch_scc1 L_attn_loop")
    pv1(1, 1)
    a("s_waitcnt lgkmcnt(0)")
    a("s_nop 7")
    a("s_nop 7")
    a("s_cmp_lg_u32 s37, 0")
    a("s_cbranch_scc1 L_attn_fin")
    a(f"v_mov_b32 v96, {hex(f2u(2.0**-20))}")
    a(f"v_mov_b32 v97, {hex(f2u(2.0**60))}")
    a(f"v_cmp_ge_f32 s[42:43], v{O+8}, v96")
    a(f"v_cmp_le_f32 s[44:45], v{O+8}, v97")
    a(f"v_mul_f32 v96, 0, v{O}")
    for i in range(1, 8):
        a(f"v_fma_f32 v96, v{O+i}, 0, v96")
    a(f"v_cmp_o_f32 vcc, v96, v96")
    a("s_and_b64 s[42:43], s[42:43], s[44:45]")
    a("s_nop 1")
    a("s_and_b64 s[42:43], s[42:43], vcc")
    a("s_cmp_eq_u64 s[42:43], -1")
    a("s_cbranch_scc1 L_attn_fin")
    a("s_mov_b32 s37, -1")
    a(f"v_mov_b32 v{VK}, v98")
    a("v_mov_b32 v96, 0xff800000")
    a("s_mov_b32 s36, 0")
    a.label("L_attn_max")
    a(f"ds_read_b128 {vr(KF,4)}, v{VK}")
    a("s_waitcnt lgkmcnt(0)")
    a(f"v_mfma_f32_32x32x16_bf16 {vr(S[0],16)}, {vr(KF,4)}, {vr(QF,4)}, 0")
    a(f"v_add_u32 v{VK}, 2048, v{VK}")
    a("s_nop 7")
    a("s_nop 7")
    for i in range(8):
        a(f"v_max3_f32 v96, v{S[0]+2*i}, v{S[0]+2*i+1}, v96")
    a("s_add_u32 s36, s36, 1")
    a("s_cmp_lt_u32 s36, 64")
    a("s_cbranch_scc1 L_attn_max")
    a("v_mov_b32 v97, v96")
    a("s_nop 1")
    a("v_permlane32_swap_b32 v96, v97")
    a("s_nop 1")
    a("v_max_f32 v96, v96, v97")
    for i in range(16):
        a(f"v_sub_f32 v{C+i}, 0, v96")
    a("s_branch L_attn_pass")
    a.label("L_attn_fin")
    a(f"v_rcp_f32 v96, v{O+8}")
    a("s_lshl_b32 s38, s31, 15")
    a("s_lshl_b32 s39, s28, 10")
    a("s_add_u32 s38, s38, s39")
    a(f"s_add_u32 s38, s38, {hex(O_OFF)}")
    for i in range(8):
        a(f"v_mul_f32 v{O+i}, v96, v{O+i}")
    for i in range(4):
        a(f"v_cvt_pk_bf16_f32 v{8+i}, v{O+2*i}, v{O+2*i+1}")
    a(f"buffer_store_dwordx4 v[8:11], v2, s[20:23], s38 offen")
    a.label("L_attn_end")
    a("s_endpgm")
    return desc(name, 104)

def gen_out(a):
    name = "outp_kernel"
    kernel_head(a, name)
    a("s_cmp_ge_u32 s2, 256")
    a("s_cbranch_scc1 L_out_end")
    a("s_load_dwordx4 s[4:7], s[0:1], 16")
    a("s_load_dwordx2 s[8:9], s[0:1], 40")
    a("s_and_b32 s3, s2, 7")
    a("s_lshl_b32 s3, s3, 2")
    a("s_lshr_b32 s28, s2, 6")
    a("s_add_u32 s28, s28, s3")
    a("s_bfe_u32 s29, s2, 0x30003")
    a("v_lshrrev_b32 v1, 6, v0")
    a("v_and_b32 v0, 63, v0")
    a("v_readfirstlane_b32 s30, v1")
    a("v_lshlrev_b32 v2, 4, v0")
    a("s_and_b32 s31, s30, 1")
    a("s_lshr_b32 s32, s30, 1")
    a("v_lshrrev_b32 v10, 2, v0")
    a("v_lshlrev_b32 v10, 10, v10")
    a("v_and_b32 v11, 3, v0")
    a("v_lshl_add_u32 v6, v11, 4, v10")
    a("s_lshl_b32 s33, s29, 7")
    a("s_lshl_b32 s34, s31, 6")
    a("s_add_u32 s33, s33, s34")
    a("s_lshl_b32 s34, s32, 14")
    a("s_add_u32 s33, s33, s34")
    a("s_lshl_b32 s34, s31, 15")
    a("s_lshl_b32 s35, s32, 10")
    a("s_add_u32 s34, s34, s35")
    a("s_lshl_b32 s36, s28, 1")
    a("s_add_u32 s36, s36, s32")
    a("s_lshl_b32 s37, s36, 15")
    a(f"s_add_u32 s37, s37, {hex(O_OFF)}")
    a("s_waitcnt lgkmcnt(0)")
    srd(a, 12, 4, 512*1024)
    srd(a, 16, 6, 2048*1024)
    srd(a, 20, 8, 8 << 20)
    OF = 48
    def ldO(hd):
        if hd % 4 == 0 and hd:
            a("s_add_u32 s37, s37, 4096")
        a(f"buffer_load_dwordx4 {vr(OF+4*hd,4)}, v2, s[20:23], s37 offen offset:{(hd%4)*1024}")
    issued = []
    for i in range(16):
        a(f"s_add_u32 m0, s34, {i*2048}")
        a(f"s_add_u32 s38, s33, {i*32768}")
        a(f"buffer_load_dwordx4 v6, s[12:15], s38 offen lds")
        ldO(2*i); ldO(2*i+1)
        issued += [i, i, i]
    a("v_lshrrev_b32 v10, 5, v0")
    a("v_bfe_u32 v11, v0, 2, 2")
    a("v_lshl_add_u32 v10, v10, 2, v11")
    a("v_lshlrev_b32 v10, 6, v10")
    a("v_bfe_u32 v11, v0, 4, 1")
    a("v_lshl_add_u32 v10, v11, 5, v10")
    a("v_and_b32 v12, 1, v0")
    a("v_bfe_u32 v13, v0, 1, 1")
    a("v_lshl_add_u32 v12, v12, 1, v13")
    a("v_lshl_add_u32 v7, v12, 3, v10")
    a("s_lshl_b32 s39, s31, 15")
    a("v_add_u32 v7, s39, v7")
    ACC = 16
    for i in range(16):
        a(f"v_mov_b32 v{ACC+i}, 0")
    for grp in range(4):
        n = len(issued) - 3*4*(grp+1)
        a(f"s_waitcnt vmcnt({n})")
        a("s_barrier")
        for half in range(2):
            for q in range(4):
                hd = grp*8 + half*4 + q
                a(f"ds_read_b64_tr_b16 {vr(32+4*q,2)}, v7 offset:{hd*1024}")
                a(f"ds_read_b64_tr_b16 {vr(34+4*q,2)}, v7 offset:{hd*1024+512}")
            for q in range(4):
                hd = grp*8 + half*4 + q
                a(f"s_waitcnt lgkmcnt({6-2*q})")
                a(f"v_mfma_f32_32x32x16_bf16 {vr(ACC,16)}, {vr(32+4*q,4)}, {vr(OF+4*hd,4)}, {vr(ACC,16)}")
    a("v_and_b32 v10, 31, v0")
    a("v_lshlrev_b32 v10, 10, v10")
    a("v_lshrrev_b32 v11, 5, v0")
    a("v_lshl_add_u32 v10, v11, 4, v10")
    a("s_lshl_b32 s38, s36, 15")
    a("s_lshl_b32 s39, s29, 7")
    a("s_add_u32 s38, s38, s39")
    a("s_lshl_b32 s39, s31, 6")
    a("s_add_u32 s38, s38, s39")
    a("s_nop 7")
    for i in range(8):
        a(f"v_cvt_pk_bf16_f32 v{32+i}, v{ACC+2*i}, v{ACC+2*i+1}")
    a("buffer_store_dwordx4 v[32:35], v10, s[16:19], s38 offen")
    a("buffer_store_dwordx4 v[36:39], v10, s[16:19], s38 offen offset:32")
    a.label("L_out_end")
    a("s_endpgm")
    return desc(name, 176)

def main(path, extra=0):
    a = Asm()
    a.raw("; @launch kernel=qkv_kernel grid=(256,1,1) block=(256,1,1) lds=163840")
    a.raw("; @launch kernel=attn_kernel grid=(256,1,1) block=(512,1,1) lds=135168")
    a.raw("; @launch kernel=outp_kernel grid=(256,1,1) block=(256,1,1) lds=65536")
    for i in range(extra):
        a.raw("; @launch kernel=nop_kernel grid=(256,1,1) block=(256,1,1) lds=0")
    a.raw('.amdgcn_target "amdgcn-amd-amdhsa--gfx950"')
    a.raw(".text")
    d = gen_qkv(a) + gen_attn(a) + gen_out(a)
    if extra:
        kernel_head(a, "nop_kernel"); a("s_endpgm"); d += desc("nop_kernel", 8)
    a.raw('.section .rodata,"a"')
    out = a.text()
    for blk in d.split("\n.amdhsa_kernel")[1:]:
        out += ".p2align 6\n.amdhsa_kernel" + blk
    open(path, "w").write(out)

if __name__ == "__main__":
    main(sys.argv[1], int(sys.argv[2]) if len(sys.argv) > 2 else 0)
```

```python
import math, struct, sys

def f2u(x): return struct.unpack("<I", struct.pack("<f", x))[0]
CSCALE = 0.25 * math.log2(math.e)
O_OFF = 4 << 20
IKV_OFF = 6 << 20
IO_OFF = (6 << 20) + 65536
WB = 65536
R3 = 131072
SPIN_MAX = 1 << 16

class Asm:
    def __init__(self): self.l = []
    def __call__(self, s): self.l.append("    " + s)
    def label(self, s): self.l.append(s + ":")
    def raw(self, s): self.l.append(s)
    def c(self, s): self.l.append("    ; " + s)
    def text(self): return "\n".join(self.l) + "\n"
def vr(a, n): return f"v[{a}:{a+n-1}]"

OPT = dict(stamp=False, pretouch=True, xmap=2, sleep=1)

def stamp(a, i):
    if not OPT["stamp"]: return
    a("s_memrealtime s[80:81]")
    a("s_waitcnt lgkmcnt(0)")
    a(f"s_mov_b32 s{84+i}, s80")
def stamp_out(a, n):
    if not OPT["stamp"]: return
    a(f"s_add_u32 s76, s38, {hex(16<<20)}")
    a("s_addc_u32 s77, s39, 0")
    a("s_and_b32 s77, s77, 0xffff")
    a("s_mov_b32 s78, 0x100000")
    a("s_mov_b32 s79, 0x00020000")
    a("s_lshl_b32 s80, s2, 3")
    a("s_add_u32 s80, s80, s42")
    a("s_lshl_b32 s80, s80, 6")
    a("v_mov_b32 v1, 0")
    a("s_mov_b64 exec, 1")
    for i in range(n):
        a(f"v_mov_b32 v10, s{84+i}")
        a(f"buffer_store_dword v10, v1, s[76:79], s80 offen offset:{4*i}")
        a("s_nop 0")

def srd(a, d, base, size):
    a(f"s_mov_b32 s{d}, s{base}")
    a(f"s_and_b32 s{d+1}, s{base+1}, 0xffff")
    a(f"s_mov_b32 s{d+2}, {hex(size)}")
    a(f"s_mov_b32 s{d+3}, 0x00020000")

X, W, WS, WO, OUT, DBG = "s[12:15]", "s[16:19]", "s[20:23]", "s[24:27]", "s[28:31]", "s[32:35]"
sQUAD, sRB, sWAVE, sHD, sTT = "s40", "s41", "s42", "s43", "s44"
sSLOT = "s45"
NONCE = "s[46:47]"
VMASK = "s[48:49]"
sKVOWN = "s50"
sKVH = "s51"
sW1K = "s52"
vL16, vIDX, vXD, vWD, vXR0, vXR1, vWR, vVO = 2, 3, 4, 5, 6, 7, 8, 9
AK, AV, AQ = 16, 24, 32
FR = [40, 56]
QA, QB = 72, 76
S = [80, 96]; O = [112, 128]; KV = [144, 156, 168, 180]
vWO = [192, 193]; vPOLL = 194; vPD = 196; vKPOS = 198; vT = 200

def gen(a):
    name = "standalone__mha_block__prompt_kernel"
    a.raw(f".globl {name}"); a.raw(".p2align 8"); a.raw(f".type {name},@function"); a.label(name)
    a("s_cmp_ge_u32 s2, 256")
    a("s_cbranch_scc1 L_end")
    a("s_load_dwordx4 s[4:7], s[0:1], 0")
    a("s_load_dwordx4 s[8:11], s[0:1], 16")
    a("s_load_dwordx4 s[36:39], s[0:1], 32")
    a(f"s_memrealtime {NONCE}")
    a("v_lshrrev_b32 v1, 6, v0")
    a("v_and_b32 v0, 63, v0")
    a(f"v_readfirstlane_b32 {sWAVE}, v1")
    xm = OPT["xmap"]
    a("s_and_b32 s3, s2, 7")
    a("s_lshr_b32 s53, s2, 3")
    lg = {1: 0, 2: 1, 4: 2, 8: 3}[xm]
    a(f"s_and_b32 s54, s3, {8//xm - 1}")
    a(f"s_lshl_b32 s54, s54, {lg}")
    a(f"s_and_b32 s55, s53, {xm-1}")
    a(f"s_add_u32 {sQUAD}, s54, s55")
    a(f"s_lshr_b32 s54, s3, {3-lg}")
    a(f"s_lshl_b32 s54, s54, {5-lg}")
    a(f"s_lshr_b32 s55, s53, {lg}")
    a(f"s_add_u32 {sRB}, s54, s55")
    a(f"s_and_b32 {sHD}, {sWAVE}, 3")
    a(f"s_lshr_b32 {sTT}, {sWAVE}, 2")
    a(f"s_lshl_b32 {sW1K}, {sWAVE}, 10")
    a(f"v_lshlrev_b32 v{vL16}, 4, v0")
    a("v_lshrrev_b32 v10, 3, v0")
    a("v_and_b32 v11, 7, v0")
    a("v_lshrrev_b32 v12, 4, v0")
    a(f"s_and_b32 s53, {sWAVE}, 1")
    a("s_lshl_b32 s54, s53, 2")
    a("v_xor_b32 v13, v11, v12")
    a("v_xor_b32 v13, s54, v13")
    a(f"s_lshl_b32 s55, {sWAVE}, 3")
    a("v_add_u32 v10, s55, v10")
    a(f"s_lshl_b32 s55, {sRB}, 16")
    a("v_lshlrev_b32 v14, 10, v10")
    a("v_lshl_add_u32 v14, v13, 4, v14")
    a(f"v_add_u32 v{vXD}, s55, v14")
    a("v_and_b32 v12, 1, v12")
    a("v_lshlrev_b32 v12, 1, v12")
    a("v_xor_b32 v13, v11, v12")
    a("v_xor_b32 v13, s54, v13")
    a("v_mul_u32_u24 v14, 3072, v10")
    a("v_lshl_add_u32 v14, v13, 4, v14")
    a(f"s_lshl_b32 s55, {sQUAD}, 7")
    a(f"v_add_u32 v{vWD}, s55, v14")
    a("s_waitcnt lgkmcnt(0)")
    if OPT["stamp"]: a("s_mov_b32 s84, s46")
    srd(a, 12, 4, 2048*1024); srd(a, 16, 6, 512*3072); srd(a, 32, 36, 256)
    a("s_or_b32 s46, s46, 1")
    a(f"s_or_b32 s53, s2, {sWAVE}")
    a("s_cmp_lg_u32 s53, 0")
    a("s_cbranch_scc1 L_nonon")
    a("v_mov_b32 v10, s46"); a("v_mov_b32 v11, s47"); a("v_mov_b32 v12, 0")
    a("s_mov_b64 exec, 1")
    a(f"buffer_store_dwordx2 v[10:11], v12, {DBG}, 0 offen sc1")
    a("s_mov_b64 exec, -1")
    a.label("L_nonon")
    issued = []
    def dma_x(c):
        a(f"s_add_u32 m0, {sW1K}, {c*8192 - c*128}")
        a("s_nop 0")
        a(f"buffer_load_dwordx4 v{vXD}, {X}, 0 offen offset:{c*128} lds"); issued.append(("x", c))
    def dma_w(t, c, slot, tag):
        a(f"s_add_u32 m0, {sW1K}, {WB + slot*8192}")
        a(f"s_mov_b32 s53, {c*196608 + t*1024}")
        a(f"buffer_load_dwordx4 v{vWD}, {W}, s53 offen lds"); issued.append(tag)
    for c in range(4):
        dma_x(c); dma_w(1, c, 2*c, ("kv", c)); dma_w(2, c, 2*c+1, ("kv", c))
    for c in range(4, 8): dma_x(c)
    srd(a, 20, 38, 8 << 20); srd(a, 24, 8, 512*1024); srd(a, 28, 10, 2048*1024)
    a(f"s_lshl_b32 {sSLOT}, {sWAVE}, 12")
    a(f"s_add_u32 {sSLOT}, {sSLOT}, {R3}")
    a(f"s_lshl_b32 s53, {sQUAD}, 2")
    a(f"s_add_u32 s56, s53, {sHD}")
    a("s_lshl_b32 s53, s56, 17")
    a(f"s_lshl_b32 s54, {sTT}, 11")
    a(f"s_add_u32 {sKVH}, s53, s54")
    a(f"s_lshl_b32 s54, {sRB}, 12")
    a(f"s_add_u32 {sKVOWN}, {sKVH}, s54")
    a(f"s_lshl_b32 s53, {sRB}, 1")
    a(f"s_add_u32 s57, s53, {sTT}")
    a("s_lshl_b32 s53, s57, 15")
    a("s_lshl_b32 s54, s56, 10")
    a("s_add_u32 s58, s53, s54")
    a(f"s_add_u32 s58, s58, {hex(O_OFF)}")
    a(f"s_lshl_b32 s53, {sQUAD}, 5")
    a(f"s_add_u32 s59, s53, {sRB}")
    a("s_lshl_b32 s59, s59, 8")
    a(f"s_lshr_b32 s53, {sQUAD}, 2")
    a(f"s_lshl_b32 s54, {sRB}, 1")
    a("s_add_u32 s60, s53, s54")
    a(f"s_and_b32 s61, {sQUAD}, 3")
    a("s_lshl_b32 s61, s61, 8")
    a("s_lshl_b32 s53, s60, 15")
    a("s_add_u32 s62, s53, s61")
    a(f"s_lshl_b32 s53, {sWAVE}, 5")
    a("s_add_u32 s62, s62, s53")
    if OPT["pretouch"]:
        a(f"buffer_load_dword v{vT}, v{vL16}, {WS}, {sKVOWN} offen sc1"); issued.append(("t", 0))
        a(f"buffer_load_dword v{vT}, v{vL16}, {WS}, s58 offen sc1"); issued.append(("t", 0))
        a(f"s_add_u32 s53, s59, {hex(IKV_OFF)}")
        a(f"buffer_load_dword v{vT}, off, {WS}, s53 sc1"); issued.append(("t", 0))
        a(f"buffer_load_dword v{vT}, off, {OUT}, s62"); issued.append(("t", 0))
        a(f"buffer_load_dword v{vT}, off, {WO}, s61"); issued.append(("t", 0))
    a("v_and_b32 v10, 15, v0")
    a("v_lshrrev_b32 v11, 4, v0")
    a("v_bfe_u32 v12, v0, 1, 3")
    a("v_xor_b32 v12, v11, v12")
    a(f"s_lshl_b32 s53, {sTT}, 12")
    a("v_lshlrev_b32 v13, 7, v10")
    a("v_add_u32 v13, s53, v13")
    a(f"v_lshl_add_u32 v{vXR0}, v12, 4, v13")
    a(f"v_xor_b32 v{vXR1}, 64, v{vXR0}")
    a("v_bfe_u32 v12, v0, 2, 2")
    a("v_lshl_add_u32 v13, v11, 3, v12")
    a("v_lshlrev_b32 v13, 7, v13")
    a("v_bfe_u32 v14, v0, 3, 2")
    a(f"v_xor_b32 v14, {sHD}, v14")
    a("v_lshl_add_u32 v13, v14, 5, v13")
    a("v_and_b32 v14, 3, v0")
    a("v_lshl_add_u32 v13, v14, 3, v13")
    a(f"v_add_u32 v{vWR}, {WB}, v13")
    a("v_lshrrev_b32 v12, 5, v0")
    a("v_lshlrev_b32 v12, 8, v12")
    a("v_lshl_add_u32 v12, v10, 4, v12")
    a(f"v_add_u32 v{vVO}, 1024, v12")
    a("v_and_b32 v12, 0x23, v0")
    a("v_bfe_u32 v13, v0, 2, 2")
    a("v_lshl_add_u32 v12, v13, 3, v12")
    a("v_bfe_u32 v13, v0, 4, 1")
    a("v_lshl_add_u32 v12, v13, 2, v12")
    a(f"v_lshlrev_b32 v{vKPOS}, 4, v12")
    a("v_lshrrev_b32 v12, 5, v0")
    a("v_lshlrev_b32 v12, 1, v12")
    a(f"s_lshl_b32 s53, {sWAVE}, 2")
    a("v_add_u32 v12, s53, v12")
    for e in range(2):
        if e: a("v_add_u32 v12, 1, v12")
        a("v_and_b32 v13, 7, v12")
        a("v_lshlrev_b32 v13, 1, v13")
        a("v_xor_b32 v13, v10, v13")
        a("v_lshlrev_b32 v14, 10, v12")
        a("v_lshl_add_u32 v14, v13, 4, v14")
        a(f"v_add_u32 v{vWO[e]}, s61, v14")
    a(f"v_mov_b32 v{vIDX}, 0xdddddddd")
    a("s_mov_b32 s48, 0xffff"); a("s_mov_b32 s49, 0xffff")
    a("v_and_b32 v12, 27, v0")
    a("v_cmp_eq_u32 vcc, 16, v12")
    a("v_mov_b32 v13, 0x3f803f80")
    for i in range(24): a(f"v_mov_b32 v{AK+i}, 0")
    for j in range(4):
        for i in range(8): a(f"v_cndmask_b32 v{KV[j]+4+i}, 0, v13, vcc")
    for i in range(32): a(f"v_mov_b32 v{O[0]+i}, 0")
    stamp(a, 1)

    def waitvm(pred):
        last = max(i for i, t in enumerate(issued) if pred(t))
        a(f"s_waitcnt vmcnt({len(issued) - 1 - last})")
    def rd_x(c, s, f):
        b = vXR0 if s == 0 else vXR1
        a(f"ds_read_b128 {vr(f,4)}, v{b} offset:{c*8192}")
        a(f"ds_read_b128 {vr(f+4,4)}, v{b} offset:{c*8192+2048}")
    def rd_w(slot, s, r):
        a(f"ds_read_b64_tr_b16 {vr(r,2)}, v{vWR} offset:{slot*8192 + s*4096}")
        a(f"ds_read_b64_tr_b16 {vr(r+2,2)}, v{vWR} offset:{slot*8192 + s*4096 + 512}")
    def readsA(c, s, j):
        f = FR[j]; rd_x(c, s, f); rd_w(2*(c%4), s, f+8); rd_w(2*(c%4)+1, s, f+12)
    def mfmaA(j):
        f = FR[j]
        a(f"v_mfma_f32_16x16x32_bf16 {vr(AK,4)}, {vr(f+8,4)}, {vr(f,4)}, {vr(AK,4)}")
        a(f"v_mfma_f32_16x16x32_bf16 {vr(AK+4,4)}, {vr(f+8,4)}, {vr(f+4,4)}, {vr(AK+4,4)}")
        a(f"v_mfma_f32_16x16x32_bf16 {vr(AV,4)}, {vr(f,4)}, {vr(f+12,4)}, {vr(AV,4)}")
        a(f"v_mfma_f32_16x16x32_bf16 {vr(AV+4,4)}, {vr(f+4,4)}, {vr(f+12,4)}, {vr(AV+4,4)}")
    waitvm(lambda t: t[1] == 0 and t[0] in ("x", "kv"))
    a("s_barrier")
    stamp(a, 2)
    readsA(0, 0, 0)
    for c in range(8):
        readsA(c, 1, 1)
        a("s_waitcnt lgkmcnt(6)")
        mfmaA(0)
        if c < 7:
            a("s_waitcnt lgkmcnt(0)")
            waitvm(lambda t: t[1] == c+1 and t[0] in ("x", "kv"))
            a("s_barrier")
            n = c + 4
            if n < 8:
                dma_w(1, n, 2*(c%4), ("kv", n)); dma_w(2, n, 2*(c%4)+1, ("kv", n))
            else:
                j = 2*(n-8)
                dma_w(0, j, j, ("q", j)); dma_w(0, j+1, j+1, ("q", j+1))
            if c == 3:
                a(f"s_cmp_lg_u32 {sWAVE}, 0")
                a("s_cbranch_scc1 L_nf1")
                a(f"buffer_load_dwordx2 {vr(vPD,2)}, off, {DBG}, 0 sc1")
                a.label("L_nf1")
            readsA(c+1, 0, 0)
        else:
            a("s_waitcnt lgkmcnt(0)")
        mfmaA(1)
    stamp(a, 3)
    F = FR[0]
    a(f"v_add_u32 v10, {sSLOT}, v{vKPOS}")
    a(f"v_add_u32 v11, {sSLOT}, v{vL16}")
    a(f"v_add_u32 v12, {sSLOT}, v{vVO}")
    a("s_nop 4")
    for i in range(4): a(f"v_cvt_pk_bf16_f32 v{F+i}, v{AK+2*i}, v{AK+2*i+1}")
    for i in range(4): a(f"v_cvt_pk_bf16_f32 v{F+4+i}, v{AV+2*i}, v{AV+2*i+1}")
    a(f"v_permlane16_swap_b32 v{F}, v{F+2}")
    a(f"v_permlane16_swap_b32 v{F+1}, v{F+3}")
    a(f"buffer_store_dwordx4 {vr(F+4,4)}, v{vL16}, {WS}, {sKVOWN} offen offset:1024 sc1")
    a(f"buffer_store_dwordx4 {vr(F,4)}, v{vKPOS}, {WS}, {sKVOWN} offen sc1")
    a(f"ds_write_b128 v11, {vr(F+4,4)} offset:1024")
    a(f"ds_write_b128 v10, {vr(F,4)}")
    a("s_waitcnt vmcnt(2) lgkmcnt(0)")
    a(f"ds_read_b128 {vr(KV[0],4)}, v11")
    a(f"s_mov_b64 exec, {VMASK}")
    a(f"ds_read_b128 {vr(KV[0]+4,4)}, v12")
    a(f"ds_read_b128 {vr(KV[0]+8,4)}, v12 offset:512")
    a("s_mov_b64 exec, -1")
    a(f"s_cmp_lg_u32 {sWAVE}, 0")
    a("s_cbranch_scc1 L_nf2")
    a(f"s_mov_b32 s53, {SPIN_MAX}")
    a.label("L_nspin")
    a(f"v_readfirstlane_b32 s54, v{vPD}")
    a("s_sub_u32 s53, s53, 1")
    a("s_cbranch_scc1 L_ngot")
    a("s_cmp_lg_u32 s54, 0")
    a("s_cbranch_scc1 L_ngot")
    a("s_sleep 2")
    a(f"buffer_load_dwordx2 {vr(vPD,2)}, off, {DBG}, 0 sc1")
    a("s_waitcnt vmcnt(0)")
    a("s_branch L_nspin")
    a.label("L_ngot")
    a(f"v_mov_b32 v10, {R3 + 2816}")
    a(f"ds_write_b64 v10, {vr(vPD,2)}")
    a.label("L_nf2")
    a("s_waitcnt lgkmcnt(0)")
    a("s_barrier")
    dma_w(0, 6, 6, ("q", 6)); dma_w(0, 7, 7, ("q", 7))
    a(f"v_mov_b32 v10, {R3 + 2816}")
    a(f"ds_read_b64 {vr(vPD,2)}, v10")
    def readsB(c, s, j):
        f = FR[j]; rd_x(c, s, f); rd_w(c, s, f+8)
    def mfmaB(j):
        f = FR[j]
        a(f"v_mfma_f32_16x16x32_bf16 {vr(AQ,4)}, {vr(f+8,4)}, {vr(f,4)}, {vr(AQ,4)}")
        a(f"v_mfma_f32_16x16x32_bf16 {vr(AQ+4,4)}, {vr(f+8,4)}, {vr(f+4,4)}, {vr(AQ+4,4)}")
    readsB(0, 0, 0)
    for c in range(8):
        readsB(c, 1, 1)
        a("s_waitcnt lgkmcnt(4)")
        if c == 0:
            a(f"v_readfirstlane_b32 s46, v{vPD}")
            a(f"v_readfirstlane_b32 s47, v{vPD+1}")
        mfmaB(0)
        if c == 5:
            a("s_waitcnt vmcnt(0)")
            a("s_barrier")
            a(f"s_cmp_lg_u32 {sWAVE}, 0")
            a("s_cbranch_scc1 L_nflag")
            a(f"s_lshl_b32 s53, {sQUAD}, 13")
            a(f"s_lshl_b32 s54, {sRB}, 3")
            a("s_add_u32 s53, s53, s54")
            a(f"s_add_u32 s53, s53, {hex(IKV_OFF)}")
            a("v_lshlrev_b32 v10, 8, v0")
            a("s_mov_b32 exec_hi, 0")
            a(f"buffer_store_dwordx2 {vr(vPD,2)}, v10, {WS}, s53 offen sc1")
            a("s_mov_b64 exec, -1")
            a.label("L_nflag")
            stamp(a, 4)
        if c < 7:
            readsB(c+1, 0, 0)
            a("s_waitcnt lgkmcnt(4)")
        else:
            a("s_waitcnt lgkmcnt(0)")
        mfmaB(1)
    a(f"s_mov_b32 s53, {hex(f2u(CSCALE))}")
    a(f"s_xor_b32 s54, {sSLOT}, 16384")
    a(f"v_add_u32 v10, s54, v{vL16}")
    a(f"v_add_u32 v11, {sSLOT}, v{vL16}")
    a("v_and_b32 v12, 31, v0")
    a(f"v_lshlrev_b32 v{vPOLL}, 3, v12")
    a(f"s_add_u32 s63, s59, {hex(IKV_OFF)}")
    a("s_nop 1")
    for i in range(8): a(f"v_mul_f32 v{AQ+i}, s53, v{AQ+i}")
    for i in range(4): a(f"v_cvt_pk_bf16_f32 v{QA+i}, v{AQ+2*i}, v{AQ+2*i+1}")
    a("s_nop 1")
    a(f"v_permlane16_swap_b32 v{QA}, v{QA+2}")
    a(f"v_permlane16_swap_b32 v{QA+1}, v{QA+3}")
    a(f"ds_write_b128 v10, {vr(QA,4)} offset:3072")
    def qk(j, q): a(f"v_mfma_f32_32x32x16_bf16 {vr(S[q],16)}, {vr(KV[j],4)}, {vr(QA if q == 0 else QB,4)}, 0")
    def pv0(j, q): a(f"v_smfmac_f32_32x32x32_bf16 {vr(O[q],16)}, {vr(KV[j]+4,4)}, {vr(S[q],8)}, v{vIDX}")
    def pv1(j, q): a(f"v_smfmac_f32_32x32x32_bf16 {vr(O[q],16)}, {vr(KV[j]+8,4)}, {vr(S[q]+8,8)}, v{vIDX}")
    def ex(q, i): a(f"v_exp_f32 v{S[q]+i}, v{S[q]+i}")
    a("s_nop 0")
    qk(0, 0)
    a("s_waitcnt lgkmcnt(0)")
    a("s_barrier")
    a(f"ds_read_b128 {vr(QB,4)}, v11 offset:3072")
    a(f"buffer_load_dwordx2 {vr(vPD,2)}, v{vPOLL}, {WS}, s63 offen sc1")
    stamp(a, 5)
    a("s_nop 7")
    ex(0, 0); ex(0, 1); ex(0, 2); ex(0, 3)
    a("s_waitcnt lgkmcnt(0)")
    qk(0, 1)
    for i in range(4, 11): ex(0, i)
    pv0(0, 0)
    for i in range(11, 16): ex(0, i)
    ex(1, 0); ex(1, 1)
    pv1(0, 0)
    for i in range(2, 11): ex(1, i)
    pv0(0, 1)
    for i in range(11, 16): ex(1, i)
    a(f"s_mov_b32 s53, {SPIN_MAX}")
    a.label("L_kvspin")
    a("s_waitcnt vmcnt(0)")
    a(f"v_cmp_eq_u64 vcc, {NONCE}, {vr(vPD,2)}")
    a("s_sub_u32 s53, s53, 1")
    a("s_cbranch_scc1 L_kvgo")
    a("s_cmp_eq_u64 vcc, -1")
    a("s_cbranch_scc1 L_kvgo")
    a(f"s_sleep {OPT['sleep']}")
    a(f"buffer_load_dwordx2 {vr(vPD,2)}, v{vPOLL}, {WS}, s63 offen sc1")
    a("s_branch L_kvspin")
    a.label("L_kvgo")
    stamp(a, 6)
    def ldtile(j, wo_e):
        a("s_min_u32 s53, s64, 30")
        a(f"s_cmp_ge_u32 s53, {sRB}")
        a("s_addc_u32 s53, s53, 0")
        a("s_lshl_b32 s53, s53, 12")
        a(f"s_add_u32 s53, s53, {sKVH}")
        a(f"buffer_load_dwordx4 {vr(KV[j],4)}, v{vL16}, {WS}, s53 offen sc1")
        a(f"s_mov_b64 exec, {VMASK}")
        a(f"buffer_load_dwordx4 {vr(KV[j]+4,4)}, v{vVO}, {WS}, s53 offen sc1")
        if wo_e is not None: a(f"s_add_u32 m0, s65, {wo_e*256}")
        a(f"buffer_load_dwordx4 {vr(KV[j]+8,4)}, v{vVO}, {WS}, s53 offen offset:512 sc1")
        if wo_e is not None:
            a(f"buffer_load_dwordx4 v{vWO[wo_e]}, {WO}, s66 offen lds")
        a("s_mov_b64 exec, -1")
        a("s_add_u32 s64, s64, 1")
        if wo_e == 1:
            a("s_add_u32 s65, s65, 8192")
            a("s_add_u32 s66, s66, 32768")
    a("s_mov_b32 s64, 0")
    a(f"s_mov_b32 s65, {sW1K}")
    a("s_mov_b32 s66, 0")
    ldtile(1, None); ldtile(2, None)
    a(f"buffer_load_dword v{vT}, off, {WO}, s61")
    ldtile(3, 0)
    a("s_mov_b32 s67, 8")
    a("s_waitcnt vmcnt(8)")
    qk(1, 0)
    a("s_nop 7")
    a("s_nop 2")
    a("s_branch L_loop1")
    a.raw(".p2align 6")
    a.label("L_loop")
    P = (2, 5, 11)
    for u in range(4):
        if u == 1: a.label("L_loop1")
        pj = (u - 1) % 4; nj = (u + 1) % 4
        for i in range(16):
            if i == P[0]:
                pv1(pj, 1); ldtile(pj, u % 2)
            if i == P[1]: qk(u, 1)
            if i == P[2]: pv0(u, 0)
            ex(0, i)
        for i in range(16):
            if i == P[0]: pv1(u, 0)
            if i == P[1]:
                a("s_waitcnt vmcnt(9)"); qk(nj, 0)
            if i == P[2]: pv0(u, 1)
            ex(1, i)
    a("s_sub_u32 s67, s67, 1")
    a("s_cmp_lg_u32 s67, 0")
    a("s_cbranch_scc1 L_loop")
    pv1(3, 1)
    stamp(a, 7)
    a(f"s_xor_b32 s54, {sSLOT}, 16384")
    a(f"v_add_u32 v10, s54, v{vL16}")
    a("v_lshlrev_b32 v12, 2, v0")
    a("v_add_u32 v13, s54, v12")
    a(f"v_add_u32 v12, {sSLOT}, v12")
    a("s_nop 7")
    a(f"ds_write_b128 v10, {vr(O[1],4)}")
    a(f"ds_write_b128 v10, {vr(O[1]+4,4)} offset:1024")
    a(f"ds_write_b32 v13, v{O[1]+8} offset:2048")
    a("s_waitcnt lgkmcnt(0)")
    a("s_barrier")
    a(f"ds_read_b128 {vr(S[0],4)}, v11")
    a(f"ds_read_b128 {vr(S[0]+4,4)}, v11 offset:1024")
    a(f"ds_read_b32 v{S[0]+8}, v12 offset:2048")
    a(f"v_mov_b32 v14, {hex(f2u(2.0**-20))}")
    a(f"v_mov_b32 v15, {hex(f2u(2.0**60))}")
    a("s_waitcnt lgkmcnt(0)")
    for i in range(9): a(f"v_add_f32 v{O[0]+i}, v{O[0]+i}, v{S[0]+i}")
    a(f"v_cmp_ge_f32 s[68:69], v{O[0]+8}, v14")
    a(f"v_cmp_le_f32 s[70:71], v{O[0]+8}, v15")
    a(f"v_mul_f32 v14, 0, v{O[0]}")
    for i in range(1, 8): a(f"v_fma_f32 v14, v{O[0]+i}, 0, v14")
    a("v_cmp_o_f32 vcc, v14, v14")
    a("s_and_b64 s[68:69], s[68:69], s[70:71]")
    a("s_nop 1")
    a("s_and_b64 s[68:69], s[68:69], vcc")
    a("s_cmp_eq_u64 s[68:69], -1")
    a("s_cbranch_scc0 L_fallback")
    a.label("L_fin")
    a(f"v_rcp_f32 v14, v{O[0]+8}")
    a("v_and_b32 v12, 3, v0")
    for i in range(8): a(f"v_mul_f32 v{O[0]+i}, v14, v{O[0]+i}")
    for i in range(4): a(f"v_cvt_pk_bf16_f32 v{S[0]+i}, v{O[0]+2*i}, v{O[0]+2*i+1}")
    a(f"buffer_store_dwordx4 {vr(S[0],4)}, v{vL16}, {WS}, s58 offen sc1")
    a(f"s_lshl_b32 s53, {sTT}, 15")
    a(f"s_lshl_b32 s54, {sRB}, 8")
    a("s_add_u32 s53, s53, s54")
    a("s_lshl_b32 s54, s56, 3")
    a("s_add_u32 s53, s53, s54")
    a(f"s_add_u32 s53, s53, {hex(IO_OFF)}")
    a("v_lshlrev_b32 v10, 13, v12")
    a(f"v_mov_b32 v{vPD}, s46"); a(f"v_mov_b32 v{vPD+1}, s47")
    a(f"v_lshlrev_b32 v{vPOLL}, 3, v12")
    a(f"s_lshl_b32 s54, {sWAVE}, 5")
    a("s_add_u32 s63, s59, s54")
    a(f"s_add_u32 s63, s63, {hex(IO_OFF)}")
    a("s_waitcnt vmcnt(0)")
    a("s_mov_b64 exec, 15")
    a(f"buffer_store_dwordx2 {vr(vPD,2)}, v10, {WS}, s53 offen sc1")
    a("s_mov_b64 exec, -1")
    stamp(a, 8)
    vBO, vA0, vA1, vST = 16, 17, 18, 19
    a("v_and_b32 v10, 15, v0")
    a("v_lshrrev_b32 v11, 4, v0")
    a("v_lshlrev_b32 v12, 9, v11")
    a("v_lshl_add_u32 v12, v10, 4, v12")
    a(f"v_add_u32 v{vBO}, {R3}, v12")
    a("v_lshrrev_b32 v12, 5, v0")
    a("v_bfe_u32 v13, v0, 2, 3")
    a("v_lshl_add_u32 v12, v12, 4, v13")
    a("v_lshlrev_b32 v12, 8, v12")
    a(f"v_xor_b32 v13, {sWAVE}, v13")
    a("v_lshl_add_u32 v12, v13, 5, v12")
    a("v_and_b32 v13, 3, v0")
    a(f"v_lshl_add_u32 v{vA0}, v13, 3, v12")
    a(f"v_add_u32 v{vA1}, 65536, v{vA0}")
    a("v_and_b32 v12, 31, v0")
    a("v_lshlrev_b32 v12, 10, v12")
    a("v_lshrrev_b32 v13, 5, v0")
    a(f"v_lshl_add_u32 v{vST}, v13, 4, v12")
    ACC = 24
    for i in range(8): a(f"v_mov_b32 v{ACC+i}, 0")
    a("s_lshl_b32 s54, s60, 15")
    a(f"s_lshl_b32 s55, {sWAVE}, 12")
    a("s_add_u32 s54, s54, s55")
    a(f"s_add_u32 s64, s54, {hex(O_OFF)}")
    a(f"s_mov_b32 m0, {sSLOT}")
    a(f"s_mov_b32 s53, {SPIN_MAX}")
    a.label("L_ospin")
    a(f"buffer_load_dwordx2 {vr(vT,2)}, v{vPOLL}, {WS}, s63 offen sc1")
    a("s_waitcnt vmcnt(0)")
    a(f"v_cmp_eq_u64 vcc, {NONCE}, {vr(vT,2)}")
    a("s_sub_u32 s53, s53, 1")
    a("s_cbranch_scc1 L_ogo")
    a("s_cmp_eq_u64 vcc, -1")
    a("s_cbranch_scc0 L_ospin")
    a.label("L_ogo")
    stamp(a, 9)
    for i in range(4):
        a(f"buffer_load_dwordx4 v{vL16}, {WS}, s64 offen offset:{i*1024} sc1 lds")
    a("s_waitcnt vmcnt(0)")
    a("s_barrier")
    stamp(a, 10)
    G = [40, 52, 64]
    def rd3(s, j):
        f = G[j]; b = vA0 if s < 8 else vA1; o = (s % 8) * 8192
        a(f"ds_read_b128 {vr(f,4)}, v{vBO} offset:{s*2048}")
        a(f"ds_read_b128 {vr(f+4,4)}, v{vBO} offset:{s*2048+256}")
        a(f"ds_read_b64_tr_b16 {vr(f+8,2)}, v{b} offset:{o}")
        a(f"ds_read_b64_tr_b16 {vr(f+10,2)}, v{b} offset:{o+2048}")
    rd3(0, 0); rd3(1, 1)
    for s in range(16):
        if s + 2 < 16:
            rd3(s+2, (s+2) % 3); a("s_waitcnt lgkmcnt(8)")
        else:
            a(f"s_waitcnt lgkmcnt({4*(15-s)})")
        f = G[s % 3]
        a(f"v_mfma_f32_16x16x32_bf16 {vr(ACC,4)}, {vr(f+8,4)}, {vr(f,4)}, {vr(ACC,4)}")
        a(f"v_mfma_f32_16x16x32_bf16 {vr(ACC+4,4)}, {vr(f+8,4)}, {vr(f+4,4)}, {vr(ACC+4,4)}")
    a("s_nop 7")
    for i in range(4): a(f"v_cvt_pk_bf16_f32 v{32+i}, v{ACC+2*i}, v{ACC+2*i+1}")
    a("s_nop 1")
    a("v_permlane16_swap_b32 v32, v34")
    a("v_permlane16_swap_b32 v33, v35")
    a(f"buffer_store_dwordx4 v[32:35], v{vST}, {OUT}, s62 offen")
    if OPT["stamp"]:
        a("s_waitcnt vmcnt(0)")
        stamp(a, 11); stamp_out(a, 12)
    a.label("L_end")
    a("s_endpgm")
    a.label("L_fallback")
    a("s_lshl_b32 s53, s56, 17")
    a("s_mov_b32 s54, 0")
    a("v_mov_b32 v14, 0xff800000")
    a.label("L_fb1")
    a(f"buffer_load_dwordx4 {vr(KV[0],4)}, v{vL16}, {WS}, s53 offen sc1")
    a("s_waitcnt vmcnt(0)")
    qk(0, 0)
    a("s_add_u32 s53, s53, 2048")
    a("s_add_u32 s54, s54, 1")
    a("s_nop 7"); a("s_nop 3")
    for i in range(8): a(f"v_max3_f32 v14, v{S[0]+2*i}, v{S[0]+2*i+1}, v14")
    a("s_cmp_lt_u32 s54, 64")
    a("s_cbranch_scc1 L_fb1")
    a("v_mov_b32 v15, v14")
    a("s_nop 1")
    a("v_permlane32_swap_b32 v14, v15")
    a("s_nop 1")
    a("v_max_f32 v14, v14, v15")
    for i in range(16): a(f"v_sub_f32 v{S[1]+i}, 0, v14")
    for i in range(16): a(f"v_mov_b32 v{O[0]+i}, 0")
    a("s_lshl_b32 s53, s56, 17")
    a("s_mov_b32 s54, 0")
    a.label("L_fb2")
    a(f"buffer_load_dwordx4 {vr(KV[0],4)}, v{vL16}, {WS}, s53 offen sc1")
    a(f"s_mov_b64 exec, {VMASK}")
    a(f"buffer_load_dwordx4 {vr(KV[0]+4,4)}, v{vVO}, {WS}, s53 offen sc1")
    a(f"buffer_load_dwordx4 {vr(KV[0]+8,4)}, v{vVO}, {WS}, s53 offen offset:512 sc1")
    a("s_mov_b64 exec, -1")
    a("s_waitcnt vmcnt(0)")
    a(f"v_mfma_f32_32x32x16_bf16 {vr(S[0],16)}, {vr(KV[0],4)}, {vr(QA,4)}, {vr(S[1],16)}")
    a("s_add_u32 s53, s53, 2048")
    a("s_add_u32 s54, s54, 1")
    a("s_nop 7"); a("s_nop 3")
    for i in range(16): ex(0, i)
    a("s_nop 1")
    pv0(0, 0); pv1(0, 0)
    a("s_cmp_lt_u32 s54, 64")
    a("s_cbranch_scc1 L_fb2")
    a("s_nop 7"); a("s_nop 7")
    a("s_branch L_fin")
    return f"""
.section .rodata,"a"
.p2align 6
.amdhsa_kernel {name}
  .amdhsa_next_free_vgpr 208
  .amdhsa_next_free_sgpr 100
  .amdhsa_accum_offset 208
  .amdhsa_group_segment_fixed_size 0
  .amdhsa_kernarg_size 48
  .amdhsa_user_sgpr_count 2
  .amdhsa_user_sgpr_kernarg_segment_ptr 1
  .amdhsa_system_sgpr_workgroup_id_x 1
.end_amdhsa_kernel
"""

def main(path):
    a = Asm()
    a.raw("; @launch grid=(256,1,1) block=(512,1,1) lds=163840")
    a.raw('.amdgcn_target "amdgcn-amd-amdhsa--gfx950"')
    a.raw(".text")
    d = gen(a)
    open(path, "w").write(a.text() + d)

if __name__ == "__main__":
    for kv in sys.argv[2:]:
        k, v = kv.split("="); OPT[k] = int(v)
    main(sys.argv[1])
```

```python
import math, struct, sys

def f2u(x): return struct.unpack("<I", struct.pack("<f", x))[0]
CSCALE = 0.25 * math.log2(math.e)
O_OFF = 4 << 20
IKV_OFF = 6 << 20
IO_OFF = (6 << 20) + 65536
WB = 65536
R3 = 131072
SPIN_MAX = 1 << 16

class Asm:
    def __init__(self): self.l = []
    def __call__(self, s): self.l.append("    " + s)
    def label(self, s): self.l.append(s + ":")
    def raw(self, s): self.l.append(s)
    def c(self, s): self.l.append("    ; " + s)
    def text(self): return "\n".join(self.l) + "\n"
def vr(a, n): return f"v[{a}:{a+n-1}]"

OPT = dict(stamp=0, xmap=2, sleep=1, rot=1, qpf=1, noncep=2, drop=6, spread=1, worot=1)

vST_RT, vST_CY = 252, 253
def stamp(a, i):
    if not OPT["stamp"]: return
    a("s_memrealtime s[80:81]")
    a("s_memtime s[82:83]")
    a("s_waitcnt lgkmcnt(0)")
    a(f"v_writelane_b32 v{vST_RT}, s80, {i}")
    a(f"v_writelane_b32 v{vST_CY}, s82, {i}")
def stamp_out(a):
    if not OPT["stamp"]: return
    a(f"s_add_u32 s76, s38, {hex(16<<20)}")
    a("s_addc_u32 s77, s39, 0")
    a("s_and_b32 s77, s77, 0xffff")
    a("s_mov_b32 s78, 0x100000")
    a("s_mov_b32 s79, 0x00020000")
    a("s_lshl_b32 s80, s2, 3")
    a("s_add_u32 s80, s80, s42")
    a("s_lshl_b32 s80, s80, 8")
    a("v_lshlrev_b32 v1, 2, v0")
    a("s_mov_b32 exec_hi, 0")
    a(f"buffer_store_dword v{vST_RT}, v1, s[76:79], s80 offen")
    a(f"buffer_store_dword v{vST_CY}, v1, s[76:79], s80 offen offset:128")

def srd(a, d, base, size):
    a(f"s_mov_b32 s{d}, s{base}")
    a(f"s_and_b32 s{d+1}, s{base+1}, 0xffff")
    a(f"s_mov_b32 s{d+2}, {hex(size)}")
    a(f"s_mov_b32 s{d+3}, 0x00020000")

X, W, WS, WO, OUT, DBG = "s[12:15]", "s[16:19]", "s[20:23]", "s[24:27]", "s[28:31]", "s[32:35]"
sQUAD, sRB, sWAVE, sHD, sTT = "s40", "s41", "s42", "s43", "s44"
sSLOT = "s45"
NONCE = "s[46:47]"
VMASK = "s[48:49]"
sKVOWN = "s50"
sKVH = "s51"
sW1K = "s52"
def sXT(p): return f"s{84+p}"
def sWT(p): return f"s{92+p}"
vL16, vIDX, vXD, vWD, vXR0, vXR1, vWR, vVO = 2, 3, 4, 5, 6, 7, 8, 9
AK, AV, AQ = 16, 24, 32
FW = [40, 48]
KV = [56, 68, 80, 92]
QA, QB = 104, 108
XF = 112
O = [112, 128]; S = [144, 160]
vWO = [240, 241]; vPOLL = 242; vPD = 244; vKPOS = 246; vKG = 247; vVG = 248; vWQ = 249; vT = 250

def gen(a):
    name = "standalone__mha_block__prompt_kernel"
    a.raw(f".globl {name}"); a.raw(".p2align 8"); a.raw(f".type {name},@function"); a.label(name)
    a("s_cmp_ge_u32 s2, 256")
    a("s_cbranch_scc1 L_end")
    a("s_load_dwordx4 s[4:7], s[0:1], 0")
    a("s_load_dwordx4 s[36:39], s[0:1], 32")
    a("s_load_dwordx4 s[8:11], s[0:1], 16")
    a(f"s_memrealtime {NONCE}")
    if OPT["stamp"]: a("s_memtime s[82:83]")
    a("v_lshrrev_b32 v1, 6, v0")
    a("v_and_b32 v0, 63, v0")
    a(f"v_readfirstlane_b32 {sWAVE}, v1")
    xm = OPT["xmap"]
    a("s_and_b32 s3, s2, 7")
    a("s_lshr_b32 s53, s2, 3")
    lg = {1: 0, 2: 1, 4: 2, 8: 3}[xm]
    a(f"s_and_b32 s54, s3, {8//xm - 1}")
    a(f"s_lshl_b32 s54, s54, {lg}")
    a(f"s_and_b32 s55, s53, {xm-1}")
    a(f"s_add_u32 {sQUAD}, s54, s55")
    a(f"s_lshr_b32 s54, s3, {3-lg}")
    a(f"s_lshl_b32 s54, s54, {5-lg}")
    a(f"s_lshr_b32 s55, s53, {lg}")
    a(f"s_add_u32 {sRB}, s54, s55")
    a(f"s_and_b32 {sHD}, {sWAVE}, 3")
    a(f"s_lshr_b32 {sTT}, {sWAVE}, 2")
    a(f"s_lshl_b32 {sW1K}, {sWAVE}, 10")
    a(f"v_lshlrev_b32 v{vL16}, 4, v0")
    a("v_lshrrev_b32 v10, 3, v0")
    a("v_and_b32 v11, 7, v0")
    a("v_lshrrev_b32 v12, 4, v0")
    a(f"s_and_b32 s53, {sWAVE}, 1")
    a("s_lshl_b32 s54, s53, 2")
    a("v_xor_b32 v13, v11, v12")
    a("v_xor_b32 v13, s54, v13")
    a(f"s_lshl_b32 s55, {sWAVE}, 3")
    a("v_add_u32 v10, s55, v10")
    a(f"s_lshl_b32 s55, {sRB}, 16")
    a("v_lshlrev_b32 v14, 10, v10")
    a("v_lshl_add_u32 v14, v13, 4, v14")
    a(f"v_add_u32 v{vXD}, s55, v14")
    a("v_and_b32 v12, 1, v12")
    a("v_lshlrev_b32 v12, 1, v12")
    a("v_xor_b32 v13, v11, v12")
    a("v_xor_b32 v13, s54, v13")
    a("v_mul_u32_u24 v14, 3072, v10")
    a("v_lshl_add_u32 v14, v13, 4, v14")
    a(f"s_lshl_b32 s55, {sQUAD}, 7")
    a(f"v_add_u32 v{vWD}, s55, v14")
    if OPT["rot"]:
        a(f"s_lshl_b32 s53, {sQUAD}, 2")
        a(f"s_add_u32 s53, s53, {sRB}")
    else:
        a("s_mov_b32 s53, 0")
    for p in range(8):
        a("s_and_b32 s53, s53, 7")
        a(f"s_lshl_b32 {sXT(p)}, s53, 7")
        a(f"s_mul_i32 {sWT(p)}, s53, 196608")
        if p < 7: a("s_add_u32 s53, s53, 1")
    a("v_and_b32 v12, 31, v0")
    a(f"s_lshl_b32 s53, {sRB}, 5")
    a("s_and_b32 s53, s53, 511")
    a("v_add_u32 v12, s53, v12")
    a("v_mul_u32_u24 v15, 3072, v12")
    a("s_waitcnt lgkmcnt(0)")
    if OPT["stamp"]:
        a(f"v_writelane_b32 v{vST_RT}, s46, 0"); a(f"v_writelane_b32 v{vST_CY}, s82, 0")
    stamp(a, 12)
    srd(a, 12, 4, 2048*1024); srd(a, 16, 6, 512*3072)
    issued = []
    def dma_x(p):
        a(f"s_add_u32 m0, {sW1K}, {p*8192}")
        a("s_nop 0")
        a(f"buffer_load_dwordx4 v{vXD}, {X}, {sXT(p)} offen lds"); issued.append(("x", p))
    def dma_w(t, p, dest, tag):
        a(f"s_add_u32 m0, {sW1K}, {dest - t*1024}")
        a("s_nop 0")
        a(f"buffer_load_dwordx4 v{vWD}, {W}, {sWT(p)} offen offset:{t*1024} lds"); issued.append(tag)
    def dma_kv(p):
        dma_w(1, p, WB + 2*(p%4)*8192, ("kv", p)); dma_w(2, p, WB + (2*(p%4)+1)*8192, ("kv", p))
    QDEST = [j*8192 for j in range(6)] + [WB, WB + 8192]
    dma_x(0); dma_kv(0)
    srd(a, 32, 36, 256)
    a("s_or_b32 s46, s46, 1")
    a(f"s_or_b32 s53, s2, {sWAVE}")
    a("s_cmp_lg_u32 s53, 0")
    a("s_cbranch_scc1 L_nonon")
    a("v_mov_b32 v10, s46"); a("v_mov_b32 v11, s47")
    a("s_mov_b64 exec, 1")
    a(f"buffer_store_dwordx2 v[10:11], off, {DBG}, 0 sc1")
    a("s_mov_b64 exec, -1")
    a.label("L_nonon")
    if OPT["qpf"]:
        a(f"s_cmp_lg_u32 {sWAVE}, 7")
        a("s_cbranch_scc1 L_noqpf")
        a(f"buffer_load_dword v{vT}, v15, {W}, s55 offen")
        a.label("L_noqpf")
    for p in range(1, 4):
        dma_x(p); dma_kv(p)
    for p in range(4, 8): dma_x(p)
    stamp(a, 13)
    srd(a, 20, 38, 8 << 20); srd(a, 24, 8, 512*1024); srd(a, 28, 10, 2048*1024)
    a(f"s_lshl_b32 {sSLOT}, {sWAVE}, 12")
    a(f"s_add_u32 {sSLOT}, {sSLOT}, {R3}")
    a(f"s_lshl_b32 s53, {sQUAD}, 2")
    a(f"s_add_u32 s56, s53, {sHD}")
    a("s_lshl_b32 s53, s56, 17")
    a(f"s_lshl_b32 s54, {sTT}, 11")
    a(f"s_add_u32 {sKVH}, s53, s54")
    a(f"s_lshl_b32 s54, {sRB}, 12")
    a(f"s_add_u32 {sKVOWN}, {sKVH}, s54")
    a(f"s_lshl_b32 s53, {sRB}, 1")
    a(f"s_add_u32 s57, s53, {sTT}")
    a("s_lshl_b32 s53, s57, 15")
    a("s_lshl_b32 s54, s56, 10")
    a("s_add_u32 s58, s53, s54")
    a(f"s_add_u32 s58, s58, {hex(O_OFF)}")
    a(f"s_lshl_b32 s53, {sQUAD}, 5")
    a(f"s_add_u32 s59, s53, {sRB}")
    a("s_lshl_b32 s59, s59, 8")
    a(f"s_lshr_b32 s53, {sQUAD}, 2")
    a(f"s_lshl_b32 s54, {sRB}, 1")
    a("s_add_u32 s60, s53, s54")
    a(f"s_and_b32 s61, {sQUAD}, 3")
    a("s_lshl_b32 s61, s61, 8")
    a("s_lshl_b32 s53, s60, 15")
    a("s_add_u32 s62, s53, s61")
    a(f"s_lshl_b32 s53, {sWAVE}, 5")
    a("s_add_u32 s62, s62, s53")
    a("v_and_b32 v10, 15, v0")
    a("v_lshrrev_b32 v11, 4, v0")
    a("v_bfe_u32 v12, v0, 1, 3")
    a("v_xor_b32 v12, v11, v12")
    a(f"s_lshl_b32 s53, {sTT}, 12")
    a("v_lshlrev_b32 v13, 7, v10")
    a("v_add_u32 v13, s53, v13")
    a(f"v_lshl_add_u32 v{vXR0}, v12, 4, v13")
    a(f"v_xor_b32 v{vXR1}, 64, v{vXR0}")
    a("v_bfe_u32 v12, v0, 2, 2")
    a("v_lshl_add_u32 v13, v11, 3, v12")
    a("v_lshlrev_b32 v13, 7, v13")
    a("v_bfe_u32 v14, v0, 3, 2")
    a(f"v_xor_b32 v14, {sHD}, v14")
    a("v_lshl_add_u32 v13, v14, 5, v13")
    a("v_and_b32 v14, 3, v0")
    a(f"v_lshl_add_u32 v{vWQ}, v14, 3, v13")
    a(f"v_add_u32 v{vWR}, {WB}, v{vWQ}")
    a("v_lshrrev_b32 v12, 5, v0")
    a("v_lshlrev_b32 v12, 8, v12")
    a("v_lshl_add_u32 v12, v10, 4, v12")
    a(f"v_add_u32 v{vVO}, 1024, v12")
    a(f"v_add_u32 v{vKG}, {sKVH}, v{vL16}")
    a(f"v_add_u32 v{vVG}, {sKVH}, v{vVO}")
    a("v_and_b32 v12, 0x23, v0")
    a("v_bfe_u32 v13, v0, 2, 2")
    a("v_lshl_add_u32 v12, v13, 3, v12")
    a("v_bfe_u32 v13, v0, 4, 1")
    a("v_lshl_add_u32 v12, v13, 2, v12")
    a(f"v_lshlrev_b32 v{vKPOS}, 4, v12")
    a("v_lshrrev_b32 v12, 5, v0")
    a("v_lshlrev_b32 v12, 1, v12")
    a(f"s_lshl_b32 s53, {sWAVE}, 2")
    a("v_add_u32 v12, s53, v12")
    for e in range(2):
        if e: a("v_add_u32 v12, 1, v12")
        a("v_and_b32 v13, 7, v12")
        a("v_lshlrev_b32 v13, 1, v13")
        a("v_xor_b32 v13, v10, v13")
        a("v_lshlrev_b32 v14, 10, v12")
        a("v_lshl_add_u32 v14, v13, 4, v14")
        a(f"v_add_u32 v{vWO[e]}, s61, v14")
    a(f"v_mov_b32 v{vIDX}, 0xdddddddd")
    a("s_mov_b32 s48, 0xffff"); a("s_mov_b32 s49, 0xffff")
    a("v_and_b32 v12, 27, v0")
    a("v_cmp_eq_u32 vcc, 16, v12")
    a("v_mov_b32 v13, 0x3f803f80")
    for i in range(24): a(f"v_mov_b32 v{AK+i}, 0")
    for j in range(4):
        for i in range(8): a(f"v_cndmask_b32 v{KV[j]+4+i}, 0, v13, vcc")
    stamp(a, 1)

    def waitvm(pred):
        last = max(i for i, t in enumerate(issued) if pred(t))
        a(f"s_waitcnt vmcnt({len(issued) - 1 - last})")
    def xf(p, s): return XF + 8*(2*p + s)
    def rd_w(base, off, r):
        a(f"ds_read_b64_tr_b16 {vr(r,2)}, v{base} offset:{off}")
        a(f"ds_read_b64_tr_b16 {vr(r+2,2)}, v{base} offset:{off + 512}")
    def readsA(p, s):
        b = vXR0 if s == 0 else vXR1; f = xf(p, s)
        a(f"ds_read_b128 {vr(f,4)}, v{b} offset:{p*8192}")
        a(f"ds_read_b128 {vr(f+4,4)}, v{b} offset:{p*8192+2048}")
        rd_w(vWR, 2*(p%4)*8192 + s*4096, FW[s]); rd_w(vWR, (2*(p%4)+1)*8192 + s*4096, FW[s]+4)
    def mfmaA(p, s):
        f = xf(p, s); w = FW[s]
        a(f"v_mfma_f32_16x16x32_bf16 {vr(AK,4)}, {vr(w,4)}, {vr(f,4)}, {vr(AK,4)}")
        a(f"v_mfma_f32_16x16x32_bf16 {vr(AK+4,4)}, {vr(w,4)}, {vr(f+4,4)}, {vr(AK+4,4)}")
        a(f"v_mfma_f32_16x16x32_bf16 {vr(AV,4)}, {vr(f,4)}, {vr(w+4,4)}, {vr(AV,4)}")
        a(f"v_mfma_f32_16x16x32_bf16 {vr(AV+4,4)}, {vr(f+4,4)}, {vr(w+4,4)}, {vr(AV+4,4)}")
    waitvm(lambda t: t[1] == 0 and t[0] in ("x", "kv"))
    a("s_barrier")
    stamp(a, 2)
    readsA(0, 0)
    for p in range(8):
        readsA(p, 1)
        a("s_waitcnt lgkmcnt(6)")
        mfmaA(p, 0)
        a("s_waitcnt lgkmcnt(0)")
        if p < 7:
            waitvm(lambda t: t[1] == p+1 and t[0] in ("x", "kv"))
            a("s_barrier")
            if p < 4: dma_kv(p + 4)
            elif p < 6:
                for j in range(4*(p-4), 4*(p-4)+4): dma_w(0, j, QDEST[j], ("q", j))
            if p == OPT["noncep"]:
                a(f"s_cmp_lg_u32 {sWAVE}, 0")
                a("s_cbranch_scc1 L_nf1")
                a(f"buffer_load_dwordx2 {vr(vPD,2)}, off, {DBG}, 0 sc1")
                a.label("L_nf1")
            readsA(p+1, 0)
        mfmaA(p, 1)
    stamp(a, 3)
    F = FW[0]
    a(f"v_add_u32 v10, {sSLOT}, v{vKPOS}")
    a(f"v_add_u32 v11, {sSLOT}, v{vL16}")
    a(f"v_add_u32 v12, {sSLOT}, v{vVO}")
    a("s_nop 4")
    for i in range(4): a(f"v_cvt_pk_bf16_f32 v{F+i}, v{AK+2*i}, v{AK+2*i+1}")
    for i in range(4): a(f"v_cvt_pk_bf16_f32 v{F+4+i}, v{AV+2*i}, v{AV+2*i+1}")
    a(f"v_permlane16_swap_b32 v{F}, v{F+2}")
    a(f"v_permlane16_swap_b32 v{F+1}, v{F+3}")
    a(f"buffer_store_dwordx4 {vr(F+4,4)}, v{vL16}, {WS}, {sKVOWN} offen offset:1024 sc1")
    a(f"buffer_store_dwordx4 {vr(F,4)}, v{vKPOS}, {WS}, {sKVOWN} offen sc1")
    a(f"ds_write_b128 v11, {vr(F+4,4)} offset:1024")
    a(f"ds_write_b128 v10, {vr(F,4)}")
    a("s_waitcnt lgkmcnt(0)")
    a(f"ds_read_b128 {vr(KV[0],4)}, v11")
    a(f"s_mov_b64 exec, {VMASK}")
    a(f"ds_read_b128 {vr(KV[0]+4,4)}, v12")
    a(f"ds_read_b128 {vr(KV[0]+8,4)}, v12 offset:512")
    a("s_mov_b64 exec, -1")
    a("s_waitcnt vmcnt(2)")
    a(f"s_cmp_lg_u32 {sWAVE}, 0")
    a("s_cbranch_scc1 L_nf2")
    a(f"s_mov_b32 s53, {SPIN_MAX}")
    a.label("L_nspin")
    a(f"v_readfirstlane_b32 s54, v{vPD}")
    a("s_sub_u32 s53, s53, 1")
    a("s_cbranch_scc1 L_ngot")
    a("s_cmp_lg_u32 s54, 0")
    a("s_cbranch_scc1 L_ngot")
    a("s_sleep 2")
    a(f"buffer_load_dwordx2 {vr(vPD,2)}, off, {DBG}, 0 sc1")
    a("s_waitcnt vmcnt(0)")
    a("s_branch L_nspin")
    a.label("L_ngot")
    a(f"v_mov_b32 v10, {R3 + 2816}")
    a(f"ds_write_b64 v10, {vr(vPD,2)}")
    a.label("L_nf2")
    a("s_waitcnt lgkmcnt(0)")
    a("s_barrier")
    stamp(a, 14)
    a(f"v_mov_b32 v10, {R3 + 2816}")
    a(f"ds_read_b64 {vr(vPD,2)}, v10")
    def readsB(st):
        p, s = divmod(st, 2)
        d = QDEST[p]
        if d < WB: rd_w(vWQ, d + s*4096, FW[0] + 4*(st % 4))
        else: rd_w(vWR, d - WB + s*4096, FW[0] + 4*(st % 4))
    for st in range(3): readsB(st)
    for st in range(16):
        if st + 3 < 16:
            readsB(st + 3); a("s_waitcnt lgkmcnt(6)")
        else:
            a(f"s_waitcnt lgkmcnt({2*(15-st)})")
        if st == 0:
            a(f"v_readfirstlane_b32 s46, v{vPD}")
            a(f"v_readfirstlane_b32 s47, v{vPD+1}")
        f = XF + 8*st; w = FW[0] + 4*(st % 4)
        a(f"v_mfma_f32_16x16x32_bf16 {vr(AQ,4)}, {vr(w,4)}, {vr(f,4)}, {vr(AQ,4)}")
        a(f"v_mfma_f32_16x16x32_bf16 {vr(AQ+4,4)}, {vr(w,4)}, {vr(f+4,4)}, {vr(AQ+4,4)}")
        if 4 <= st < 12:
            for i in range(4): a(f"v_mov_b32 v{O[0] + 4*(st-4) + i}, 0")
    a(f"s_mov_b32 s53, {hex(f2u(CSCALE))}")
    a(f"s_xor_b32 s54, {sSLOT}, 16384")
    a(f"v_add_u32 v10, s54, v{vL16}")
    a("v_and_b32 v12, 31, v0")
    a(f"v_lshlrev_b32 v{vPOLL}, 3, v12")
    a(f"s_add_u32 s63, s59, {hex(IKV_OFF)}")
    a("v_lshlrev_b32 v13, 8, v0")
    a("s_nop 0")
    for i in range(8): a(f"v_mul_f32 v{AQ+i}, s53, v{AQ+i}")
    for i in range(4): a(f"v_cvt_pk_bf16_f32 v{QA+i}, v{AQ+2*i}, v{AQ+2*i+1}")
    a(f"s_lshl_b32 s53, {sQUAD}, 13")
    a(f"s_lshl_b32 s54, {sRB}, 3")
    a(f"v_permlane16_swap_b32 v{QA}, v{QA+2}")
    a(f"v_permlane16_swap_b32 v{QA+1}, v{QA+3}")
    a(f"ds_write_b128 v10, {vr(QA,4)} offset:3072")
    def qk(j, q): a(f"v_mfma_f32_32x32x16_bf16 {vr(S[q],16)}, {vr(KV[j],4)}, {vr(QA if q == 0 else QB,4)}, 0")
    def pv0(j, q): a(f"v_smfmac_f32_32x32x32_bf16 {vr(O[q],16)}, {vr(KV[j]+4,4)}, {vr(S[q],8)}, v{vIDX}")
    def pv1(j, q): a(f"v_smfmac_f32_32x32x32_bf16 {vr(O[q],16)}, {vr(KV[j]+8,4)}, {vr(S[q]+8,8)}, v{vIDX}")
    def ex(q, i): a(f"v_exp_f32 v{S[q]+i}, v{S[q]+i}")
    a("s_add_u32 s53, s53, s54")
    qk(0, 0)
    a(f"s_add_u32 s53, s53, {hex(IKV_OFF)}")
    stamp(a, 16)
    a("s_waitcnt vmcnt(0) lgkmcnt(0)")
    a("s_barrier")
    a(f"s_cmp_lg_u32 {sWAVE}, 0")
    a("s_cbranch_scc1 L_nflag")
    a("s_mov_b32 exec_hi, 0")
    a(f"buffer_store_dwordx2 {vr(vPD,2)}, v13, {WS}, s53 offen sc1")
    a("s_mov_b64 exec, -1")
    a.label("L_nflag")
    a(f"ds_read_b128 {vr(QB,4)}, v11 offset:3072")
    stamp(a, 5)
    a("s_nop 7")
    ex(0, 0); ex(0, 1); ex(0, 2); ex(0, 3)
    a("s_waitcnt lgkmcnt(0)")
    qk(0, 1)
    for i in range(4, 11): ex(0, i)
    pv0(0, 0)
    for i in range(11, 16): ex(0, i)
    a(f"buffer_load_dwordx2 {vr(vT,2)}, v{vPOLL}, {WS}, s63 offen sc1")
    ex(1, 0); ex(1, 1)
    pv1(0, 0)
    for i in range(2, 11): ex(1, i)
    pv0(0, 1)
    for i in range(11, 16): ex(1, i)
    a(f"s_mov_b32 s53, {SPIN_MAX}")
    a(f"s_lshl_b32 s64, {sRB}, 12")
    if OPT["worot"]:
        a(f"s_lshl_b32 s65, {sRB}, 13"); a("s_and_b32 s65, s65, 0x1ffff")
    else:
        a("s_mov_b32 s65, 0")
    a("s_lshl_b32 s66, s65, 2")
    a(f"s_add_u32 s68, {sW1K}, 256")
    a.label("L_kvspin")
    a("s_waitcnt vmcnt(0)")
    a(f"v_cmp_eq_u64 vcc, {NONCE}, {vr(vT,2)}")
    a("s_sub_u32 s53, s53, 1")
    a("s_cbranch_scc1 L_kvgo")
    a("s_cmp_eq_u64 vcc, -1")
    a("s_cbranch_scc1 L_kvgo")
    if OPT["sleep"]: a(f"s_sleep {OPT['sleep']}")
    a(f"buffer_load_dwordx2 {vr(vT,2)}, v{vPOLL}, {WS}, s63 offen sc1")
    a("s_branch L_kvspin")
    a.label("L_kvgo")
    stamp(a, 6)
    def ld_parts(j, e):
        p0 = ["s_add_u32 s64, s64, 4096", "s_and_b32 s64, s64, 0x1ffff",
              f"buffer_load_dwordx4 {vr(KV[j],4)}, v{vKG}, {WS}, s64 offen sc1"]
        p1 = [f"s_mov_b64 exec, {VMASK}", f"buffer_load_dwordx4 {vr(KV[j]+4,4)}, v{vVG}, {WS}, s64 offen sc1"]
        if e is not None: p1.append(f"s_add_u32 m0, s65, {sW1K if e == 0 else 's68'}")
        p1.append(f"buffer_load_dwordx4 {vr(KV[j]+8,4)}, v{vVG}, {WS}, s64 offen offset:512 sc1")
        if e is not None: p1.append(f"buffer_load_dwordx4 v{vWO[e]}, {WO}, s66 offen lds")
        p1.append("s_mov_b64 exec, -1")
        p2 = ["s_add_u32 s65, s65, 8192", "s_and_b32 s65, s65, 0x1ffff", "s_lshl_b32 s66, s65, 2"] if e == 1 else []
        return [p0, p1, p2]
    def emit(parts):
        for p in parts:
            for x in p: a(x)
    emit(ld_parts(1, None)); emit(ld_parts(2, None))
    a(f"buffer_load_dword v{vT}, off, {WO}, s61")
    emit(ld_parts(3, 0))
    a("s_mov_b32 s67, 8")
    if OPT["drop"]:
        a(f"s_cmp_lg_u32 {sTT}, 1")
        a("s_cbranch_scc1 L_noprio")
        a("s_setprio 1")
        a.label("L_noprio")
    a("s_waitcnt vmcnt(8)")
    qk(1, 0)
    a("s_nop 7")
    a("s_nop 2")
    a("s_branch L_loop1")
    a.raw(".p2align 6")
    a.label("L_loop")
    P = (2, 5, 11)
    for u in range(4):
        if u == 1: a.label("L_loop1")
        pj = (u - 1) % 4; nj = (u + 1) % 4
        parts = ld_parts(pj, u % 2)
        for i in range(16):
            if i == P[0]:
                pv1(pj, 1)
                if not OPT["spread"]: emit(parts)
            if OPT["spread"] and i in (3, 7, 13): emit([parts[(3, 7, 13).index(i)]])
            if i == P[1]: qk(u, 1)
            if i == P[2]: pv0(u, 0)
            ex(0, i)
        for i in range(16):
            if i == P[0]: pv1(u, 0)
            if i == P[1]:
                a("s_waitcnt vmcnt(9)"); qk(nj, 0)
            if i == P[2]: pv0(u, 1)
            ex(1, i)
    if OPT["drop"]:
        a(f"s_cmp_lg_u32 s67, {9 - OPT['drop']}")
        a("s_cbranch_scc1 L_nodrop")
        a("s_setprio 0")
        a.label("L_nodrop")
    a("s_sub_u32 s67, s67, 1")
    a("s_cmp_lg_u32 s67, 0")
    a("s_cbranch_scc1 L_loop")
    pv1(3, 1)
    stamp(a, 7)
    a(f"s_xor_b32 s54, {sSLOT}, 16384")
    a(f"v_add_u32 v10, s54, v{vL16}")
    a("v_lshlrev_b32 v12, 2, v0")
    a("v_add_u32 v13, s54, v12")
    a(f"v_add_u32 v12, {sSLOT}, v12")
    a("s_nop 7")
    a(f"ds_write_b128 v10, {vr(O[1],4)}")
    a(f"ds_write_b128 v10, {vr(O[1]+4,4)} offset:1024")
    a(f"ds_write_b32 v13, v{O[1]+8} offset:2048")
    a("s_waitcnt vmcnt(0) lgkmcnt(0)")
    a("s_barrier")
    stamp(a, 15)
    a(f"ds_read_b128 {vr(S[0],4)}, v11")
    a(f"ds_read_b128 {vr(S[0]+4,4)}, v11 offset:1024")
    a(f"ds_read_b32 v{S[0]+8}, v12 offset:2048")
    a(f"v_mov_b32 v14, {hex(f2u(2.0**-20))}")
    a(f"v_mov_b32 v15, {hex(f2u(2.0**60))}")
    a("s_waitcnt lgkmcnt(0)")
    for i in range(9): a(f"v_add_f32 v{O[0]+i}, v{O[0]+i}, v{S[0]+i}")
    a(f"v_cmp_ge_f32 s[68:69], v{O[0]+8}, v14")
    a(f"v_cmp_le_f32 s[70:71], v{O[0]+8}, v15")
    a(f"v_mul_f32 v14, 0, v{O[0]}")
    for i in range(1, 8): a(f"v_fma_f32 v14, v{O[0]+i}, 0, v14")
    a("v_cmp_o_f32 vcc, v14, v14")
    a("s_and_b64 s[68:69], s[68:69], s[70:71]")
    a("s_nop 1")
    a("s_and_b64 s[68:69], s[68:69], vcc")
    a("s_cmp_eq_u64 s[68:69], -1")
    a("s_cbranch_scc0 L_fallback")
    a.label("L_fin")
    a(f"v_rcp_f32 v14, v{O[0]+8}")
    a("v_and_b32 v12, 3, v0")
    for i in range(8): a(f"v_mul_f32 v{O[0]+i}, v14, v{O[0]+i}")
    for i in range(4): a(f"v_cvt_pk_bf16_f32 v{S[0]+i}, v{O[0]+2*i}, v{O[0]+2*i+1}")
    a(f"buffer_store_dwordx4 {vr(S[0],4)}, v{vL16}, {WS}, s58 offen sc1")
    a(f"s_lshl_b32 s53, {sTT}, 15")
    a(f"s_lshl_b32 s54, {sRB}, 8")
    a("s_add_u32 s53, s53, s54")
    a("s_lshl_b32 s54, s56, 3")
    a("s_add_u32 s53, s53, s54")
    a(f"s_add_u32 s53, s53, {hex(IO_OFF)}")
    a("v_lshlrev_b32 v10, 13, v12")
    a(f"v_mov_b32 v{vPD}, s46"); a(f"v_mov_b32 v{vPD+1}, s47")
    a(f"v_lshlrev_b32 v{vPOLL}, 3, v12")
    a(f"s_lshl_b32 s54, {sWAVE}, 5")
    a("s_add_u32 s63, s59, s54")
    a(f"s_add_u32 s63, s63, {hex(IO_OFF)}")
    vBO, vA0, vA1, vSTO = 16, 17, 18, 19
    WF = 176
    a("v_lshrrev_b32 v12, 5, v0")
    a("v_bfe_u32 v13, v0, 2, 3")
    a("v_lshl_add_u32 v12, v12, 4, v13")
    a("v_lshlrev_b32 v12, 8, v12")
    a(f"v_xor_b32 v13, {sWAVE}, v13")
    a("v_lshl_add_u32 v12, v13, 5, v12")
    a("v_and_b32 v13, 3, v0")
    a(f"v_lshl_add_u32 v{vA0}, v13, 3, v12")
    a(f"v_add_u32 v{vA1}, 65536, v{vA0}")
    def rdWo(s):
        b = vA0 if s < 8 else vA1; o = (s % 8) * 8192
        a(f"ds_read_b64_tr_b16 {vr(WF+4*s,2)}, v{b} offset:{o}")
        a(f"ds_read_b64_tr_b16 {vr(WF+4*s+2,2)}, v{b} offset:{o+2048}")
    for s in range(7): rdWo(s)
    a("s_waitcnt vmcnt(0)")
    a("s_mov_b64 exec, 15")
    a(f"buffer_store_dwordx2 {vr(vPD,2)}, v10, {WS}, s53 offen sc1")
    a("s_mov_b64 exec, -1")
    stamp(a, 8)
    a("s_waitcnt lgkmcnt(0)")
    for s in range(7, 14): rdWo(s)
    a("v_and_b32 v10, 15, v0")
    a("v_lshrrev_b32 v11, 4, v0")
    a("v_lshlrev_b32 v12, 9, v11")
    a("v_lshl_add_u32 v12, v10, 4, v12")
    a(f"v_add_u32 v{vBO}, {R3}, v12")
    a("v_and_b32 v12, 31, v0")
    a("v_lshlrev_b32 v12, 10, v12")
    a("v_lshrrev_b32 v13, 5, v0")
    a(f"v_lshl_add_u32 v{vSTO}, v13, 4, v12")
    ACC = 24
    for i in range(8): a(f"v_mov_b32 v{ACC+i}, 0")
    a("s_lshl_b32 s54, s60, 15")
    a(f"s_lshl_b32 s55, {sWAVE}, 12")
    a("s_add_u32 s54, s54, s55")
    a(f"s_add_u32 s64, s54, {hex(O_OFF)}")
    a(f"s_mov_b32 m0, {sSLOT}")
    a("s_waitcnt lgkmcnt(4)")
    for s in range(14, 16): rdWo(s)
    a(f"s_mov_b32 s53, {SPIN_MAX}")
    a.label("L_ospin")
    a(f"buffer_load_dwordx2 {vr(vT,2)}, v{vPOLL}, {WS}, s63 offen sc1")
    a("s_waitcnt vmcnt(0)")
    a(f"v_cmp_eq_u64 vcc, {NONCE}, {vr(vT,2)}")
    a("s_sub_u32 s53, s53, 1")
    a("s_cbranch_scc1 L_ogo")
    a("s_cmp_eq_u64 vcc, -1")
    a("s_cbranch_scc0 L_ospin")
    a.label("L_ogo")
    stamp(a, 9)
    for i in range(4):
        a(f"buffer_load_dwordx4 v{vL16}, {WS}, s64 offen offset:{i*1024} sc1 lds")
    a("s_waitcnt vmcnt(0) lgkmcnt(0)")
    a("s_barrier")
    stamp(a, 10)
    G = [40, 48, 56, 64, 72, 80]
    def rd3(s):
        f = G[s % 6]
        a(f"ds_read_b128 {vr(f,4)}, v{vBO} offset:{s*2048}")
        a(f"ds_read_b128 {vr(f+4,4)}, v{vBO} offset:{s*2048+256}")
    for s in range(5): rd3(s)
    for s in range(16):
        if s + 5 < 16:
            rd3(s+5); a("s_waitcnt lgkmcnt(10)")
        else:
            a(f"s_waitcnt lgkmcnt({2*(15-s)})")
        f = G[s % 6]
        a(f"v_mfma_f32_16x16x32_bf16 {vr(ACC,4)}, {vr(WF+4*s,4)}, {vr(f,4)}, {vr(ACC,4)}")
        a(f"v_mfma_f32_16x16x32_bf16 {vr(ACC+4,4)}, {vr(WF+4*s,4)}, {vr(f+4,4)}, {vr(ACC+4,4)}")
    a("s_nop 7")
    for i in range(4): a(f"v_cvt_pk_bf16_f32 v{32+i}, v{ACC+2*i}, v{ACC+2*i+1}")
    a("s_nop 1")
    a("v_permlane16_swap_b32 v32, v34")
    a("v_permlane16_swap_b32 v33, v35")
    a(f"buffer_store_dwordx4 v[32:35], v{vSTO}, {OUT}, s62 offen")
    if OPT["stamp"]:
        stamp(a, 17)
        a("s_waitcnt vmcnt(0)")
        stamp(a, 11); stamp_out(a)
    a.label("L_end")
    a("s_endpgm")
    a.label("L_fallback")
    a("s_lshl_b32 s53, s56, 17")
    a("s_mov_b32 s54, 0")
    a("v_mov_b32 v14, 0xff800000")
    a.label("L_fb1")
    a(f"buffer_load_dwordx4 {vr(KV[0],4)}, v{vL16}, {WS}, s53 offen sc1")
    a("s_waitcnt vmcnt(0)")
    qk(0, 0)
    a("s_add_u32 s53, s53, 2048")
    a("s_add_u32 s54, s54, 1")
    a("s_nop 7"); a("s_nop 3")
    for i in range(8): a(f"v_max3_f32 v14, v{S[0]+2*i}, v{S[0]+2*i+1}, v14")
    a("s_cmp_lt_u32 s54, 64")
    a("s_cbranch_scc1 L_fb1")
    a("v_mov_b32 v15, v14")
    a("s_nop 1")
    a("v_permlane32_swap_b32 v14, v15")
    a("s_nop 1")
    a("v_max_f32 v14, v14, v15")
    for i in range(16): a(f"v_sub_f32 v{S[1]+i}, 0, v14")
    for i in range(16): a(f"v_mov_b32 v{O[0]+i}, 0")
    a("s_lshl_b32 s53, s56, 17")
    a("s_mov_b32 s54, 0")
    a.label("L_fb2")
    a(f"buffer_load_dwordx4 {vr(KV[0],4)}, v{vL16}, {WS}, s53 offen sc1")
    a(f"s_mov_b64 exec, {VMASK}")
    a(f"buffer_load_dwordx4 {vr(KV[0]+4,4)}, v{vVO}, {WS}, s53 offen sc1")
    a(f"buffer_load_dwordx4 {vr(KV[0]+8,4)}, v{vVO}, {WS}, s53 offen offset:512 sc1")
    a("s_mov_b64 exec, -1")
    a("s_waitcnt vmcnt(0)")
    a(f"v_mfma_f32_32x32x16_bf16 {vr(S[0],16)}, {vr(KV[0],4)}, {vr(QA,4)}, {vr(S[1],16)}")
    a("s_add_u32 s53, s53, 2048")
    a("s_add_u32 s54, s54, 1")
    a("s_nop 7"); a("s_nop 3")
    for i in range(16): ex(0, i)
    a("s_nop 1")
    pv0(0, 0); pv1(0, 0)
    a("s_cmp_lt_u32 s54, 64")
    a("s_cbranch_scc1 L_fb2")
    a("s_nop 7"); a("s_nop 7")
    a("s_branch L_fin")
    return f"""
.section .rodata,"a"
.p2align 6
.amdhsa_kernel {name}
  .amdhsa_next_free_vgpr 256
  .amdhsa_next_free_sgpr 100
  .amdhsa_accum_offset 256
  .amdhsa_group_segment_fixed_size 0
  .amdhsa_kernarg_size 48
  .amdhsa_user_sgpr_count 2
  .amdhsa_user_sgpr_kernarg_segment_ptr 1
  .amdhsa_system_sgpr_workgroup_id_x 1
.end_amdhsa_kernel
"""

def main(path):
    a = Asm()
    a.raw("; @launch grid=(256,1,1) block=(512,1,1) lds=163840")
    a.raw('.amdgcn_target "amdgcn-amd-amdhsa--gfx950"')
    a.raw(".text")
    d = gen(a)
    open(path, "w").write(a.text() + d)

if __name__ == "__main__":
    for kv in sys.argv[2:]:
        k, v = kv.split("="); assert k in OPT, k; OPT[k] = int(v)
    main(sys.argv[1])
```

```python
import math, struct, sys

def f2u(x): return struct.unpack("<I", struct.pack("<f", x))[0]
CSCALE = 0.25 * math.log2(math.e)
O_OFF = 4 << 20
IKV_OFF = 6 << 20
IO_OFF = (6 << 20) + (256 << 10)
WB = 65536
R3 = 131072
SPIN_MAX = 1 << 16

class Asm:
    def __init__(self): self.l = []
    def __call__(self, s): self.l.append("    " + s)
    def label(self, s): self.l.append(s + ":")
    def raw(self, s): self.l.append(s)
    def c(self, s): self.l.append("    ; " + s)
    def text(self): return "\n".join(self.l) + "\n"
def vr(a, n): return f"v[{a}:{a+n-1}]"

OPT = dict(nq1=3, fstep=5, early=1, opoll=0, ioff=1020, ost=0, word=0, kvs=32, os=128, kpre=0, opre=1, epos=0, osleep=0, dpos=1, look=3, stamp=0, xmap=2, sleep=1, rot=1, qpf=1, noncep=2, drop=6, spread=1, worot=1)

vST_RT, vST_CY = 252, 253
def stamp(a, i):
    if not OPT["stamp"]: return
    a("s_memrealtime s[80:81]")
    a("s_memtime s[82:83]")
    a("s_waitcnt lgkmcnt(0)")
    a(f"v_writelane_b32 v{vST_RT}, s80, {i}")
    a(f"v_writelane_b32 v{vST_CY}, s82, {i}")
def stamp_out(a):
    if not OPT["stamp"]: return
    a(f"s_add_u32 s76, s38, {hex(16<<20)}")
    a("s_addc_u32 s77, s39, 0")
    a("s_and_b32 s77, s77, 0xffff")
    a("s_mov_b32 s78, 0x100000")
    a("s_mov_b32 s79, 0x00020000")
    a("s_lshl_b32 s80, s2, 3")
    a("s_add_u32 s80, s80, s42")
    a("s_lshl_b32 s80, s80, 8")
    a("v_lshlrev_b32 v1, 2, v0")
    a("s_mov_b32 exec_hi, 0")
    a(f"buffer_store_dword v{vST_RT}, v1, s[76:79], s80 offen")
    a(f"buffer_store_dword v{vST_CY}, v1, s[76:79], s80 offen offset:128")

def srd(a, d, base, size):
    a(f"s_mov_b32 s{d}, s{base}")
    a(f"s_and_b32 s{d+1}, s{base+1}, 0xffff")
    a(f"s_mov_b32 s{d+2}, {hex(size)}")
    a(f"s_mov_b32 s{d+3}, 0x00020000")

X, W, WS, WO, OUT, DBG = "s[12:15]", "s[16:19]", "s[20:23]", "s[24:27]", "s[28:31]", "s[32:35]"
sQUAD, sRB, sWAVE, sHD, sTT = "s40", "s41", "s42", "s43", "s44"
sSLOT = "s45"
NONCE = "s[46:47]"
VMASK = "s[48:49]"
sKVOWN = "s50"
sKVH = "s51"
sW1K = "s52"
def sXT(p): return f"s{84+p}"
def sWT(p): return f"s{92+p}"
vL16, vIDX, vXD, vWD, vXR0, vXR1, vWR, vVO = 2, 3, 4, 5, 6, 7, 8, 9
AK, AV, AQ = 16, 24, 32
FW = [[40, 44, 48, 52], [32, 36, 104, 108]]
vWR4 = 254
ONES = "s[72:73]"
KV = [56, 68, 80, 92]
QA, QB = 104, 108
XF = 112
O = [112, 128]; S = [144, 160]
vWO = [240, 241]; vPOLL = 242; vPD = 244; vKPOS = 246; vKG = 247; vVG = 248; vWQ = 249; vT = 250

def gen(a):
    name = "standalone__mha_block__prompt_kernel"
    a.raw(f".globl {name}"); a.raw(".p2align 8"); a.raw(f".type {name},@function"); a.label(name)
    a("s_cmp_ge_u32 s2, 256")
    a("s_cbranch_scc1 L_end")
    a("s_load_dwordx4 s[4:7], s[0:1], 0")
    a("s_load_dwordx4 s[36:39], s[0:1], 32")
    a("s_load_dwordx4 s[8:11], s[0:1], 16")
    a(f"s_memrealtime {NONCE}")
    if OPT["stamp"]: a("s_memtime s[82:83]")
    a("v_lshrrev_b32 v1, 6, v0")
    a("v_and_b32 v0, 63, v0")
    a(f"v_readfirstlane_b32 {sWAVE}, v1")
    xm = OPT["xmap"]
    a("s_and_b32 s3, s2, 7")
    a("s_lshr_b32 s53, s2, 3")
    lg = {1: 0, 2: 1, 4: 2, 8: 3}[xm]
    a(f"s_and_b32 s54, s3, {8//xm - 1}")
    a(f"s_lshl_b32 s54, s54, {lg}")
    a(f"s_and_b32 s55, s53, {xm-1}")
    a(f"s_add_u32 {sQUAD}, s54, s55")
    a(f"s_lshr_b32 s54, s3, {3-lg}")
    a(f"s_lshl_b32 s54, s54, {5-lg}")
    a(f"s_lshr_b32 s55, s53, {lg}")
    a(f"s_add_u32 {sRB}, s54, s55")
    a(f"s_and_b32 {sHD}, {sWAVE}, 3")
    a(f"s_lshr_b32 {sTT}, {sWAVE}, 2")
    a(f"s_lshl_b32 {sW1K}, {sWAVE}, 10")
    a(f"v_lshlrev_b32 v{vL16}, 4, v0")
    a("v_lshrrev_b32 v10, 3, v0")
    a("v_and_b32 v11, 7, v0")
    a("v_lshrrev_b32 v12, 4, v0")
    a(f"s_and_b32 s53, {sWAVE}, 1")
    a("s_lshl_b32 s54, s53, 2")
    a("v_xor_b32 v13, v11, v12")
    a("v_xor_b32 v13, s54, v13")
    a(f"s_lshl_b32 s55, {sWAVE}, 3")
    a("v_add_u32 v10, s55, v10")
    a(f"s_lshl_b32 s55, {sRB}, 16")
    a("v_lshlrev_b32 v14, 10, v10")
    a("v_lshl_add_u32 v14, v13, 4, v14")
    a(f"v_add_u32 v{vXD}, s55, v14")
    a("v_and_b32 v12, 1, v12")
    a("v_lshlrev_b32 v12, 1, v12")
    a("v_xor_b32 v13, v11, v12")
    a("v_xor_b32 v13, s54, v13")
    a("v_mul_u32_u24 v14, 3072, v10")
    a("v_lshl_add_u32 v14, v13, 4, v14")
    a(f"s_lshl_b32 s55, {sQUAD}, 7")
    a(f"v_add_u32 v{vWD}, s55, v14")
    if OPT["rot"]:
        a(f"s_lshl_b32 s53, {sQUAD}, {3-lg}")
        a(f"s_add_u32 s53, s53, {sRB}")
    else:
        a("s_mov_b32 s53, 0")
    for p in range(8):
        a("s_and_b32 s53, s53, 7")
        a(f"s_lshl_b32 {sXT(p)}, s53, 7")
        a(f"s_mul_i32 {sWT(p)}, s53, 196608")
        if p < 7: a("s_add_u32 s53, s53, 1")
    a(f"v_and_b32 v12, {min(16*xm, 64) - 1}, v0")
    a(f"s_lshl_b32 s53, {sRB}, {4+lg}")
    a("s_and_b32 s53, s53, 511")
    a("v_add_u32 v12, s53, v12")
    a("v_mul_u32_u24 v15, 3072, v12")
    a("s_waitcnt lgkmcnt(0)")
    if OPT["stamp"]:
        a(f"v_writelane_b32 v{vST_RT}, s46, 0"); a(f"v_writelane_b32 v{vST_CY}, s82, 0")
    stamp(a, 12)
    srd(a, 12, 4, 2048*1024); srd(a, 16, 6, 512*3072)
    issued = []
    def dma_x(p):
        a(f"s_add_u32 m0, {sW1K}, {p*8192}")
        a("s_nop 0")
        a(f"buffer_load_dwordx4 v{vXD}, {X}, {sXT(p)} offen lds"); issued.append(("x", p))
    def dma_w(t, p, dest, tag):
        a(f"s_add_u32 m0, {sW1K}, {dest - t*1024}")
        a("s_nop 0")
        a(f"buffer_load_dwordx4 v{vWD}, {W}, {sWT(p)} offen offset:{t*1024} lds"); issued.append(tag)
    def dma_kv(p):
        dma_w(1, p, WB + (p%5)*16384, ("kv", p)); dma_w(2, p, WB + (p%5)*16384 + 8192, ("kv", p))
    QDEST = [0, 8192, 16384, 24576, 32768, WB + 3*16384, WB + 3*16384 + 8192, 40960]
    if OPT["word"]:
        a(f"s_bitcmp1_b32 {sWAVE}, 0")
        a("s_cbranch_scc1 L_wfirst")
        dma_x(0); dma_kv(0)
        a("s_branch L_wdone")
        a.label("L_wfirst")
        del issued[:]
        dma_kv(0); dma_x(0)
        a.label("L_wdone")
    else:
        dma_x(0); dma_kv(0)
    srd(a, 32, 36, 256)
    a("s_or_b32 s46, s46, 1")
    a(f"s_or_b32 s53, s2, {sWAVE}")
    a("s_cmp_lg_u32 s53, 0")
    a("s_cbranch_scc1 L_nonon")
    a("v_mov_b32 v10, s46"); a("v_mov_b32 v11, s47")
    a("s_mov_b64 exec, 1")
    a(f"buffer_store_dwordx2 v[10:11], off, {DBG}, 0 sc1")
    a("s_mov_b64 exec, -1")
    a.label("L_nonon")
    if OPT["qpf"]:
        a(f"s_cmp_lg_u32 {sWAVE}, 7")
        a("s_cbranch_scc1 L_noqpf")
        a(f"buffer_load_dword v{vT}, v15, {W}, s55 offen")
        if xm == 8:
            a("s_add_u32 s53, s55, 196608")
            a(f"buffer_load_dword v{vT}, v15, {W}, s53 offen")
        a.label("L_noqpf")
    LOOK = OPT["look"]
    for p in range(1, LOOK):
        dma_x(p); dma_kv(p)
    stamp(a, 13)
    srd(a, 20, 38, 8 << 20); srd(a, 24, 8, 512*1024); srd(a, 28, 10, 2048*1024)
    a(f"s_lshl_b32 {sSLOT}, {sWAVE}, 12")
    a(f"s_add_u32 {sSLOT}, {sSLOT}, {R3}")
    a(f"s_lshl_b32 s53, {sQUAD}, 2")
    a(f"s_add_u32 s56, s53, {sHD}")
    a("s_lshl_b32 s53, s56, 17")
    a(f"s_lshl_b32 s54, {sTT}, 11")
    a(f"s_add_u32 {sKVH}, s53, s54")
    a(f"s_lshl_b32 s54, {sRB}, 12")
    a(f"s_add_u32 {sKVOWN}, {sKVH}, s54")
    a(f"s_lshl_b32 s53, {sRB}, 1")
    a(f"s_add_u32 s57, s53, {sTT}")
    a("s_lshl_b32 s53, s57, 15")
    a("s_lshl_b32 s54, s56, 10")
    a("s_add_u32 s58, s53, s54")
    a(f"s_add_u32 s58, s58, {hex(O_OFF)}")
    a(f"s_mul_i32 s63, {sQUAD}, {32*OPT['kvs']}")
    a(f"s_add_u32 s63, s63, {hex(IKV_OFF)}")
    a("v_and_b32 v12, 31, v0")
    a(f"v_mul_u32_u24 v{vPOLL}, {OPT['kvs']}, v12")
    a(f"s_lshr_b32 s53, {sQUAD}, 2")
    a(f"s_lshl_b32 s54, {sRB}, 1")
    a("s_add_u32 s60, s53, s54")
    a(f"s_and_b32 s61, {sQUAD}, 3")
    a("s_lshl_b32 s61, s61, 8")
    a("s_lshl_b32 s53, s60, 15")
    a("s_add_u32 s62, s53, s61")
    a(f"s_lshl_b32 s53, {sWAVE}, 5")
    a("s_add_u32 s62, s62, s53")
    a("v_and_b32 v10, 15, v0")
    a("v_lshrrev_b32 v11, 4, v0")
    a("v_bfe_u32 v12, v0, 1, 3")
    a("v_xor_b32 v12, v11, v12")
    a(f"s_lshl_b32 s53, {sTT}, 12")
    a("v_lshlrev_b32 v13, 7, v10")
    a("v_add_u32 v13, s53, v13")
    a(f"v_lshl_add_u32 v{vXR0}, v12, 4, v13")
    a(f"v_xor_b32 v{vXR1}, 64, v{vXR0}")
    a("v_bfe_u32 v12, v0, 2, 2")
    a("v_lshl_add_u32 v13, v11, 3, v12")
    a("v_lshlrev_b32 v13, 7, v13")
    a("v_bfe_u32 v14, v0, 3, 2")
    a(f"v_xor_b32 v14, {sHD}, v14")
    a("v_lshl_add_u32 v13, v14, 5, v13")
    a("v_and_b32 v14, 3, v0")
    a(f"v_lshl_add_u32 v{vWQ}, v14, 3, v13")
    a(f"v_add_u32 v{vWR}, {WB}, v{vWQ}")
    a(f"v_add_u32 v{vWR4}, {R3}, v{vWQ}")
    a("v_lshrrev_b32 v12, 5, v0")
    a("v_lshlrev_b32 v12, 8, v12")
    a("v_lshl_add_u32 v12, v10, 4, v12")
    a(f"v_add_u32 v{vVO}, 1024, v12")
    a(f"v_add_u32 v{vKG}, {sKVH}, v{vL16}")
    a(f"v_add_u32 v{vVG}, {sKVH}, v{vVO}")
    a("v_and_b32 v12, 0x23, v0")
    a("v_bfe_u32 v13, v0, 2, 2")
    a("v_lshl_add_u32 v12, v13, 3, v12")
    a("v_bfe_u32 v13, v0, 4, 1")
    a("v_lshl_add_u32 v12, v13, 2, v12")
    a(f"v_lshlrev_b32 v{vKPOS}, 4, v12")
    a("v_lshrrev_b32 v12, 5, v0")
    a("v_lshlrev_b32 v12, 1, v12")
    a(f"s_lshl_b32 s53, {sWAVE}, 2")
    a("v_add_u32 v12, s53, v12")
    for e in range(2):
        if e: a("v_add_u32 v12, 1, v12")
        a("v_and_b32 v13, 7, v12")
        a("v_lshlrev_b32 v13, 1, v13")
        a("v_xor_b32 v13, v10, v13")
        a("v_lshlrev_b32 v14, 10, v12")
        a("v_lshl_add_u32 v14, v13, 4, v14")
        a(f"v_add_u32 v{vWO[e]}, s61, v14")
    a(f"v_mov_b32 v{vIDX}, 0xdddddddd")
    a("s_mov_b32 s48, 0xffff"); a("s_mov_b32 s49, 0xffff")
    a("v_and_b32 v12, 27, v0")
    a("v_cmp_eq_u32 vcc, 16, v12")
    a("v_mov_b32 v15, 0x3f803f80")
    a("s_nop 0")
    for j in range(4):
        for i in range(8): a(f"v_cndmask_b32 v{KV[j]+4+i}, 0, v15, vcc")
    stamp(a, 1)

    def waitvm(pred):
        last = max(i for i, t in enumerate(issued) if pred(t))
        a(f"s_waitcnt vmcnt({len(issued) - 1 - last})")
    def xf(p, s): return XF + 8*(2*p + s)
    def rd_w(base, off, r):
        a(f"ds_read_b64_tr_b16 {vr(r,2)}, v{base} offset:{off}")
        a(f"ds_read_b64_tr_b16 {vr(r+2,2)}, v{base} offset:{off + 512}")
    def readsA(p):
        fw = FW[p % 2]
        for s in range(2):
            b = vXR0 if s == 0 else vXR1; f = xf(p, s)
            a(f"ds_read_b128 {vr(f,4)}, v{b} offset:{p*8192}")
            a(f"ds_read_b128 {vr(f+4,4)}, v{b} offset:{p*8192+2048}")
            wb, wo = (vWR, (p%5)*16384) if p % 5 < 4 else (vWR4, 0)
            rd_w(wb, wo + s*4096, fw[2*s]); rd_w(wb, wo + 8192 + s*4096, fw[2*s+1])
    def mfmaA(p, s):
        f = xf(p, s); wk, wv = FW[p % 2][2*s], FW[p % 2][2*s+1]
        def c(r): return "0" if p == 0 and s == 0 else vr(r, 4)
        a(f"v_mfma_f32_16x16x32_bf16 {vr(AK,4)}, {vr(wk,4)}, {vr(f,4)}, {c(AK)}")
        a(f"v_mfma_f32_16x16x32_bf16 {vr(AK+4,4)}, {vr(wk,4)}, {vr(f+4,4)}, {c(AK+4)}")
        a(f"v_mfma_f32_16x16x32_bf16 {vr(AV,4)}, {vr(f,4)}, {vr(wv,4)}, {c(AV)}")
        a(f"v_mfma_f32_16x16x32_bf16 {vr(AV+4,4)}, {vr(f+4,4)}, {vr(wv,4)}, {c(AV+4)}")
    QSCHED = {5: [0, 1, 2], 6: [3, 4, 5], 7: [6, 7]}
    for p in range(8):
        waitvm(lambda t: t[1] == p and t[0] in ("x", "kv"))
        a("s_barrier")
        if p == 0: stamp(a, 2)
        if p >= 1: a("s_waitcnt lgkmcnt(0)")
        def grab(fn):
            n0 = len(a.l); fn(); out = a.l[n0:]; del a.l[n0:]; return out
        rd = grab(lambda: readsA(p))
        mf = grab(lambda: (mfmaA(p-1, 0), mfmaA(p-1, 1))) if p >= 1 else []
        dm = []
        if p + LOOK < 8:
            dm.append(grab(lambda: dma_x(p + LOOK)))
            kvl = grab(lambda: dma_kv(p + LOOK)); dm += [kvl[:3], kvl[3:]]
        for j in QSCHED.get(p, []): dm.append(grab(lambda: dma_w(0, j, QDEST[j], ("q", j))))
        dpos = OPT["dpos"]
        k = 0
        for i in range(12):
            if dpos == 0 and i % 4 == 0 and i // 4 < len(dm): a.l += dm[i // 4]
            a.l.append(rd[i])
            while k < len(mf) and k < (i + 1) * 8 // 12:
                a.l.append(mf[k]); k += 1
            if dpos == 1 and i % 4 == 3 and i // 4 < len(dm): a.l += dm[i // 4]
        if dpos == 2:
            for d in dm: a.l += d
        if p == OPT["noncep"]:
            a(f"s_cmp_lg_u32 {sWAVE}, 0")
            a("s_cbranch_scc1 L_nf1")
            a(f"buffer_load_dwordx2 {vr(vPD,2)}, off, {DBG}, 0 sc1")
            if OPT["kpre"]: a(f"buffer_load_dwordx2 {vr(vT,2)}, v{vPOLL}, {WS}, s63 offen sc1")
            a.label("L_nf1")
    a("s_waitcnt lgkmcnt(6)")
    mfmaA(7, 0)
    a("s_waitcnt lgkmcnt(0)")
    mfmaA(7, 1)
    stamp(a, 3)
    F = 40
    a(f"v_add_u32 v10, {sSLOT}, v{vKPOS}")
    a(f"v_add_u32 v11, {sSLOT}, v{vL16}")
    a(f"v_add_u32 v12, {sSLOT}, v{vVO}")
    a("s_nop 4")
    for i in range(4): a(f"v_cvt_pk_bf16_f32 v{F+i}, v{AK+2*i}, v{AK+2*i+1}")
    for i in range(4): a(f"v_cvt_pk_bf16_f32 v{F+4+i}, v{AV+2*i}, v{AV+2*i+1}")
    a(f"v_permlane16_swap_b32 v{F}, v{F+2}")
    a(f"v_permlane16_swap_b32 v{F+1}, v{F+3}")
    a(f"buffer_store_dwordx4 {vr(F+4,4)}, v{vL16}, {WS}, {sKVOWN} offen offset:1024 sc1")
    a(f"buffer_store_dwordx4 {vr(F,4)}, v{vKPOS}, {WS}, {sKVOWN} offen sc1")
    a(f"ds_write_b128 v11, {vr(F+4,4)} offset:1024")
    a(f"ds_write_b128 v10, {vr(F,4)}")
    a("s_waitcnt lgkmcnt(0)")
    a(f"ds_read_b128 {vr(KV[0],4)}, v11")
    a(f"s_mov_b64 exec, {VMASK}")
    a(f"ds_read_b128 {vr(KV[0]+4,4)}, v12")
    a(f"ds_read_b128 {vr(KV[0]+8,4)}, v12 offset:512")
    a("s_mov_b64 exec, -1")
    NQ1 = OPT["nq1"]
    a(f"s_waitcnt vmcnt({2 + 8 - NQ1})")
    a(f"s_cmp_lg_u32 {sWAVE}, 0")
    a("s_cbranch_scc1 L_nf2")
    a(f"s_mov_b32 s53, {SPIN_MAX}")
    a.label("L_nspin")
    a(f"v_readfirstlane_b32 s54, v{vPD}")
    a("s_sub_u32 s53, s53, 1")
    a("s_cbranch_scc1 L_ngot")
    a("s_cmp_lg_u32 s54, 0")
    a("s_cbranch_scc1 L_ngot")
    a("s_sleep 2")
    a(f"buffer_load_dwordx2 {vr(vPD,2)}, off, {DBG}, 0 sc1")
    a("s_waitcnt vmcnt(0)")
    a("s_branch L_nspin")
    a.label("L_ngot")
    a(f"v_mov_b32 v10, {R3 + 2816}")
    a(f"ds_write_b64 v10, {vr(vPD,2)}")
    a.label("L_nf2")
    a("s_waitcnt lgkmcnt(0)")
    a("s_barrier")
    stamp(a, 14)
    a(f"v_mov_b32 v10, {R3 + 2816}")
    a(f"ds_read_b64 {vr(vPD,2)}, v10")
    BS = [48, 52, 16, 20, 24, 28, 40, 44]
    lg_q = ["n"]
    def readsB(st):
        p, s = divmod(st, 2)
        d = QDEST[p]
        if d < WB: rd_w(vWQ, d + s*4096, BS[st % 8])
        else: rd_w(vWR, d - WB + s*4096, BS[st % 8])
        lg_q.extend([st, st])
    def waitB(st):
        last = max(i for i, t in enumerate(lg_q) if t == st)
        a(f"s_waitcnt lgkmcnt({len(lg_q) - 1 - last})")
        del lg_q[:last + 1]
    FS = OPT["fstep"]; lim = 2 * NQ1; nxt = 0
    assert FS <= lim
    def top_up(st, limit):
        nonlocal nxt
        while nxt < min(limit, st + 6):
            readsB(nxt); nxt += 1
    a(f"s_mul_i32 s54, {sRB}, {OPT['kvs']}")
    a("s_add_u32 s53, s63, s54")
    for st in range(16):
        if st == FS:
            a("s_waitcnt vmcnt(0)")
            stamp(a, 18)
            a("s_barrier")
            a(f"s_cmp_lg_u32 {sWAVE}, 0")
            a("s_cbranch_scc1 L_nflag")
            a("s_mov_b64 exec, 1")
            a(f"buffer_store_dwordx2 {vr(vPD,2)}, off, {WS}, s53 sc1")
            a("s_mov_b64 exec, -1")
            a.label("L_nflag")
            if OPT["stamp"]: del lg_q[:]
        top_up(st, lim if st < FS else 16)
        if st in lg_q: waitB(st)
        if st == 0:
            a(f"v_readfirstlane_b32 s46, v{vPD}")
            a(f"v_readfirstlane_b32 s47, v{vPD+1}")
        f = XF + 8*st; w = BS[st % 8]
        c0, c1 = ("0", "0") if st == 0 else (vr(AQ,4), vr(AQ+4,4))
        a(f"v_mfma_f32_16x16x32_bf16 {vr(AQ,4)}, {vr(w,4)}, {vr(f,4)}, {c0}")
        a(f"v_mfma_f32_16x16x32_bf16 {vr(AQ+4,4)}, {vr(w,4)}, {vr(f+4,4)}, {c1}")
        if st == 2:
            for i in range(4): a(f"v_mov_b32 v{12+i}, 0")
        if st == 3:
            a(f"v_mfma_f32_32x32x16_bf16 {vr(O[0],16)}, v[12:15], v[12:15], 0")
            a(f"v_mfma_f32_32x32x16_bf16 {vr(O[1],16)}, v[12:15], v[12:15], 0")
        if st == FS and OPT["opoll"]:
            for i in range(4): a(f"v_mov_b32 v{12+i}, -1")
            a(f"buffer_store_dwordx4 v[12:15], v{vL16}, {WS}, s58 offen sc1")
    a(f"s_mov_b32 s53, {hex(f2u(CSCALE))}")
    a(f"s_xor_b32 s54, {sSLOT}, 16384")
    a(f"v_add_u32 v10, s54, v{vL16}")
    a("s_nop 2")
    a(f"s_lshl_b32 s64, {sRB}, 12")
    a(f"s_add_u32 s68, {sW1K}, 256")
    for i in range(8): a(f"v_mul_f32 v{AQ+i}, s53, v{AQ+i}")
    for i in range(4): a(f"v_cvt_pk_bf16_f32 v{QA+i}, v{AQ+2*i}, v{AQ+2*i+1}")
    if OPT["worot"]:
        a(f"s_lshl_b32 s65, {sRB}, 13"); a("s_and_b32 s65, s65, 0x1ffff")
    else:
        a("s_mov_b32 s65, 0"); a("s_nop 0")
    a(f"v_permlane16_swap_b32 v{QA}, v{QA+2}")
    a(f"v_permlane16_swap_b32 v{QA+1}, v{QA+3}")
    a(f"ds_write_b128 v10, {vr(QA,4)} offset:3072")
    def qk(j, q): a(f"v_mfma_f32_32x32x16_bf16 {vr(S[q],16)}, {vr(KV[j],4)}, {vr(QA if q == 0 else QB,4)}, 0")
    def pv0(j, q): a(f"v_smfmac_f32_32x32x32_bf16 {vr(O[q],16)}, {vr(KV[j]+4,4)}, {vr(S[q],8)}, v{vIDX}")
    def pv1(j, q): a(f"v_smfmac_f32_32x32x32_bf16 {vr(O[q],16)}, {vr(KV[j]+8,4)}, {vr(S[q]+8,8)}, v{vIDX}")
    def ex(q, i): a(f"v_exp_f32 v{S[q]+i}, v{S[q]+i}")
    a("s_lshl_b32 s66, s65, 2")
    qk(0, 0)
    def poll_kv(): a(f"buffer_load_dwordx2 {vr(vT,2)}, v{vPOLL}, {WS}, s63 offen sc1")
    a(f"s_mul_i32 s53, s57, {32*OPT['os']}")
    a(f"s_mul_i32 s54, s56, {OPT['os']}")
    a("s_add_u32 s53, s53, s54")
    a(f"s_add_u32 s74, s53, {hex(IO_OFF)}")
    a("s_nop 1")
    stamp(a, 16)
    a("s_waitcnt lgkmcnt(0)")
    a("s_barrier")
    a(f"ds_read_b128 {vr(QB,4)}, v11 offset:3072")
    if OPT["early"] and OPT["epos"] == 0: poll_kv()
    stamp(a, 5)
    a("s_nop 1")
    a("s_mov_b32 s67, 8")
    a(f"s_mov_b32 s53, {SPIN_MAX}")
    ex(0, 0); ex(0, 1); ex(0, 2); ex(0, 3)
    a("s_waitcnt lgkmcnt(0)")
    qk(0, 1)
    if OPT["early"] and OPT["epos"] == 1: poll_kv()
    for i in range(4, 11): ex(0, i)
    pv0(0, 0)
    if OPT["early"] and OPT["epos"] == 2: poll_kv()
    for i in range(11, 16): ex(0, i)
    def unit01():
        ex(1, 0); ex(1, 1)
        pv1(0, 0)
        for i in range(2, 11): ex(1, i)
        pv0(0, 1)
        for i in range(11, 16): ex(1, i)
    def ld_parts(j, e):
        p0 = ["s_add_u32 s64, s64, 4096", "s_and_b32 s64, s64, 0x1ffff",
              f"buffer_load_dwordx4 {vr(KV[j],4)}, v{vKG}, {WS}, s64 offen sc1"]
        p1 = [f"s_mov_b64 exec, {VMASK}", f"buffer_load_dwordx4 {vr(KV[j]+4,4)}, v{vVG}, {WS}, s64 offen sc1"]
        if e is not None: p1.append(f"s_add_u32 m0, s65, {sW1K if e == 0 else 's68'}")
        p1.append(f"buffer_load_dwordx4 {vr(KV[j]+8,4)}, v{vVG}, {WS}, s64 offen offset:512 sc1")
        if e is not None: p1.append(f"buffer_load_dwordx4 v{vWO[e]}, {WO}, s66 offen lds")
        p1.append("s_mov_b64 exec, -1")
        p2 = ["s_add_u32 s65, s65, 8192", "s_and_b32 s65, s65, 0x1ffff", "s_lshl_b32 s66, s65, 2"] if e == 1 else []
        return [p0, p1, p2]
    def emit(parts):
        for p in parts:
            for x in p: a(x)
    def first_loads():
        emit(ld_parts(1, None)); emit(ld_parts(2, None))
        if not OPT["opoll"]:
            a(f"buffer_load_dword v{vT}, off, {WO}, s61")
        emit(ld_parts(3, 0))
    if OPT["early"]:
        a("s_waitcnt vmcnt(0)")
        a(f"v_cmp_eq_u64 vcc, {NONCE}, {vr(vT,2)}")
        a("s_nop 1")
        a("s_cmp_eq_u64 vcc, -1")
        a("s_cbranch_scc0 L_late")
        first_loads()
        unit01()
        a("s_branch L_go")
        a.label("L_late")
    poll_kv()
    unit01()
    a.label("L_kvspin")
    a("s_waitcnt vmcnt(0)")
    a(f"v_cmp_eq_u64 vcc, {NONCE}, {vr(vT,2)}")
    a("s_sub_u32 s53, s53, 1")
    a("s_cbranch_scc1 L_kvgo")
    a("s_cmp_eq_u64 vcc, -1")
    a("s_cbranch_scc1 L_kvgo")
    if OPT["sleep"]: a(f"s_sleep {OPT['sleep']}")
    poll_kv()
    a("s_branch L_kvspin")
    a.label("L_kvgo")
    first_loads()
    a.label("L_go")
    stamp(a, 6)
    a("v_and_b32 v13, 3, v0")
    a(f"v_mul_u32_u24 v{vPOLL}, {OPT['os']}, v13")
    a(f"s_mul_i32 s63, s60, {32*OPT['os']}")
    a(f"s_mul_i32 s54, {sWAVE}, {4*OPT['os']}")
    a("s_add_u32 s63, s63, s54")
    a(f"s_add_u32 s63, s63, {hex(IO_OFF)}")
    if OPT["drop"]:
        a(f"s_cmp_lg_u32 {sTT}, 1")
        a("s_cbranch_scc1 L_noprio")
        a("s_setprio 1")
        a.label("L_noprio")
    if OPT["opoll"]:
        a("s_waitcnt vmcnt(7)")
        qk(1, 0)
        a("s_mov_b64 exec, 15")
        a(f"buffer_store_dwordx2 {vr(vPD,2)}, v12, {WS}, s74 offen sc1")
        a("s_mov_b64 exec, -1")
        a("s_nop 7")
    else:
        a("s_waitcnt vmcnt(8)")
        qk(1, 0)
        a("s_nop 7")
        a("s_nop 2")
    stamp(a, 19)
    a("s_branch L_loop1")
    a.raw(".p2align 6")
    a.label("L_loop")
    P = (2, 5, 11)
    for u in range(4):
        if u == 1: a.label("L_loop1")
        pj = (u - 1) % 4; nj = (u + 1) % 4
        parts = ld_parts(pj, u % 2)
        for i in range(16):
            if i == P[0]:
                pv1(pj, 1)
                if not OPT["spread"]: emit(parts)
            if OPT["spread"] and i in (3, 7, 13): emit([parts[(3, 7, 13).index(i)]])
            if i == P[1]: qk(u, 1)
            if i == P[2]: pv0(u, 0)
            ex(0, i)
        for i in range(16):
            if i == P[0]: pv1(u, 0)
            if i == P[1]:
                a("s_waitcnt vmcnt(9)"); qk(nj, 0)
            if i == P[2]: pv0(u, 1)
            ex(1, i)
    if OPT["drop"]:
        a(f"s_cmp_lg_u32 s67, {9 - OPT['drop']}")
        a("s_cbranch_scc1 L_nodrop")
        a("s_setprio 0")
        if OPT["opre"]: a(f"buffer_load_dwordx2 {vr(vT,2)}, v{vPOLL}, {WS}, s63 offen sc1")
        a.label("L_nodrop")
    a("s_sub_u32 s67, s67, 1")
    a("s_cmp_lg_u32 s67, 0")
    a("s_cbranch_scc1 L_loop")
    pv1(3, 1)
    stamp(a, 7)
    a(f"s_xor_b32 s54, {sSLOT}, 16384")
    a(f"v_lshlrev_b32 v15, 7, v{vPOLL}")
    a("s_nop 1")
    a(f"v_add_u32 v10, s54, v{vL16}")
    a("v_lshlrev_b32 v14, 2, v0")
    a("v_add_u32 v13, s54, v14")
    a(f"v_add_u32 v14, {sSLOT}, v14")
    a("s_lshl_b32 s54, s60, 15")
    a(f"s_lshl_b32 s55, {sWAVE}, 12")
    a("s_add_u32 s54, s54, s55")
    a(f"s_add_u32 s64, s54, {hex(O_OFF)}")
    a(f"ds_write_b128 v10, {vr(O[1],4)}")
    a(f"ds_write_b128 v10, {vr(O[1]+4,4)} offset:1024")
    a(f"ds_write_b32 v13, v{O[1]+8} offset:2048")
    a("s_waitcnt vmcnt(0) lgkmcnt(0)")
    OP = 56
    def poll_o():
        for i in range(4): a(f"buffer_load_dwordx4 {vr(OP+4*i,4)}, v{vL16}, {WS}, s64 offen offset:{i*1024} sc1")
    if OPT["opoll"]:
        a(f"s_mov_b32 s53, {SPIN_MAX}")
        a.label("L_pspin")
        a(f"v_cmp_eq_u64 vcc, {NONCE}, {vr(vT,2)}")
        a("s_sub_u32 s53, s53, 1")
        a("s_cbranch_scc1 L_pgo")
        a("s_cmp_eq_u64 vcc, -1")
        a("s_cbranch_scc1 L_pgo")
        a(f"buffer_load_dwordx2 {vr(vT,2)}, v{vPOLL}, {WS}, s63 offen sc1")
        a("s_waitcnt vmcnt(0)")
        a("s_branch L_pspin")
        a.label("L_pgo")
    a("s_barrier")
    stamp(a, 15)
    a(f"ds_read_b128 {vr(S[0],4)}, v11")
    a(f"ds_read_b128 {vr(S[0]+4,4)}, v11 offset:1024")
    a(f"ds_read_b32 v{S[0]+8}, v14 offset:2048")
    a(f"v_mov_b32 v13, {hex(f2u(2.0**-20))}")
    a(f"v_mov_b32 v1, {hex(f2u(2.0**60))}")
    a("s_waitcnt lgkmcnt(0)")
    for i in range(9): a(f"v_add_f32 v{O[0]+i}, v{O[0]+i}, v{S[0]+i}")
    a(f"v_cmp_ge_f32 s[68:69], v{O[0]+8}, v13")
    a(f"v_cmp_le_f32 s[70:71], v{O[0]+8}, v1")
    a(f"v_mul_f32 v14, 0, v{O[0]}")
    for i in range(1, 8): a(f"v_fma_f32 v14, v{O[0]+i}, 0, v14")
    a("v_cmp_o_f32 vcc, v14, v14")
    a("s_and_b64 s[68:69], s[68:69], s[70:71]")
    a("s_nop 1")
    a("s_and_b64 s[68:69], s[68:69], vcc")
    a("s_cmp_eq_u64 s[68:69], -1")
    a("s_cbranch_scc0 L_fallback")
    a.label("L_fin")
    a(f"v_rcp_f32 v14, v{O[0]+8}")
    a("s_nop 0")
    for i in range(8): a(f"v_mul_f32 v{O[0]+i}, v14, v{O[0]+i}")
    for i in range(4): a(f"v_cvt_pk_bf16_f32 v{S[0]+i}, v{O[0]+2*i}, v{O[0]+2*i+1}")
    if OPT["opoll"]:
        for i in range(4): a(f"v_min_u32 v{S[0]+i}, -2, v{S[0]+i}")
    a(f"buffer_store_dwordx4 {vr(S[0],4)}, v{vL16}, {WS}, s58 offen sc1")
    def poll_i(): a(f"buffer_load_dword v{vT}, v15, {WS}, s64 offen offset:{OPT['ioff']} sc1")
    if OPT["opoll"] == 1: poll_o()
    if OPT["opoll"] == 2: poll_i()
    a("v_mov_b32 v10, v12")
    vBO, vA0, vA1, vSTO = 16, 17, 18, 19
    WF = 176
    a("v_lshrrev_b32 v12, 5, v0")
    a("v_bfe_u32 v13, v0, 2, 3")
    a("v_lshl_add_u32 v12, v12, 4, v13")
    a("v_lshlrev_b32 v12, 8, v12")
    a(f"v_xor_b32 v13, {sWAVE}, v13")
    a("v_lshl_add_u32 v12, v13, 5, v12")
    a("v_and_b32 v13, 3, v0")
    a(f"v_lshl_add_u32 v{vA0}, v13, 3, v12")
    a(f"v_add_u32 v{vA1}, 65536, v{vA0}")
    def rdWo(s):
        b = vA0 if s < 8 else vA1; o = (s % 8) * 8192
        a(f"ds_read_b64_tr_b16 {vr(WF+4*s,2)}, v{b} offset:{o}")
        a(f"ds_read_b64_tr_b16 {vr(WF+4*s+2,2)}, v{b} offset:{o+2048}")
    for s in range(7): rdWo(s)
    if not OPT["opoll"]:
        a("s_waitcnt vmcnt(0)")
        a("s_mov_b64 exec, 1")
        a(f"buffer_store_dwordx2 {vr(vPD,2)}, off, {WS}, s74 sc1")
        a("s_mov_b64 exec, -1")
    stamp(a, 8)
    a("s_waitcnt lgkmcnt(0)")
    for s in range(7, 14): rdWo(s)
    a("v_and_b32 v10, 15, v0")
    a("v_lshrrev_b32 v11, 4, v0")
    a("v_lshlrev_b32 v12, 9, v11")
    a("v_lshl_add_u32 v12, v10, 4, v12")
    a(f"v_add_u32 v{vBO}, {R3}, v12")
    a("v_and_b32 v12, 31, v0")
    a("v_lshlrev_b32 v12, 10, v12")
    a("v_lshrrev_b32 v13, 5, v0")
    a(f"v_lshl_add_u32 v{vSTO}, v13, 4, v12")
    ACC = 24
    for i in range(8): a(f"v_mov_b32 v{ACC+i}, 0")
    a(f"s_mov_b32 m0, {sSLOT}")
    a(f"v_add_u32 v11, {sSLOT}, v{vL16}")
    a("s_waitcnt lgkmcnt(4)")
    for s in range(14, 16): rdWo(s)
    a(f"s_mov_b32 s53, {SPIN_MAX}")
    if OPT["opoll"] == 2:
        a.label("L_ispin")
        a("s_waitcnt vmcnt(0)")
        a(f"v_cmp_eq_u32 vcc, -1, v{vT}")
        a("s_sub_u32 s53, s53, 1")
        a("s_cbranch_scc1 L_igo")
        a("s_cmp_eq_u64 vcc, 0")
        a("s_cbranch_scc1 L_igo")
        poll_i()
        a("s_branch L_ispin")
        a.label("L_igo")
        stamp(a, 20)
        poll_o()
        a(f"s_mov_b32 s53, {SPIN_MAX}")
    if OPT["opoll"]:
        a.label("L_ospin")
        a("s_waitcnt vmcnt(0)")
        a(f"v_max3_u32 v10, v{OP}, v{OP+1}, v{OP+2}")
        for i in range(3, 15, 2): a(f"v_max3_u32 v10, v{OP+i}, v{OP+i+1}, v10")
        a(f"v_max_u32 v10, v{OP+15}, v10")
        a("v_cmp_eq_u32 vcc, -1, v10")
        a("s_sub_u32 s53, s53, 1")
        a("s_cbranch_scc1 L_ogo")
        a("s_cmp_eq_u64 vcc, 0")
        a("s_cbranch_scc1 L_ogo")
        poll_o()
        a("s_branch L_ospin")
        a.label("L_ogo")
        stamp(a, 9)
        for i in range(4): a(f"ds_write_b128 v11, {vr(OP+4*i,4)} offset:{i*1024}")
        a("s_waitcnt lgkmcnt(0)")
    else:
        a.label("L_ospin")
        a(f"buffer_load_dwordx2 {vr(vT,2)}, v{vPOLL}, {WS}, s63 offen sc1")
        a("s_waitcnt vmcnt(0)")
        a(f"v_cmp_eq_u64 vcc, {NONCE}, {vr(vT,2)}")
        a("s_sub_u32 s53, s53, 1")
        a("s_cbranch_scc1 L_ogo")
        a("s_cmp_eq_u64 vcc, -1")
        a("s_cbranch_scc1 L_ogo")
        if OPT["osleep"]: a(f"s_sleep {OPT['osleep']}")
        a("s_branch L_ospin")
        a.label("L_ogo")
        stamp(a, 9)
        for i in range(4):
            a(f"buffer_load_dwordx4 v{vL16}, {WS}, s64 offen offset:{i*1024} sc1 lds")
        a("s_waitcnt vmcnt(0) lgkmcnt(0)")
    a("s_barrier")
    stamp(a, 10)
    G = [40, 48, 56, 64, 72, 80]
    def rd3(s):
        f = G[s % 6]
        a(f"ds_read_b128 {vr(f,4)}, v{vBO} offset:{s*2048}")
        a(f"ds_read_b128 {vr(f+4,4)}, v{vBO} offset:{s*2048+256}")
    for s in range(5): rd3(s)
    for s in range(16):
        if s + 5 < 16:
            rd3(s+5); a("s_waitcnt lgkmcnt(10)")
        else:
            a(f"s_waitcnt lgkmcnt({2*(15-s)})")
        f = G[s % 6]
        a(f"v_mfma_f32_16x16x32_bf16 {vr(ACC,4)}, {vr(WF+4*s,4)}, {vr(f,4)}, {vr(ACC,4)}")
        a(f"v_mfma_f32_16x16x32_bf16 {vr(ACC+4,4)}, {vr(WF+4*s,4)}, {vr(f+4,4)}, {vr(ACC+4,4)}")
    a("s_nop 7")
    for i in range(4): a(f"v_cvt_pk_bf16_f32 v{32+i}, v{ACC+2*i}, v{ACC+2*i+1}")
    a("s_nop 1")
    a("v_permlane16_swap_b32 v32, v34")
    a("v_permlane16_swap_b32 v33, v35")
    a(f"buffer_store_dwordx4 v[32:35], v{vSTO}, {OUT}, s62 offen" + ["", " sc1", " nt", " sc0 sc1", " sc1 nt"][OPT["ost"]])
    if OPT["stamp"]:
        stamp(a, 17)
        a("s_waitcnt vmcnt(0)")
        stamp(a, 11); stamp_out(a)
    a.label("L_end")
    a("s_endpgm")
    a.label("L_fallback")
    a("s_lshl_b32 s53, s56, 17")
    a("s_mov_b32 s54, 0")
    a("v_mov_b32 v14, 0xff800000")
    a.label("L_fb1")
    a(f"buffer_load_dwordx4 {vr(KV[0],4)}, v{vL16}, {WS}, s53 offen sc1")
    a("s_waitcnt vmcnt(0)")
    qk(0, 0)
    a("s_add_u32 s53, s53, 2048")
    a("s_add_u32 s54, s54, 1")
    a("s_nop 7"); a("s_nop 3")
    for i in range(8): a(f"v_max3_f32 v14, v{S[0]+2*i}, v{S[0]+2*i+1}, v14")
    a("s_cmp_lt_u32 s54, 64")
    a("s_cbranch_scc1 L_fb1")
    a("v_mov_b32 v1, v14")
    a("s_nop 1")
    a("v_permlane32_swap_b32 v14, v1")
    a("s_nop 1")
    a("v_max_f32 v14, v14, v1")
    for i in range(16): a(f"v_sub_f32 v{S[1]+i}, 0, v14")
    for i in range(16): a(f"v_mov_b32 v{O[0]+i}, 0")
    a("s_lshl_b32 s53, s56, 17")
    a("s_mov_b32 s54, 0")
    a.label("L_fb2")
    a(f"buffer_load_dwordx4 {vr(KV[0],4)}, v{vL16}, {WS}, s53 offen sc1")
    a(f"s_mov_b64 exec, {VMASK}")
    a(f"buffer_load_dwordx4 {vr(KV[0]+4,4)}, v{vVO}, {WS}, s53 offen sc1")
    a(f"buffer_load_dwordx4 {vr(KV[0]+8,4)}, v{vVO}, {WS}, s53 offen offset:512 sc1")
    a("s_mov_b64 exec, -1")
    a("s_waitcnt vmcnt(0)")
    a(f"v_mfma_f32_32x32x16_bf16 {vr(S[0],16)}, {vr(KV[0],4)}, {vr(QA,4)}, {vr(S[1],16)}")
    a("s_add_u32 s53, s53, 2048")
    a("s_add_u32 s54, s54, 1")
    a("s_nop 7"); a("s_nop 3")
    for i in range(16): ex(0, i)
    a("s_nop 1")
    pv0(0, 0); pv1(0, 0)
    a("s_cmp_lt_u32 s54, 64")
    a("s_cbranch_scc1 L_fb2")
    a("s_nop 7"); a("s_nop 7")
    a("s_branch L_fin")
    return f"""
.section .rodata,"a"
.p2align 6
.amdhsa_kernel {name}
  .amdhsa_next_free_vgpr 256
  .amdhsa_next_free_sgpr 100
  .amdhsa_accum_offset 256
  .amdhsa_group_segment_fixed_size 0
  .amdhsa_kernarg_size 48
  .amdhsa_user_sgpr_count 2
  .amdhsa_user_sgpr_kernarg_segment_ptr 1
  .amdhsa_system_sgpr_workgroup_id_x 1
.end_amdhsa_kernel
"""

def main(path):
    a = Asm()
    a.raw("; @launch grid=(256,1,1) block=(512,1,1) lds=163840")
    a.raw('.amdgcn_target "amdgcn-amd-amdhsa--gfx950"')
    a.raw(".text")
    d = gen(a)
    open(path, "w").write(a.text() + d)

if __name__ == "__main__":
    for kv in sys.argv[2:]:
        k, v = kv.split("="); assert k in OPT, k; OPT[k] = int(v)
    main(sys.argv[1])
```

```python
import math, struct, sys

def f2u(x): return struct.unpack("<I", struct.pack("<f", x))[0]
CSCALE = 0.25 * math.log2(math.e)
O_OFF = 4 << 20
IKV_OFF = 6 << 20
IO_OFF = (6 << 20) + (256 << 10)
WB = 65536
R3 = 131072
SPIN_MAX = 1 << 16

class Asm:
    def __init__(self): self.l = []
    def __call__(self, s): self.l.append("    " + s)
    def label(self, s): self.l.append(s + ":")
    def raw(self, s): self.l.append(s)
    def c(self, s): self.l.append("    ; " + s)
    def text(self): return "\n".join(self.l) + "\n"
def vr(a, n): return f"v[{a}:{a+n-1}]"

OPT = dict(nq1=3, fstep=5, early=1, opoll=0, ioff=1020, ost=0, word=0, kvs=32, os=128, kpre=0, opre=1, epos=0, osleep=0, dpos=1, look=3, stamp=0, xmap=2, sleep=1, rot=1, qpf=1, noncep=2, drop=6, spread=1, worot=1)

vST_RT, vST_CY = 252, 253
REMAP = {12: 1, 13: None, 1: None, 2: 2, 3: 3, 14: None, 18: 4, 16: None, 5: 5, 6: None, 19: 6, 7: 7, 15: 8, 8: 9, 9: 10, 10: 11, 17: 12, 11: 13, 20: None}
def stamp(a, i):
    if not OPT["stamp"]: return
    if OPT["stamp"] == 2:
        i = REMAP[i]
        if i is None: return
    a("s_memrealtime s[80:81]")
    a("s_memtime s[82:83]")
    a("s_waitcnt lgkmcnt(0)")
    a(f"v_writelane_b32 v{vST_RT}, s80, {i}")
    a(f"v_writelane_b32 v{vST_CY}, s82, {i}")
def stamp_out(a):
    if not OPT["stamp"]: return
    a(f"s_add_u32 s76, s38, {hex(16<<20)}")
    a("s_addc_u32 s77, s39, 0")
    a("s_and_b32 s77, s77, 0xffff")
    a("s_mov_b32 s78, 0x100000")
    a("s_mov_b32 s79, 0x00020000")
    a("s_lshl_b32 s80, s2, 3")
    a("s_add_u32 s80, s80, s42")
    a("s_lshl_b32 s80, s80, 8")
    a("v_lshlrev_b32 v1, 2, v0")
    if OPT["stamp"] == 2:
        a("v_not_b32 v10, v252")
        a("v_cmp_eq_u32 vcc, 0, v0")
        a("s_nop 1")
        a("v_cndmask_b32 v10, v252, v10, vcc")
        a("s_mov_b64 exec, 0x3fff")
        a(f"buffer_atomic_umax v10, v1, {DBG}, 0 offen offset:8 sc1")
        a("s_waitcnt vmcnt(0)")
        return
    a("s_mov_b32 exec_hi, 0")
    a(f"buffer_store_dword v{vST_RT}, v1, s[76:79], s80 offen")
    a(f"buffer_store_dword v{vST_CY}, v1, s[76:79], s80 offen offset:128")

def srd(a, d, base, size):
    a(f"s_mov_b32 s{d}, s{base}")
    a(f"s_and_b32 s{d+1}, s{base+1}, 0xffff")
    a(f"s_mov_b32 s{d+2}, {hex(size)}")
    a(f"s_mov_b32 s{d+3}, 0x00020000")

X, W, WS, WO, OUT, DBG = "s[12:15]", "s[16:19]", "s[20:23]", "s[24:27]", "s[28:31]", "s[32:35]"
sQUAD, sRB, sWAVE, sHD, sTT = "s40", "s41", "s42", "s43", "s44"
sSLOT = "s45"
NONCE = "s[46:47]"
VMASK = "s[48:49]"
sKVOWN = "s50"
sKVH = "s51"
sW1K = "s52"
def sXT(p): return f"s{84+p}"
def sWT(p): return f"s{92+p}"
vL16, vIDX, vXD, vWD, vXR0, vXR1, vWR, vVO = 2, 3, 4, 5, 6, 7, 8, 9
AK, AV, AQ = 16, 24, 32
FW = [[40, 44, 48, 52], [32, 36, 104, 108]]
vWR4 = 254
ONES = "s[72:73]"
KV = [56, 68, 80, 92]
QA, QB = 104, 108
XF = 112
O = [112, 128]; S = [144, 160]
vWO = [240, 241]; vPOLL = 242; vPD = 244; vKPOS = 246; vKG = 247; vVG = 248; vWQ = 249; vT = 250

def gen(a):
    name = "standalone__mha_block__prompt_kernel"
    a.raw(f".globl {name}"); a.raw(".p2align 8"); a.raw(f".type {name},@function"); a.label(name)
    a("s_cmp_ge_u32 s2, 256")
    a("s_cbranch_scc1 L_end")
    a("s_load_dwordx4 s[4:7], s[0:1], 0")
    a("s_load_dwordx4 s[36:39], s[0:1], 32")
    a("s_load_dwordx4 s[8:11], s[0:1], 16")
    a(f"s_memrealtime {NONCE}")
    if OPT["stamp"]: a("s_memtime s[82:83]")
    a("v_lshrrev_b32 v1, 6, v0")
    a("v_and_b32 v0, 63, v0")
    a(f"v_readfirstlane_b32 {sWAVE}, v1")
    xm = OPT["xmap"]
    a("s_and_b32 s3, s2, 7")
    a("s_lshr_b32 s53, s2, 3")
    lg = {1: 0, 2: 1, 4: 2, 8: 3}[xm]
    a(f"s_and_b32 s54, s3, {8//xm - 1}")
    a(f"s_lshl_b32 s54, s54, {lg}")
    a(f"s_and_b32 s55, s53, {xm-1}")
    a(f"s_add_u32 {sQUAD}, s54, s55")
    a(f"s_lshr_b32 s54, s3, {3-lg}")
    a(f"s_lshl_b32 s54, s54, {5-lg}")
    a(f"s_lshr_b32 s55, s53, {lg}")
    a(f"s_add_u32 {sRB}, s54, s55")
    a(f"s_and_b32 {sHD}, {sWAVE}, 3")
    a(f"s_lshr_b32 {sTT}, {sWAVE}, 2")
    a(f"s_lshl_b32 {sW1K}, {sWAVE}, 10")
    a(f"v_lshlrev_b32 v{vL16}, 4, v0")
    a("v_lshrrev_b32 v10, 3, v0")
    a("v_and_b32 v11, 7, v0")
    a("v_lshrrev_b32 v12, 4, v0")
    a(f"s_and_b32 s53, {sWAVE}, 1")
    a("s_lshl_b32 s54, s53, 2")
    a("v_xor_b32 v13, v11, v12")
    a("v_xor_b32 v13, s54, v13")
    a(f"s_lshl_b32 s55, {sWAVE}, 3")
    a("v_add_u32 v10, s55, v10")
    a(f"s_lshl_b32 s55, {sRB}, 16")
    a("v_lshlrev_b32 v14, 10, v10")
    a("v_lshl_add_u32 v14, v13, 4, v14")
    a(f"v_add_u32 v{vXD}, s55, v14")
    a("v_and_b32 v12, 1, v12")
    a("v_lshlrev_b32 v12, 1, v12")
    a("v_xor_b32 v13, v11, v12")
    a("v_xor_b32 v13, s54, v13")
    a("v_mul_u32_u24 v14, 3072, v10")
    a("v_lshl_add_u32 v14, v13, 4, v14")
    a(f"s_lshl_b32 s55, {sQUAD}, 7")
    a(f"v_add_u32 v{vWD}, s55, v14")
    if OPT["rot"]:
        a(f"s_lshl_b32 s53, {sQUAD}, {3-lg}")
        a(f"s_add_u32 s53, s53, {sRB}")
    else:
        a("s_mov_b32 s53, 0")
    for p in range(8):
        a("s_and_b32 s53, s53, 7")
        a(f"s_lshl_b32 {sXT(p)}, s53, 7")
        a(f"s_mul_i32 {sWT(p)}, s53, 196608")
        if p < 7: a("s_add_u32 s53, s53, 1")
    a(f"v_and_b32 v12, {min(16*xm, 64) - 1}, v0")
    a(f"s_lshl_b32 s53, {sRB}, {4+lg}")
    a("s_and_b32 s53, s53, 511")
    a("v_add_u32 v12, s53, v12")
    a("v_mul_u32_u24 v15, 3072, v12")
    a("s_waitcnt lgkmcnt(0)")
    if OPT["stamp"]:
        a(f"v_writelane_b32 v{vST_RT}, s46, 0"); a(f"v_writelane_b32 v{vST_CY}, s82, 0")
    stamp(a, 12)
    srd(a, 12, 4, 2048*1024); srd(a, 16, 6, 512*3072)
    issued = []
    def dma_x(p):
        a(f"s_add_u32 m0, {sW1K}, {p*8192}")
        a("s_nop 0")
        a(f"buffer_load_dwordx4 v{vXD}, {X}, {sXT(p)} offen lds"); issued.append(("x", p))
    def dma_w(t, p, dest, tag):
        a(f"s_add_u32 m0, {sW1K}, {dest - t*1024}")
        a("s_nop 0")
        a(f"buffer_load_dwordx4 v{vWD}, {W}, {sWT(p)} offen offset:{t*1024} lds"); issued.append(tag)
    def dma_kv(p):
        dma_w(1, p, WB + (p%5)*16384, ("kv", p)); dma_w(2, p, WB + (p%5)*16384 + 8192, ("kv", p))
    QDEST = [0, 8192, 16384, 24576, 32768, WB + 3*16384, WB + 3*16384 + 8192, 40960]
    if OPT["word"]:
        a(f"s_bitcmp1_b32 {sWAVE}, 0")
        a("s_cbranch_scc1 L_wfirst")
        dma_x(0); dma_kv(0)
        a("s_branch L_wdone")
        a.label("L_wfirst")
        del issued[:]
        dma_kv(0); dma_x(0)
        a.label("L_wdone")
    else:
        dma_x(0); dma_kv(0)
    srd(a, 32, 36, 256)
    a("s_or_b32 s46, s46, 1")
    a(f"s_or_b32 s53, s2, {sWAVE}")
    a("s_cmp_lg_u32 s53, 0")
    a("s_cbranch_scc1 L_nonon")
    a("v_mov_b32 v10, s46"); a("v_mov_b32 v11, s47")
    a("s_mov_b64 exec, 1")
    a(f"buffer_store_dwordx2 v[10:11], off, {DBG}, 0 sc1")
    a("s_mov_b64 exec, -1")
    a.label("L_nonon")
    if OPT["qpf"]:
        a(f"s_cmp_lg_u32 {sWAVE}, 7")
        a("s_cbranch_scc1 L_noqpf")
        a(f"buffer_load_dword v{vT}, v15, {W}, s55 offen")
        if xm == 8:
            a("s_add_u32 s53, s55, 196608")
            a(f"buffer_load_dword v{vT}, v15, {W}, s53 offen")
        a.label("L_noqpf")
    LOOK = OPT["look"]
    for p in range(1, LOOK):
        dma_x(p); dma_kv(p)
    stamp(a, 13)
    srd(a, 20, 38, 8 << 20); srd(a, 24, 8, 512*1024); srd(a, 28, 10, 2048*1024)
    a(f"s_lshl_b32 {sSLOT}, {sWAVE}, 12")
    a(f"s_add_u32 {sSLOT}, {sSLOT}, {R3}")
    a(f"s_lshl_b32 s53, {sQUAD}, 2")
    a(f"s_add_u32 s56, s53, {sHD}")
    a("s_lshl_b32 s53, s56, 17")
    a(f"s_lshl_b32 s54, {sTT}, 11")
    a(f"s_add_u32 {sKVH}, s53, s54")
    a(f"s_lshl_b32 s54, {sRB}, 12")
    a(f"s_add_u32 {sKVOWN}, {sKVH}, s54")
    a(f"s_lshl_b32 s53, {sRB}, 1")
    a(f"s_add_u32 s57, s53, {sTT}")
    a("s_lshl_b32 s53, s57, 15")
    a("s_lshl_b32 s54, s56, 10")
    a("s_add_u32 s58, s53, s54")
    a(f"s_add_u32 s58, s58, {hex(O_OFF)}")
    a(f"s_mul_i32 s63, {sQUAD}, {32*OPT['kvs']}")
    a(f"s_add_u32 s63, s63, {hex(IKV_OFF)}")
    a("v_and_b32 v12, 31, v0")
    a(f"v_mul_u32_u24 v{vPOLL}, {OPT['kvs']}, v12")
    a(f"s_lshr_b32 s53, {sQUAD}, 2")
    a(f"s_lshl_b32 s54, {sRB}, 1")
    a("s_add_u32 s60, s53, s54")
    a(f"s_and_b32 s61, {sQUAD}, 3")
    a("s_lshl_b32 s61, s61, 8")
    a("s_lshl_b32 s53, s60, 15")
    a("s_add_u32 s62, s53, s61")
    a(f"s_lshl_b32 s53, {sWAVE}, 5")
    a("s_add_u32 s62, s62, s53")
    a("v_and_b32 v10, 15, v0")
    a("v_lshrrev_b32 v11, 4, v0")
    a("v_bfe_u32 v12, v0, 1, 3")
    a("v_xor_b32 v12, v11, v12")
    a(f"s_lshl_b32 s53, {sTT}, 12")
    a("v_lshlrev_b32 v13, 7, v10")
    a("v_add_u32 v13, s53, v13")
    a(f"v_lshl_add_u32 v{vXR0}, v12, 4, v13")
    a(f"v_xor_b32 v{vXR1}, 64, v{vXR0}")
    a("v_bfe_u32 v12, v0, 2, 2")
    a("v_lshl_add_u32 v13, v11, 3, v12")
    a("v_lshlrev_b32 v13, 7, v13")
    a("v_bfe_u32 v14, v0, 3, 2")
    a(f"v_xor_b32 v14, {sHD}, v14")
    a("v_lshl_add_u32 v13, v14, 5, v13")
    a("v_and_b32 v14, 3, v0")
    a(f"v_lshl_add_u32 v{vWQ}, v14, 3, v13")
    a(f"v_add_u32 v{vWR}, {WB}, v{vWQ}")
    a(f"v_add_u32 v{vWR4}, {R3}, v{vWQ}")
    a("v_lshrrev_b32 v12, 5, v0")
    a("v_lshlrev_b32 v12, 8, v12")
    a("v_lshl_add_u32 v12, v10, 4, v12")
    a(f"v_add_u32 v{vVO}, 1024, v12")
    a(f"v_add_u32 v{vKG}, {sKVH}, v{vL16}")
    a(f"v_add_u32 v{vVG}, {sKVH}, v{vVO}")
    a("v_and_b32 v12, 0x23, v0")
    a("v_bfe_u32 v13, v0, 2, 2")
    a("v_lshl_add_u32 v12, v13, 3, v12")
    a("v_bfe_u32 v13, v0, 4, 1")
    a("v_lshl_add_u32 v12, v13, 2, v12")
    a(f"v_lshlrev_b32 v{vKPOS}, 4, v12")
    a("v_lshrrev_b32 v12, 5, v0")
    a("v_lshlrev_b32 v12, 1, v12")
    a(f"s_lshl_b32 s53, {sWAVE}, 2")
    a("v_add_u32 v12, s53, v12")
    for e in range(2):
        if e: a("v_add_u32 v12, 1, v12")
        a("v_and_b32 v13, 7, v12")
        a("v_lshlrev_b32 v13, 1, v13")
        a("v_xor_b32 v13, v10, v13")
        a("v_lshlrev_b32 v14, 10, v12")
        a("v_lshl_add_u32 v14, v13, 4, v14")
        a(f"v_add_u32 v{vWO[e]}, s61, v14")
    a(f"v_mov_b32 v{vIDX}, 0xdddddddd")
    a("s_mov_b32 s48, 0xffff"); a("s_mov_b32 s49, 0xffff")
    a("v_and_b32 v12, 27, v0")
    a("v_cmp_eq_u32 vcc, 16, v12")
    a("v_mov_b32 v15, 0x3f803f80")
    a("s_nop 0")
    for j in range(4):
        for i in range(8): a(f"v_cndmask_b32 v{KV[j]+4+i}, 0, v15, vcc")
    stamp(a, 1)

    def waitvm(pred):
        last = max(i for i, t in enumerate(issued) if pred(t))
        a(f"s_waitcnt vmcnt({len(issued) - 1 - last})")
    def xf(p, s): return XF + 8*(2*p + s)
    def rd_w(base, off, r):
        a(f"ds_read_b64_tr_b16 {vr(r,2)}, v{base} offset:{off}")
        a(f"ds_read_b64_tr_b16 {vr(r+2,2)}, v{base} offset:{off + 512}")
    def readsA(p):
        fw = FW[p % 2]
        for s in range(2):
            b = vXR0 if s == 0 else vXR1; f = xf(p, s)
            a(f"ds_read_b128 {vr(f,4)}, v{b} offset:{p*8192}")
            a(f"ds_read_b128 {vr(f+4,4)}, v{b} offset:{p*8192+2048}")
            wb, wo = (vWR, (p%5)*16384) if p % 5 < 4 else (vWR4, 0)
            rd_w(wb, wo + s*4096, fw[2*s]); rd_w(wb, wo + 8192 + s*4096, fw[2*s+1])
    def mfmaA(p, s):
        f = xf(p, s); wk, wv = FW[p % 2][2*s], FW[p % 2][2*s+1]
        def c(r): return "0" if p == 0 and s == 0 else vr(r, 4)
        a(f"v_mfma_f32_16x16x32_bf16 {vr(AK,4)}, {vr(wk,4)}, {vr(f,4)}, {c(AK)}")
        a(f"v_mfma_f32_16x16x32_bf16 {vr(AK+4,4)}, {vr(wk,4)}, {vr(f+4,4)}, {c(AK+4)}")
        a(f"v_mfma_f32_16x16x32_bf16 {vr(AV,4)}, {vr(f,4)}, {vr(wv,4)}, {c(AV)}")
        a(f"v_mfma_f32_16x16x32_bf16 {vr(AV+4,4)}, {vr(f+4,4)}, {vr(wv,4)}, {c(AV+4)}")
    QSCHED = {5: [0, 1, 2], 6: [3, 4, 5], 7: [6, 7]}
    for p in range(8):
        waitvm(lambda t: t[1] == p and t[0] in ("x", "kv"))
        a("s_barrier")
        if p == 0: stamp(a, 2)
        if p >= 1: a("s_waitcnt lgkmcnt(0)")
        def grab(fn):
            n0 = len(a.l); fn(); out = a.l[n0:]; del a.l[n0:]; return out
        rd = grab(lambda: readsA(p))
        mf = grab(lambda: (mfmaA(p-1, 0), mfmaA(p-1, 1))) if p >= 1 else []
        dm = []
        if p + LOOK < 8:
            dm.append(grab(lambda: dma_x(p + LOOK)))
            kvl = grab(lambda: dma_kv(p + LOOK)); dm += [kvl[:3], kvl[3:]]
        for j in QSCHED.get(p, []): dm.append(grab(lambda: dma_w(0, j, QDEST[j], ("q", j))))
        dpos = OPT["dpos"]
        k = 0
        for i in range(12):
            if dpos == 0 and i % 4 == 0 and i // 4 < len(dm): a.l += dm[i // 4]
            a.l.append(rd[i])
            while k < len(mf) and k < (i + 1) * 8 // 12:
                a.l.append(mf[k]); k += 1
            if dpos == 1 and i % 4 == 3 and i // 4 < len(dm): a.l += dm[i // 4]
        if dpos == 2:
            for d in dm: a.l += d
        if p == OPT["noncep"]:
            a(f"s_cmp_lg_u32 {sWAVE}, 0")
            a("s_cbranch_scc1 L_nf1")
            a(f"buffer_load_dwordx2 {vr(vPD,2)}, off, {DBG}, 0 sc1")
            if OPT["kpre"]: a(f"buffer_load_dwordx2 {vr(vT,2)}, v{vPOLL}, {WS}, s63 offen sc1")
            a.label("L_nf1")
    a("s_waitcnt lgkmcnt(6)")
    mfmaA(7, 0)
    a("s_waitcnt lgkmcnt(0)")
    mfmaA(7, 1)
    stamp(a, 3)
    F = 40
    a(f"v_add_u32 v10, {sSLOT}, v{vKPOS}")
    a(f"v_add_u32 v11, {sSLOT}, v{vL16}")
    a(f"v_add_u32 v12, {sSLOT}, v{vVO}")
    a("s_nop 4")
    for i in range(4): a(f"v_cvt_pk_bf16_f32 v{F+i}, v{AK+2*i}, v{AK+2*i+1}")
    for i in range(4): a(f"v_cvt_pk_bf16_f32 v{F+4+i}, v{AV+2*i}, v{AV+2*i+1}")
    a(f"v_permlane16_swap_b32 v{F}, v{F+2}")
    a(f"v_permlane16_swap_b32 v{F+1}, v{F+3}")
    a(f"buffer_store_dwordx4 {vr(F+4,4)}, v{vL16}, {WS}, {sKVOWN} offen offset:1024 sc1")
    a(f"buffer_store_dwordx4 {vr(F,4)}, v{vKPOS}, {WS}, {sKVOWN} offen sc1")
    a(f"ds_write_b128 v11, {vr(F+4,4)} offset:1024")
    a(f"ds_write_b128 v10, {vr(F,4)}")
    a("s_waitcnt lgkmcnt(0)")
    a(f"ds_read_b128 {vr(KV[0],4)}, v11")
    a(f"s_mov_b64 exec, {VMASK}")
    a(f"ds_read_b128 {vr(KV[0]+4,4)}, v12")
    a(f"ds_read_b128 {vr(KV[0]+8,4)}, v12 offset:512")
    a("s_mov_b64 exec, -1")
    NQ1 = OPT["nq1"]
    a(f"s_waitcnt vmcnt({2 + 8 - NQ1})")
    a(f"s_cmp_lg_u32 {sWAVE}, 0")
    a("s_cbranch_scc1 L_nf2")
    a(f"s_mov_b32 s53, {SPIN_MAX}")
    a.label("L_nspin")
    a(f"v_readfirstlane_b32 s54, v{vPD}")
    a("s_sub_u32 s53, s53, 1")
    a("s_cbranch_scc1 L_ngot")
    a("s_cmp_lg_u32 s54, 0")
    a("s_cbranch_scc1 L_ngot")
    a("s_sleep 2")
    a(f"buffer_load_dwordx2 {vr(vPD,2)}, off, {DBG}, 0 sc1")
    a("s_waitcnt vmcnt(0)")
    a("s_branch L_nspin")
    a.label("L_ngot")
    a(f"v_mov_b32 v10, {R3 + 2816}")
    a(f"ds_write_b64 v10, {vr(vPD,2)}")
    a.label("L_nf2")
    a("s_waitcnt lgkmcnt(0)")
    a("s_barrier")
    stamp(a, 14)
    a(f"v_mov_b32 v10, {R3 + 2816}")
    a(f"ds_read_b64 {vr(vPD,2)}, v10")
    BS = [48, 52, 16, 20, 24, 28, 40, 44]
    lg_q = ["n"]
    def readsB(st):
        p, s = divmod(st, 2)
        d = QDEST[p]
        if d < WB: rd_w(vWQ, d + s*4096, BS[st % 8])
        else: rd_w(vWR, d - WB + s*4096, BS[st % 8])
        lg_q.extend([st, st])
    def waitB(st):
        last = max(i for i, t in enumerate(lg_q) if t == st)
        a(f"s_waitcnt lgkmcnt({len(lg_q) - 1 - last})")
        del lg_q[:last + 1]
    FS = OPT["fstep"]; lim = 2 * NQ1; nxt = 0
    assert FS <= lim
    def top_up(st, limit):
        nonlocal nxt
        while nxt < min(limit, st + 6):
            readsB(nxt); nxt += 1
    a(f"s_mul_i32 s54, {sRB}, {OPT['kvs']}")
    a("s_add_u32 s53, s63, s54")
    for st in range(16):
        if st == FS:
            a("s_waitcnt vmcnt(0)")
            stamp(a, 18)
            a("s_barrier")
            a(f"s_cmp_lg_u32 {sWAVE}, 0")
            a("s_cbranch_scc1 L_nflag")
            a("s_mov_b64 exec, 1")
            a(f"buffer_store_dwordx2 {vr(vPD,2)}, off, {WS}, s53 sc1")
            a("s_mov_b64 exec, -1")
            a.label("L_nflag")
            if OPT["stamp"]: del lg_q[:]
        top_up(st, lim if st < FS else 16)
        if st in lg_q: waitB(st)
        if st == 0:
            a(f"v_readfirstlane_b32 s46, v{vPD}")
            a(f"v_readfirstlane_b32 s47, v{vPD+1}")
        f = XF + 8*st; w = BS[st % 8]
        c0, c1 = ("0", "0") if st == 0 else (vr(AQ,4), vr(AQ+4,4))
        a(f"v_mfma_f32_16x16x32_bf16 {vr(AQ,4)}, {vr(w,4)}, {vr(f,4)}, {c0}")
        a(f"v_mfma_f32_16x16x32_bf16 {vr(AQ+4,4)}, {vr(w,4)}, {vr(f+4,4)}, {c1}")
        if st == 2:
            for i in range(4): a(f"v_mov_b32 v{12+i}, 0")
        if st == 3:
            a(f"v_mfma_f32_32x32x16_bf16 {vr(O[0],16)}, v[12:15], v[12:15], 0")
            a(f"v_mfma_f32_32x32x16_bf16 {vr(O[1],16)}, v[12:15], v[12:15], 0")
        if st == FS and OPT["opoll"]:
            for i in range(4): a(f"v_mov_b32 v{12+i}, -1")
            a(f"buffer_store_dwordx4 v[12:15], v{vL16}, {WS}, s58 offen sc1")
    a(f"s_mov_b32 s53, {hex(f2u(CSCALE))}")
    a(f"s_xor_b32 s54, {sSLOT}, 16384")
    a(f"v_add_u32 v10, s54, v{vL16}")
    a("s_nop 2")
    a(f"s_lshl_b32 s64, {sRB}, 12")
    a(f"s_add_u32 s68, {sW1K}, 256")
    for i in range(8): a(f"v_mul_f32 v{AQ+i}, s53, v{AQ+i}")
    for i in range(4): a(f"v_cvt_pk_bf16_f32 v{QA+i}, v{AQ+2*i}, v{AQ+2*i+1}")
    if OPT["worot"]:
        a(f"s_lshl_b32 s65, {sRB}, 13"); a("s_and_b32 s65, s65, 0x1ffff")
    else:
        a("s_mov_b32 s65, 0"); a("s_nop 0")
    a(f"v_permlane16_swap_b32 v{QA}, v{QA+2}")
    a(f"v_permlane16_swap_b32 v{QA+1}, v{QA+3}")
    a(f"ds_write_b128 v10, {vr(QA,4)} offset:3072")
    def qk(j, q): a(f"v_mfma_f32_32x32x16_bf16 {vr(S[q],16)}, {vr(KV[j],4)}, {vr(QA if q == 0 else QB,4)}, 0")
    def pv0(j, q): a(f"v_smfmac_f32_32x32x32_bf16 {vr(O[q],16)}, {vr(KV[j]+4,4)}, {vr(S[q],8)}, v{vIDX}")
    def pv1(j, q): a(f"v_smfmac_f32_32x32x32_bf16 {vr(O[q],16)}, {vr(KV[j]+8,4)}, {vr(S[q]+8,8)}, v{vIDX}")
    def ex(q, i): a(f"v_exp_f32 v{S[q]+i}, v{S[q]+i}")
    a("s_lshl_b32 s66, s65, 2")
    qk(0, 0)
    def poll_kv(): a(f"buffer_load_dwordx2 {vr(vT,2)}, v{vPOLL}, {WS}, s63 offen sc1")
    a(f"s_mul_i32 s53, s57, {32*OPT['os']}")
    a(f"s_mul_i32 s54, s56, {OPT['os']}")
    a("s_add_u32 s53, s53, s54")
    a(f"s_add_u32 s74, s53, {hex(IO_OFF)}")
    a("s_nop 1")
    stamp(a, 16)
    a("s_waitcnt lgkmcnt(0)")
    a("s_barrier")
    a(f"ds_read_b128 {vr(QB,4)}, v11 offset:3072")
    if OPT["early"] and OPT["epos"] == 0: poll_kv()
    stamp(a, 5)
    a("s_nop 1")
    a("s_mov_b32 s67, 8")
    a(f"s_mov_b32 s53, {SPIN_MAX}")
    ex(0, 0); ex(0, 1); ex(0, 2); ex(0, 3)
    a("s_waitcnt lgkmcnt(0)")
    qk(0, 1)
    if OPT["early"] and OPT["epos"] == 1: poll_kv()
    for i in range(4, 11): ex(0, i)
    pv0(0, 0)
    if OPT["early"] and OPT["epos"] == 2: poll_kv()
    for i in range(11, 16): ex(0, i)
    def unit01():
        ex(1, 0); ex(1, 1)
        pv1(0, 0)
        for i in range(2, 11): ex(1, i)
        pv0(0, 1)
        for i in range(11, 16): ex(1, i)
    def ld_parts(j, e):
        p0 = ["s_add_u32 s64, s64, 4096", "s_and_b32 s64, s64, 0x1ffff",
              f"buffer_load_dwordx4 {vr(KV[j],4)}, v{vKG}, {WS}, s64 offen sc1"]
        p1 = [f"s_mov_b64 exec, {VMASK}", f"buffer_load_dwordx4 {vr(KV[j]+4,4)}, v{vVG}, {WS}, s64 offen sc1"]
        if e is not None: p1.append(f"s_add_u32 m0, s65, {sW1K if e == 0 else 's68'}")
        p1.append(f"buffer_load_dwordx4 {vr(KV[j]+8,4)}, v{vVG}, {WS}, s64 offen offset:512 sc1")
        if e is not None: p1.append(f"buffer_load_dwordx4 v{vWO[e]}, {WO}, s66 offen lds")
        p1.append("s_mov_b64 exec, -1")
        p2 = ["s_add_u32 s65, s65, 8192", "s_and_b32 s65, s65, 0x1ffff", "s_lshl_b32 s66, s65, 2"] if e == 1 else []
        return [p0, p1, p2]
    def emit(parts):
        for p in parts:
            for x in p: a(x)
    def first_loads():
        emit(ld_parts(1, None)); emit(ld_parts(2, None))
        if not OPT["opoll"]:
            a(f"buffer_load_dword v{vT}, off, {WO}, s61")
        emit(ld_parts(3, 0))
    if OPT["early"]:
        a("s_waitcnt vmcnt(0)")
        a(f"v_cmp_eq_u64 vcc, {NONCE}, {vr(vT,2)}")
        a("s_nop 1")
        a("s_cmp_eq_u64 vcc, -1")
        a("s_cbranch_scc0 L_late")
        first_loads()
        unit01()
        a("s_branch L_go")
        a.label("L_late")
    poll_kv()
    unit01()
    a.label("L_kvspin")
    a("s_waitcnt vmcnt(0)")
    a(f"v_cmp_eq_u64 vcc, {NONCE}, {vr(vT,2)}")
    a("s_sub_u32 s53, s53, 1")
    a("s_cbranch_scc1 L_kvgo")
    a("s_cmp_eq_u64 vcc, -1")
    a("s_cbranch_scc1 L_kvgo")
    if OPT["sleep"]: a(f"s_sleep {OPT['sleep']}")
    poll_kv()
    a("s_branch L_kvspin")
    a.label("L_kvgo")
    first_loads()
    a.label("L_go")
    stamp(a, 6)
    a("v_and_b32 v13, 3, v0")
    a(f"v_mul_u32_u24 v{vPOLL}, {OPT['os']}, v13")
    a(f"s_mul_i32 s63, s60, {32*OPT['os']}")
    a(f"s_mul_i32 s54, {sWAVE}, {4*OPT['os']}")
    a("s_add_u32 s63, s63, s54")
    a(f"s_add_u32 s63, s63, {hex(IO_OFF)}")
    if OPT["drop"]:
        a(f"s_cmp_lg_u32 {sTT}, 1")
        a("s_cbranch_scc1 L_noprio")
        a("s_setprio 1")
        a.label("L_noprio")
    if OPT["opoll"]:
        a("s_waitcnt vmcnt(7)")
        qk(1, 0)
        a("s_mov_b64 exec, 15")
        a(f"buffer_store_dwordx2 {vr(vPD,2)}, v12, {WS}, s74 offen sc1")
        a("s_mov_b64 exec, -1")
        a("s_nop 7")
    else:
        a("s_waitcnt vmcnt(8)")
        qk(1, 0)
        a("s_nop 7")
        a("s_nop 2")
    stamp(a, 19)
    a("s_branch L_loop1")
    a.raw(".p2align 6")
    a.label("L_loop")
    P = (2, 5, 11)
    for u in range(4):
        if u == 1: a.label("L_loop1")
        pj = (u - 1) % 4; nj = (u + 1) % 4
        parts = ld_parts(pj, u % 2)
        for i in range(16):
            if i == P[0]:
                pv1(pj, 1)
                if not OPT["spread"]: emit(parts)
            if OPT["spread"] and i in (3, 7, 13): emit([parts[(3, 7, 13).index(i)]])
            if i == P[1]: qk(u, 1)
            if i == P[2]: pv0(u, 0)
            ex(0, i)
        for i in range(16):
            if i == P[0]: pv1(u, 0)
            if i == P[1]:
                a("s_waitcnt vmcnt(9)"); qk(nj, 0)
            if i == P[2]: pv0(u, 1)
            ex(1, i)
    if OPT["drop"]:
        a(f"s_cmp_lg_u32 s67, {9 - OPT['drop']}")
        a("s_cbranch_scc1 L_nodrop")
        a("s_setprio 0")
        if OPT["opre"]: a(f"buffer_load_dwordx2 {vr(vT,2)}, v{vPOLL}, {WS}, s63 offen sc1")
        a.label("L_nodrop")
    a("s_sub_u32 s67, s67, 1")
    a("s_cmp_lg_u32 s67, 0")
    a("s_cbranch_scc1 L_loop")
    pv1(3, 1)
    stamp(a, 7)
    a(f"s_xor_b32 s54, {sSLOT}, 16384")
    a(f"v_lshlrev_b32 v15, 7, v{vPOLL}")
    a("s_nop 1")
    a(f"v_add_u32 v10, s54, v{vL16}")
    a("v_lshlrev_b32 v14, 2, v0")
    a("v_add_u32 v13, s54, v14")
    a(f"v_add_u32 v14, {sSLOT}, v14")
    a("s_lshl_b32 s54, s60, 15")
    a(f"s_lshl_b32 s55, {sWAVE}, 12")
    a("s_add_u32 s54, s54, s55")
    a(f"s_add_u32 s64, s54, {hex(O_OFF)}")
    a(f"ds_write_b128 v10, {vr(O[1],4)}")
    a(f"ds_write_b128 v10, {vr(O[1]+4,4)} offset:1024")
    a(f"ds_write_b32 v13, v{O[1]+8} offset:2048")
    a("s_waitcnt vmcnt(0) lgkmcnt(0)")
    OP = 56
    def poll_o():
        for i in range(4): a(f"buffer_load_dwordx4 {vr(OP+4*i,4)}, v{vL16}, {WS}, s64 offen offset:{i*1024} sc1")
    if OPT["opoll"]:
        a(f"s_mov_b32 s53, {SPIN_MAX}")
        a.label("L_pspin")
        a(f"v_cmp_eq_u64 vcc, {NONCE}, {vr(vT,2)}")
        a("s_sub_u32 s53, s53, 1")
        a("s_cbranch_scc1 L_pgo")
        a("s_cmp_eq_u64 vcc, -1")
        a("s_cbranch_scc1 L_pgo")
        a(f"buffer_load_dwordx2 {vr(vT,2)}, v{vPOLL}, {WS}, s63 offen sc1")
        a("s_waitcnt vmcnt(0)")
        a("s_branch L_pspin")
        a.label("L_pgo")
    a("s_barrier")
    stamp(a, 15)
    a(f"ds_read_b128 {vr(S[0],4)}, v11")
    a(f"ds_read_b128 {vr(S[0]+4,4)}, v11 offset:1024")
    a(f"ds_read_b32 v{S[0]+8}, v14 offset:2048")
    a(f"v_mov_b32 v13, {hex(f2u(2.0**-20))}")
    a(f"v_mov_b32 v1, {hex(f2u(2.0**60))}")
    a("s_waitcnt lgkmcnt(0)")
    for i in range(9): a(f"v_add_f32 v{O[0]+i}, v{O[0]+i}, v{S[0]+i}")
    a(f"v_cmp_ge_f32 s[68:69], v{O[0]+8}, v13")
    a(f"v_cmp_le_f32 s[70:71], v{O[0]+8}, v1")
    a(f"v_mul_f32 v14, 0, v{O[0]}")
    for i in range(1, 8): a(f"v_fma_f32 v14, v{O[0]+i}, 0, v14")
    a("v_cmp_o_f32 vcc, v14, v14")
    a("s_and_b64 s[68:69], s[68:69], s[70:71]")
    a("s_nop 1")
    a("s_and_b64 s[68:69], s[68:69], vcc")
    a("s_cmp_eq_u64 s[68:69], -1")
    a("s_cbranch_scc0 L_fallback")
    a.label("L_fin")
    a(f"v_rcp_f32 v14, v{O[0]+8}")
    a("s_nop 0")
    for i in range(8): a(f"v_mul_f32 v{O[0]+i}, v14, v{O[0]+i}")
    for i in range(4): a(f"v_cvt_pk_bf16_f32 v{S[0]+i}, v{O[0]+2*i}, v{O[0]+2*i+1}")
    if OPT["opoll"]:
        for i in range(4): a(f"v_min_u32 v{S[0]+i}, -2, v{S[0]+i}")
    a(f"buffer_store_dwordx4 {vr(S[0],4)}, v{vL16}, {WS}, s58 offen sc1")
    def poll_i(): a(f"buffer_load_dword v{vT}, v15, {WS}, s64 offen offset:{OPT['ioff']} sc1")
    if OPT["opoll"] == 1: poll_o()
    if OPT["opoll"] == 2: poll_i()
    a("v_mov_b32 v10, v12")
    vBO, vA0, vA1, vSTO = 16, 17, 18, 19
    WF = 176
    a("v_lshrrev_b32 v12, 5, v0")
    a("v_bfe_u32 v13, v0, 2, 3")
    a("v_lshl_add_u32 v12, v12, 4, v13")
    a("v_lshlrev_b32 v12, 8, v12")
    a(f"v_xor_b32 v13, {sWAVE}, v13")
    a("v_lshl_add_u32 v12, v13, 5, v12")
    a("v_and_b32 v13, 3, v0")
    a(f"v_lshl_add_u32 v{vA0}, v13, 3, v12")
    a(f"v_add_u32 v{vA1}, 65536, v{vA0}")
    def rdWo(s):
        b = vA0 if s < 8 else vA1; o = (s % 8) * 8192
        a(f"ds_read_b64_tr_b16 {vr(WF+4*s,2)}, v{b} offset:{o}")
        a(f"ds_read_b64_tr_b16 {vr(WF+4*s+2,2)}, v{b} offset:{o+2048}")
    for s in range(7): rdWo(s)
    if not OPT["opoll"]:
        a("s_waitcnt vmcnt(0)")
        a("s_mov_b64 exec, 1")
        a(f"buffer_store_dwordx2 {vr(vPD,2)}, off, {WS}, s74 sc1")
        a("s_mov_b64 exec, -1")
    stamp(a, 8)
    a("s_waitcnt lgkmcnt(0)")
    for s in range(7, 14): rdWo(s)
    a("v_and_b32 v10, 15, v0")
    a("v_lshrrev_b32 v11, 4, v0")
    a("v_lshlrev_b32 v12, 9, v11")
    a("v_lshl_add_u32 v12, v10, 4, v12")
    a(f"v_add_u32 v{vBO}, {R3}, v12")
    a("v_and_b32 v12, 31, v0")
    a("v_lshlrev_b32 v12, 10, v12")
    a("v_lshrrev_b32 v13, 5, v0")
    a(f"v_lshl_add_u32 v{vSTO}, v13, 4, v12")
    ACC = 24
    for i in range(8): a(f"v_mov_b32 v{ACC+i}, 0")
    a(f"s_mov_b32 m0, {sSLOT}")
    a(f"v_add_u32 v11, {sSLOT}, v{vL16}")
    a("s_waitcnt lgkmcnt(4)")
    for s in range(14, 16): rdWo(s)
    a(f"s_mov_b32 s53, {SPIN_MAX}")
    if OPT["opoll"] == 2:
        a.label("L_ispin")
        a("s_waitcnt vmcnt(0)")
        a(f"v_cmp_eq_u32 vcc, -1, v{vT}")
        a("s_sub_u32 s53, s53, 1")
        a("s_cbranch_scc1 L_igo")
        a("s_cmp_eq_u64 vcc, 0")
        a("s_cbranch_scc1 L_igo")
        poll_i()
        a("s_branch L_ispin")
        a.label("L_igo")
        stamp(a, 20)
        poll_o()
        a(f"s_mov_b32 s53, {SPIN_MAX}")
    if OPT["opoll"]:
        a.label("L_ospin")
        a("s_waitcnt vmcnt(0)")
        a(f"v_max3_u32 v10, v{OP}, v{OP+1}, v{OP+2}")
        for i in range(3, 15, 2): a(f"v_max3_u32 v10, v{OP+i}, v{OP+i+1}, v10")
        a(f"v_max_u32 v10, v{OP+15}, v10")
        a("v_cmp_eq_u32 vcc, -1, v10")
        a("s_sub_u32 s53, s53, 1")
        a("s_cbranch_scc1 L_ogo")
        a("s_cmp_eq_u64 vcc, 0")
        a("s_cbranch_scc1 L_ogo")
        poll_o()
        a("s_branch L_ospin")
        a.label("L_ogo")
        stamp(a, 9)
        for i in range(4): a(f"ds_write_b128 v11, {vr(OP+4*i,4)} offset:{i*1024}")
        a("s_waitcnt lgkmcnt(0)")
    else:
        a.label("L_ospin")
        a(f"buffer_load_dwordx2 {vr(vT,2)}, v{vPOLL}, {WS}, s63 offen sc1")
        a("s_waitcnt vmcnt(0)")
        a(f"v_cmp_eq_u64 vcc, {NONCE}, {vr(vT,2)}")
        a("s_sub_u32 s53, s53, 1")
        a("s_cbranch_scc1 L_ogo")
        a("s_cmp_eq_u64 vcc, -1")
        a("s_cbranch_scc1 L_ogo")
        if OPT["osleep"]: a(f"s_sleep {OPT['osleep']}")
        a("s_branch L_ospin")
        a.label("L_ogo")
        stamp(a, 9)
        for i in range(4):
            a(f"buffer_load_dwordx4 v{vL16}, {WS}, s64 offen offset:{i*1024} sc1 lds")
        a("s_waitcnt vmcnt(0) lgkmcnt(0)")
    a("s_barrier")
    stamp(a, 10)
    G = [40, 48, 56, 64, 72, 80]
    def rd3(s):
        f = G[s % 6]
        a(f"ds_read_b128 {vr(f,4)}, v{vBO} offset:{s*2048}")
        a(f"ds_read_b128 {vr(f+4,4)}, v{vBO} offset:{s*2048+256}")
    for s in range(5): rd3(s)
    for s in range(16):
        if s + 5 < 16:
            rd3(s+5); a("s_waitcnt lgkmcnt(10)")
        else:
            a(f"s_waitcnt lgkmcnt({2*(15-s)})")
        f = G[s % 6]
        a(f"v_mfma_f32_16x16x32_bf16 {vr(ACC,4)}, {vr(WF+4*s,4)}, {vr(f,4)}, {vr(ACC,4)}")
        a(f"v_mfma_f32_16x16x32_bf16 {vr(ACC+4,4)}, {vr(WF+4*s,4)}, {vr(f+4,4)}, {vr(ACC+4,4)}")
    a("s_nop 7")
    for i in range(4): a(f"v_cvt_pk_bf16_f32 v{32+i}, v{ACC+2*i}, v{ACC+2*i+1}")
    a("s_nop 1")
    a("v_permlane16_swap_b32 v32, v34")
    a("v_permlane16_swap_b32 v33, v35")
    a(f"buffer_store_dwordx4 v[32:35], v{vSTO}, {OUT}, s62 offen" + ["", " sc1", " nt", " sc0 sc1", " sc1 nt"][OPT["ost"]])
    if OPT["stamp"]:
        stamp(a, 17)
        a("s_waitcnt vmcnt(0)")
        stamp(a, 11); stamp_out(a)
    a.label("L_end")
    a("s_endpgm")
    a.label("L_fallback")
    a("s_lshl_b32 s53, s56, 17")
    a("s_mov_b32 s54, 0")
    a("v_mov_b32 v14, 0xff800000")
    a.label("L_fb1")
    a(f"buffer_load_dwordx4 {vr(KV[0],4)}, v{vL16}, {WS}, s53 offen sc1")
    a("s_waitcnt vmcnt(0)")
    qk(0, 0)
    a("s_add_u32 s53, s53, 2048")
    a("s_add_u32 s54, s54, 1")
    a("s_nop 7"); a("s_nop 3")
    for i in range(8): a(f"v_max3_f32 v14, v{S[0]+2*i}, v{S[0]+2*i+1}, v14")
    a("s_cmp_lt_u32 s54, 64")
    a("s_cbranch_scc1 L_fb1")
    a("v_mov_b32 v1, v14")
    a("s_nop 1")
    a("v_permlane32_swap_b32 v14, v1")
    a("s_nop 1")
    a("v_max_f32 v14, v14, v1")
    for i in range(16): a(f"v_sub_f32 v{S[1]+i}, 0, v14")
    for i in range(16): a(f"v_mov_b32 v{O[0]+i}, 0")
    a("s_lshl_b32 s53, s56, 17")
    a("s_mov_b32 s54, 0")
    a.label("L_fb2")
    a(f"buffer_load_dwordx4 {vr(KV[0],4)}, v{vL16}, {WS}, s53 offen sc1")
    a(f"s_mov_b64 exec, {VMASK}")
    a(f"buffer_load_dwordx4 {vr(KV[0]+4,4)}, v{vVO}, {WS}, s53 offen sc1")
    a(f"buffer_load_dwordx4 {vr(KV[0]+8,4)}, v{vVO}, {WS}, s53 offen offset:512 sc1")
    a("s_mov_b64 exec, -1")
    a("s_waitcnt vmcnt(0)")
    a(f"v_mfma_f32_32x32x16_bf16 {vr(S[0],16)}, {vr(KV[0],4)}, {vr(QA,4)}, {vr(S[1],16)}")
    a("s_add_u32 s53, s53, 2048")
    a("s_add_u32 s54, s54, 1")
    a("s_nop 7"); a("s_nop 3")
    for i in range(16): ex(0, i)
    a("s_nop 1")
    pv0(0, 0); pv1(0, 0)
    a("s_cmp_lt_u32 s54, 64")
    a("s_cbranch_scc1 L_fb2")
    a("s_nop 7"); a("s_nop 7")
    a("s_branch L_fin")
    return f"""
.section .rodata,"a"
.p2align 6
.amdhsa_kernel {name}
  .amdhsa_next_free_vgpr 256
  .amdhsa_next_free_sgpr 100
  .amdhsa_accum_offset 256
  .amdhsa_group_segment_fixed_size 0
  .amdhsa_kernarg_size 48
  .amdhsa_user_sgpr_count 2
  .amdhsa_user_sgpr_kernarg_segment_ptr 1
  .amdhsa_system_sgpr_workgroup_id_x 1
.end_amdhsa_kernel
"""

def main(path):
    a = Asm()
    a.raw("; @launch grid=(256,1,1) block=(512,1,1) lds=163840")
    a.raw('.amdgcn_target "amdgcn-amd-amdhsa--gfx950"')
    a.raw(".text")
    d = gen(a)
    open(path, "w").write(a.text() + d)

if __name__ == "__main__":
    for kv in sys.argv[2:]:
        k, v = kv.split("="); assert k in OPT, k; OPT[k] = int(v)
    main(sys.argv[1])
```

```python
import math, struct, sys

def f2u(x): return struct.unpack("<I", struct.pack("<f", x))[0]
CSCALE = 0.25 * math.log2(math.e)
O_OFF = 4 << 20
IKV_OFF = 6 << 20
IO_OFF = (6 << 20) + (256 << 10)
WB = 65536
R3 = 131072
SPIN_MAX = 1 << 16

class Asm:
    def __init__(self): self.l = []
    def __call__(self, s): self.l.append("    " + s)
    def label(self, s): self.l.append(s + ":")
    def raw(self, s): self.l.append(s)
    def c(self, s): self.l.append("    ; " + s)
    def text(self): return "\n".join(self.l) + "\n"
def vr(a, n): return f"v[{a}:{a+n-1}]"

OPT = dict(nq1=3, fstep=5, early=1, ipf=0, orep=1, dpoll=0, nb=7, smmax=2, p1=1, sm=1, smsleep=0, smprio=0, tail=0, opoll=0, ioff=1020, ost=0, word=0, kvs=32, os=128, kpre=0, opre=1, epos=0, osleep=0, dpos=1, look=3, stamp=0, xmap=2, sleep=1, rot=1, qpf=1, noncep=2, drop=6, spread=1, worot=1)

vST_RT, vST_CY = 252, 253
REMAP = {12: 1, 13: None, 1: None, 2: 2, 3: 3, 14: None, 18: 4, 16: None, 5: 5, 6: None, 19: 6, 7: 7, 15: 8, 8: 9, 9: 10, 10: 11, 17: 12, 11: 13, 20: None}
def stamp(a, i):
    if not OPT["stamp"]: return
    if OPT["stamp"] == 3 and i not in (7, 11, OPT["tail"]): return
    if OPT["stamp"] == 4 and i not in (7, 15, 8, 9, 21, 10, 17, 11): return
    if OPT["stamp"] == 5 and i not in (3, 24, 5, 22, 23, 19, 7, 11): return
    if OPT["stamp"] in (1, 2) and i >= 21: return
    if OPT["stamp"] == 2:
        i = REMAP[i]
        if i is None: return
    a("s_memrealtime s[80:81]")
    a("s_memtime s[82:83]")
    a("s_waitcnt lgkmcnt(0)")
    a(f"v_writelane_b32 v{vST_RT}, s80, {i}")
    a(f"v_writelane_b32 v{vST_CY}, s82, {i}")
def stamp_out(a):
    if not OPT["stamp"]: return
    a(f"s_add_u32 s76, s38, {hex(16<<20)}")
    a("s_addc_u32 s77, s39, 0")
    a("s_and_b32 s77, s77, 0xffff")
    a("s_mov_b32 s78, 0x100000")
    a("s_mov_b32 s79, 0x00020000")
    a("s_lshl_b32 s80, s2, 3")
    a("s_add_u32 s80, s80, s42")
    a("s_lshl_b32 s80, s80, 8")
    a("v_lshlrev_b32 v1, 2, v0")
    if OPT["stamp"] == 2:
        a("v_not_b32 v10, v252")
        a("v_cmp_eq_u32 vcc, 0, v0")
        a("s_nop 1")
        a("v_cndmask_b32 v10, v252, v10, vcc")
        a("s_mov_b64 exec, 0x3fff")
        a(f"buffer_atomic_umax v10, v1, {DBG}, 0 offen offset:8 sc1")
        a("s_waitcnt vmcnt(0)")
        return
    a("s_mov_b32 exec_hi, 0")
    a(f"buffer_store_dword v{vST_RT}, v1, s[76:79], s80 offen")
    a(f"buffer_store_dword v{vST_CY}, v1, s[76:79], s80 offen offset:128")

def srd(a, d, base, size):
    a(f"s_mov_b32 s{d}, s{base}")
    a(f"s_and_b32 s{d+1}, s{base+1}, 0xffff")
    a(f"s_mov_b32 s{d+2}, {hex(size)}")
    a(f"s_mov_b32 s{d+3}, 0x00020000")

X, W, WS, WO, OUT, DBG = "s[12:15]", "s[16:19]", "s[20:23]", "s[24:27]", "s[28:31]", "s[32:35]"
sQUAD, sRB, sWAVE, sHD, sTT = "s40", "s41", "s42", "s43", "s44"
sSLOT = "s45"
NONCE = "s[46:47]"
VMASK = "s[48:49]"
sKVOWN = "s50"
sKVH = "s51"
sW1K = "s52"
def sXT(p): return f"s{84+p}"
def sWT(p): return f"s{92+p}"
vL16, vIDX, vXD, vWD, vXR0, vXR1, vWR, vVO = 2, 3, 4, 5, 6, 7, 8, 9
AK, AV, AQ = 16, 24, 32
FW = [[40, 44, 48, 52], [32, 36, 104, 108]]
vWR4 = 254
vA = [[16, 17], [18, 19]]; vBO, vSTO, vOWN = 20, 21, 22
ONES = "s[72:73]"
KV = [56, 68, 80, 92]
QA, QB = 104, 108
XF = 112
O = [112, 128]; S = [144, 160]
vWO = [240, 241]; vPOLL = 242; vPD = 244; vKPOS = 246; vKG = 247; vVG = 248; vWQ = 249; vT = 250

def gen(a):
    name = "standalone__mha_block__prompt_kernel"
    a.raw(f".globl {name}"); a.raw(".p2align 8"); a.raw(f".type {name},@function"); a.label(name)
    a("s_cmp_ge_u32 s2, 256")
    a("s_cbranch_scc1 L_end")
    a("s_load_dwordx4 s[4:7], s[0:1], 0")
    a("s_load_dwordx4 s[36:39], s[0:1], 32")
    a("s_load_dwordx4 s[8:11], s[0:1], 16")
    a(f"s_memrealtime {NONCE}")
    if OPT["stamp"]: a("s_memtime s[82:83]")
    if OPT["ipf"]:
        a("s_getpc_b64 s[76:77]")
        a("v_lshlrev_b32 v1, 7, v0")
        a(f"v_cmp_gt_u32 vcc, {OPT['ipf']}, v0")
        a("s_and_saveexec_b64 s[78:79], vcc")
        a("s_cbranch_execz L_noipf")
        a(f"global_load_dword v{vT+1}, v1, s[76:77]")
        a.label("L_noipf")
        a("s_mov_b64 exec, -1")
    a("v_lshrrev_b32 v1, 6, v0")
    a("v_and_b32 v0, 63, v0")
    a(f"v_readfirstlane_b32 {sWAVE}, v1")
    xm = OPT["xmap"]
    a("s_and_b32 s3, s2, 7")
    a("s_lshr_b32 s53, s2, 3")
    lg = {1: 0, 2: 1, 4: 2, 8: 3}[xm]
    a(f"s_and_b32 s54, s3, {8//xm - 1}")
    a(f"s_lshl_b32 s54, s54, {lg}")
    a(f"s_and_b32 s55, s53, {xm-1}")
    a(f"s_add_u32 {sQUAD}, s54, s55")
    a(f"s_lshr_b32 s54, s3, {3-lg}")
    a(f"s_lshl_b32 s54, s54, {5-lg}")
    a(f"s_lshr_b32 s55, s53, {lg}")
    a(f"s_add_u32 {sRB}, s54, s55")
    a(f"s_and_b32 {sHD}, {sWAVE}, 3")
    a(f"s_lshr_b32 {sTT}, {sWAVE}, 2")
    a(f"s_lshl_b32 {sW1K}, {sWAVE}, 10")
    a(f"v_lshlrev_b32 v{vL16}, 4, v0")
    a("v_lshrrev_b32 v10, 3, v0")
    a("v_and_b32 v11, 7, v0")
    a("v_lshrrev_b32 v12, 4, v0")
    a(f"s_and_b32 s53, {sWAVE}, 1")
    a("s_lshl_b32 s54, s53, 2")
    a("v_xor_b32 v13, v11, v12")
    a("v_xor_b32 v13, s54, v13")
    a(f"s_lshl_b32 s55, {sWAVE}, 3")
    a("v_add_u32 v10, s55, v10")
    a(f"s_lshl_b32 s55, {sRB}, 16")
    a("v_lshlrev_b32 v14, 10, v10")
    a("v_lshl_add_u32 v14, v13, 4, v14")
    a(f"v_add_u32 v{vXD}, s55, v14")
    a("v_and_b32 v12, 1, v12")
    a("v_lshlrev_b32 v12, 1, v12")
    a("v_xor_b32 v13, v11, v12")
    a("v_xor_b32 v13, s54, v13")
    a("v_mul_u32_u24 v14, 3072, v10")
    a("v_lshl_add_u32 v14, v13, 4, v14")
    a(f"s_lshl_b32 s55, {sQUAD}, 7")
    a(f"v_add_u32 v{vWD}, s55, v14")
    if OPT["rot"]:
        a(f"s_lshl_b32 s53, {sQUAD}, {3-lg}")
        a(f"s_add_u32 s53, s53, {sRB}")
    else:
        a("s_mov_b32 s53, 0")
    for p in range(8):
        a("s_and_b32 s53, s53, 7")
        a(f"s_lshl_b32 {sXT(p)}, s53, 7")
        a(f"s_mul_i32 {sWT(p)}, s53, 196608")
        if p < 7: a("s_add_u32 s53, s53, 1")
    a(f"v_and_b32 v12, {min(16*xm, 64) - 1}, v0")
    a(f"s_lshl_b32 s53, {sRB}, {4+lg}")
    a("s_and_b32 s53, s53, 511")
    a("v_add_u32 v12, s53, v12")
    a("v_mul_u32_u24 v15, 3072, v12")
    a("s_waitcnt lgkmcnt(0)")
    if OPT["stamp"]:
        a(f"v_writelane_b32 v{vST_RT}, s46, 0"); a(f"v_writelane_b32 v{vST_CY}, s82, 0")
    stamp(a, 12)
    srd(a, 12, 4, 2048*1024); srd(a, 16, 6, 512*3072)
    issued = []
    def dma_x(p):
        a(f"s_add_u32 m0, {sW1K}, {p*8192}")
        a("s_nop 0")
        a(f"buffer_load_dwordx4 v{vXD}, {X}, {sXT(p)} offen lds"); issued.append(("x", p))
    def dma_w(t, p, dest, tag):
        a(f"s_add_u32 m0, {sW1K}, {dest - t*1024}")
        a("s_nop 0")
        a(f"buffer_load_dwordx4 v{vWD}, {W}, {sWT(p)} offen offset:{t*1024} lds"); issued.append(tag)
    def dma_kv(p):
        dma_w(1, p, WB + (p%5)*16384, ("kv", p)); dma_w(2, p, WB + (p%5)*16384 + 8192, ("kv", p))
    QDEST = [0, 8192, 16384, 24576, 32768, WB + 3*16384, WB + 3*16384 + 8192, 40960]
    if OPT["word"]:
        a(f"s_bitcmp1_b32 {sWAVE}, 0")
        a("s_cbranch_scc1 L_wfirst")
        dma_x(0); dma_kv(0)
        a("s_branch L_wdone")
        a.label("L_wfirst")
        del issued[:]
        dma_kv(0); dma_x(0)
        a.label("L_wdone")
    else:
        dma_x(0); dma_kv(0)
    srd(a, 32, 36, 256)
    a("s_or_b32 s46, s46, 1")
    a(f"s_or_b32 s53, s2, {sWAVE}")
    a("s_cmp_lg_u32 s53, 0")
    a("s_cbranch_scc1 L_nonon")
    a("v_mov_b32 v10, s46"); a("v_mov_b32 v11, s47")
    a("s_mov_b64 exec, 1")
    a(f"buffer_store_dwordx2 v[10:11], off, {DBG}, 0 sc1")
    a("s_mov_b64 exec, -1")
    a.label("L_nonon")
    if OPT["qpf"]:
        a(f"s_cmp_lg_u32 {sWAVE}, 7")
        a("s_cbranch_scc1 L_noqpf")
        a(f"buffer_load_dword v{vT}, v15, {W}, s55 offen")
        if xm == 8:
            a("s_add_u32 s53, s55, 196608")
            a(f"buffer_load_dword v{vT}, v15, {W}, s53 offen")
        a.label("L_noqpf")
    LOOK = OPT["look"]
    for p in range(1, LOOK):
        dma_x(p); dma_kv(p)
    stamp(a, 13)
    srd(a, 20, 38, 8 << 20); srd(a, 24, 8, 512*1024); srd(a, 28, 10, 2048*1024)
    a(f"s_lshl_b32 {sSLOT}, {sWAVE}, 12")
    a(f"s_add_u32 {sSLOT}, {sSLOT}, {R3}")
    a(f"s_lshl_b32 s53, {sQUAD}, 2")
    a(f"s_add_u32 s56, s53, {sHD}")
    a("s_lshl_b32 s53, s56, 17")
    a(f"s_lshl_b32 s54, {sTT}, 11")
    a(f"s_add_u32 {sKVH}, s53, s54")
    a(f"s_lshl_b32 s54, {sRB}, 12")
    a(f"s_add_u32 {sKVOWN}, {sKVH}, s54")
    a(f"s_lshl_b32 s53, {sRB}, 1")
    a(f"s_add_u32 s57, s53, {sTT}")
    a("s_lshl_b32 s53, s57, 15")
    a("s_lshl_b32 s54, s56, 10")
    a("s_add_u32 s58, s53, s54")
    a(f"s_add_u32 s58, s58, {hex(O_OFF)}")
    a(f"s_mul_i32 s63, {sQUAD}, {32*OPT['kvs']}")
    a(f"s_add_u32 s63, s63, {hex(IKV_OFF)}")
    a("v_and_b32 v12, 31, v0")
    a(f"v_mul_u32_u24 v{vPOLL}, {OPT['kvs']}, v12")
    a(f"s_lshr_b32 s53, {sQUAD}, 2")
    a(f"s_lshl_b32 s54, {sRB}, 1")
    a("s_add_u32 s60, s53, s54")
    a(f"s_and_b32 s61, {sQUAD}, 3")
    a("s_lshl_b32 s61, s61, 8")
    a("s_lshl_b32 s53, s60, 15")
    a("s_add_u32 s62, s53, s61")
    a(f"s_lshl_b32 s53, {sHD}, 6")
    a("s_add_u32 s62, s62, s53")
    a(f"s_lshl_b32 s53, {sTT}, 14")
    a("s_add_u32 s62, s62, s53")
    a("v_and_b32 v10, 15, v0")
    a("v_lshrrev_b32 v11, 4, v0")
    a("v_bfe_u32 v12, v0, 1, 3")
    a("v_xor_b32 v12, v11, v12")
    a(f"s_lshl_b32 s53, {sTT}, 12")
    a("v_lshlrev_b32 v13, 7, v10")
    a("v_add_u32 v13, s53, v13")
    a(f"v_lshl_add_u32 v{vXR0}, v12, 4, v13")
    a(f"v_xor_b32 v{vXR1}, 64, v{vXR0}")
    a("v_bfe_u32 v12, v0, 2, 2")
    a("v_lshl_add_u32 v13, v11, 3, v12")
    a("v_lshlrev_b32 v13, 7, v13")
    a("v_bfe_u32 v14, v0, 3, 2")
    a(f"v_xor_b32 v14, {sHD}, v14")
    a("v_lshl_add_u32 v13, v14, 5, v13")
    a("v_and_b32 v14, 3, v0")
    a(f"v_lshl_add_u32 v{vWQ}, v14, 3, v13")
    a(f"v_add_u32 v{vWR}, {WB}, v{vWQ}")
    a(f"v_add_u32 v{vWR4}, {R3}, v{vWQ}")
    a("v_lshrrev_b32 v12, 5, v0")
    a("v_lshlrev_b32 v12, 8, v12")
    a("v_lshl_add_u32 v12, v10, 4, v12")
    a(f"v_add_u32 v{vVO}, 1024, v12")
    a(f"v_add_u32 v{vKG}, {sKVH}, v{vL16}")
    a(f"v_add_u32 v{vVG}, {sKVH}, v{vVO}")
    a("v_and_b32 v12, 0x23, v0")
    a("v_bfe_u32 v13, v0, 2, 2")
    a("v_lshl_add_u32 v12, v13, 3, v12")
    a("v_bfe_u32 v13, v0, 4, 1")
    a("v_lshl_add_u32 v12, v13, 2, v12")
    a(f"v_lshlrev_b32 v{vKPOS}, 4, v12")
    a("v_lshrrev_b32 v12, 5, v0")
    a("v_lshlrev_b32 v12, 1, v12")
    a(f"s_lshl_b32 s53, {sWAVE}, 2")
    a("v_add_u32 v12, s53, v12")
    for e in range(2):
        if e: a("v_add_u32 v12, 1, v12")
        a("v_and_b32 v13, 7, v12")
        a("v_lshlrev_b32 v13, 1, v13")
        a("v_xor_b32 v13, v10, v13")
        a("v_lshlrev_b32 v14, 10, v12")
        a("v_lshl_add_u32 v14, v13, 4, v14")
        a(f"v_add_u32 v{vWO[e]}, s61, v14")
    a(f"v_mov_b32 v{vIDX}, 0xdddddddd")
    a("s_mov_b32 s48, 0xffff"); a("s_mov_b32 s49, 0xffff")
    a("v_and_b32 v12, 27, v0")
    a("v_cmp_eq_u32 vcc, 16, v12")
    a("v_mov_b32 v15, 0x3f803f80")
    a("s_nop 0")
    for j in range(4):
        for i in range(8): a(f"v_cndmask_b32 v{KV[j]+4+i}, 0, v15, vcc")
    stamp(a, 1)

    def waitvm(pred):
        last = max(i for i, t in enumerate(issued) if pred(t))
        a(f"s_waitcnt vmcnt({len(issued) - 1 - last})")
    def xf(p, s): return XF + 8*(2*p + s)
    def rd_w(base, off, r):
        a(f"ds_read_b64_tr_b16 {vr(r,2)}, v{base} offset:{off}")
        a(f"ds_read_b64_tr_b16 {vr(r+2,2)}, v{base} offset:{off + 512}")
    def readsA(p):
        fw = FW[p % 2]
        for s in range(2):
            b = vXR0 if s == 0 else vXR1; f = xf(p, s)
            a(f"ds_read_b128 {vr(f,4)}, v{b} offset:{p*8192}")
            a(f"ds_read_b128 {vr(f+4,4)}, v{b} offset:{p*8192+2048}")
            wb, wo = (vWR, (p%5)*16384) if p % 5 < 4 else (vWR4, 0)
            rd_w(wb, wo + s*4096, fw[2*s]); rd_w(wb, wo + 8192 + s*4096, fw[2*s+1])
    def mfmaA(p, s):
        f = xf(p, s); wk, wv = FW[p % 2][2*s], FW[p % 2][2*s+1]
        def c(r): return "0" if p == 0 and s == 0 else vr(r, 4)
        a(f"v_mfma_f32_16x16x32_bf16 {vr(AK,4)}, {vr(wk,4)}, {vr(f,4)}, {c(AK)}")
        a(f"v_mfma_f32_16x16x32_bf16 {vr(AK+4,4)}, {vr(wk,4)}, {vr(f+4,4)}, {c(AK+4)}")
        a(f"v_mfma_f32_16x16x32_bf16 {vr(AV,4)}, {vr(f,4)}, {vr(wv,4)}, {c(AV)}")
        a(f"v_mfma_f32_16x16x32_bf16 {vr(AV+4,4)}, {vr(f+4,4)}, {vr(wv,4)}, {c(AV+4)}")
    QSCHED = {5: [0, 1, 2], 6: [3, 4, 5], 7: [6, 7]}
    for p in range(8):
        waitvm(lambda t: t[1] == p and t[0] in ("x", "kv"))
        a("s_barrier")
        if p == 0: stamp(a, 2)
        if p >= 1: a("s_waitcnt lgkmcnt(0)")
        def grab(fn):
            n0 = len(a.l); fn(); out = a.l[n0:]; del a.l[n0:]; return out
        rd = grab(lambda: readsA(p))
        mf = grab(lambda: (mfmaA(p-1, 0), mfmaA(p-1, 1))) if p >= 1 else []
        dm = []
        if p + LOOK < 8:
            dm.append(grab(lambda: dma_x(p + LOOK)))
            kvl = grab(lambda: dma_kv(p + LOOK)); dm += [kvl[:3], kvl[3:]]
        for j in QSCHED.get(p, []): dm.append(grab(lambda: dma_w(0, j, QDEST[j], ("q", j))))
        dpos = OPT["dpos"]
        k = 0
        for i in range(12):
            if dpos == 0 and i % 4 == 0 and i // 4 < len(dm): a.l += dm[i // 4]
            a.l.append(rd[i])
            while k < len(mf) and k < (i + 1) * 8 // 12:
                a.l.append(mf[k]); k += 1
            if dpos == 1 and i % 4 == 3 and i // 4 < len(dm): a.l += dm[i // 4]
        if dpos == 2:
            for d in dm: a.l += d
        if p == OPT["noncep"]:
            a(f"s_cmp_lg_u32 {sWAVE}, 0")
            a("s_cbranch_scc1 L_nf1")
            a(f"buffer_load_dwordx2 {vr(vPD,2)}, off, {DBG}, 0 sc1")
            if OPT["kpre"]: a(f"buffer_load_dwordx2 {vr(vT,2)}, v{vPOLL}, {WS}, s63 offen sc1")
            a.label("L_nf1")
    a("s_waitcnt lgkmcnt(6)")
    mfmaA(7, 0)
    a("s_waitcnt lgkmcnt(0)")
    mfmaA(7, 1)
    stamp(a, 3)
    F = 40
    a(f"v_add_u32 v10, {sSLOT}, v{vKPOS}")
    a(f"v_add_u32 v11, {sSLOT}, v{vL16}")
    a(f"v_add_u32 v12, {sSLOT}, v{vVO}")
    a("s_nop 4")
    for i in range(4): a(f"v_cvt_pk_bf16_f32 v{F+i}, v{AK+2*i}, v{AK+2*i+1}")
    for i in range(4): a(f"v_cvt_pk_bf16_f32 v{F+4+i}, v{AV+2*i}, v{AV+2*i+1}")
    a(f"v_permlane16_swap_b32 v{F}, v{F+2}")
    a(f"v_permlane16_swap_b32 v{F+1}, v{F+3}")
    a(f"buffer_store_dwordx4 {vr(F+4,4)}, v{vL16}, {WS}, {sKVOWN} offen offset:1024 sc1")
    a(f"buffer_store_dwordx4 {vr(F,4)}, v{vKPOS}, {WS}, {sKVOWN} offen sc1")
    a(f"ds_write_b128 v11, {vr(F+4,4)} offset:1024")
    a(f"ds_write_b128 v10, {vr(F,4)}")
    a("s_waitcnt lgkmcnt(0)")
    a(f"ds_read_b128 {vr(KV[0],4)}, v11")
    a(f"s_mov_b64 exec, {VMASK}")
    a(f"ds_read_b128 {vr(KV[0]+4,4)}, v12")
    a(f"ds_read_b128 {vr(KV[0]+8,4)}, v12 offset:512")
    a("s_mov_b64 exec, -1")
    NQ1 = OPT["nq1"]
    a(f"s_waitcnt vmcnt({2 + 8 - NQ1})")
    a(f"s_cmp_lg_u32 {sWAVE}, 0")
    a("s_cbranch_scc1 L_nf2")
    a(f"s_mov_b32 s53, {SPIN_MAX}")
    a.label("L_nspin")
    a(f"v_readfirstlane_b32 s54, v{vPD}")
    a("s_sub_u32 s53, s53, 1")
    a("s_cbranch_scc1 L_ngot")
    a("s_cmp_lg_u32 s54, 0")
    a("s_cbranch_scc1 L_ngot")
    a("s_sleep 2")
    a(f"buffer_load_dwordx2 {vr(vPD,2)}, off, {DBG}, 0 sc1")
    a("s_waitcnt vmcnt(0)")
    a("s_branch L_nspin")
    a.label("L_ngot")
    a(f"v_mov_b32 v10, {R3 + 2816}")
    a(f"ds_write_b64 v10, {vr(vPD,2)}")
    a.label("L_nf2")
    a("s_waitcnt lgkmcnt(0)")
    a("s_barrier")
    stamp(a, 14)
    a(f"v_mov_b32 v10, {R3 + 2816}")
    a(f"ds_read_b64 {vr(vPD,2)}, v10")
    BS = [48, 52, 16, 20, 24, 28, 40, 44]
    lg_q = ["n"]
    def readsB(st):
        p, s = divmod(st, 2)
        d = QDEST[p]
        if d < WB: rd_w(vWQ, d + s*4096, BS[st % 8])
        else: rd_w(vWR, d - WB + s*4096, BS[st % 8])
        lg_q.extend([st, st])
    def waitB(st):
        last = max(i for i, t in enumerate(lg_q) if t == st)
        a(f"s_waitcnt lgkmcnt({len(lg_q) - 1 - last})")
        del lg_q[:last + 1]
    FS = OPT["fstep"]; lim = 2 * NQ1; nxt = 0
    assert FS <= lim
    def top_up(st, limit):
        nonlocal nxt
        while nxt < min(limit, st + 6):
            readsB(nxt); nxt += 1
    a(f"s_mul_i32 s54, {sRB}, {OPT['kvs']}")
    a("s_add_u32 s53, s63, s54")
    for st in range(16):
        if st == FS:
            a("s_waitcnt vmcnt(0)")
            stamp(a, 18)
            a("s_barrier")
            a(f"s_cmp_lg_u32 {sWAVE}, 0")
            a("s_cbranch_scc1 L_nflag")
            a("s_mov_b64 exec, 1")
            a(f"buffer_store_dwordx2 {vr(vPD,2)}, off, {WS}, s53 sc1")
            a("s_mov_b64 exec, -1")
            a.label("L_nflag")
            stamp(a, 24)
            if OPT["stamp"] in (1, 2, 5): del lg_q[:]
        top_up(st, lim if st < FS else 16)
        if st in lg_q: waitB(st)
        if st == 0:
            a(f"v_readfirstlane_b32 s46, v{vPD}")
            a(f"v_readfirstlane_b32 s47, v{vPD+1}")
        f = XF + 8*st; w = BS[st % 8]
        c0, c1 = ("0", "0") if st == 0 else (vr(AQ,4), vr(AQ+4,4))
        a(f"v_mfma_f32_16x16x32_bf16 {vr(AQ,4)}, {vr(w,4)}, {vr(f,4)}, {c0}")
        a(f"v_mfma_f32_16x16x32_bf16 {vr(AQ+4,4)}, {vr(w,4)}, {vr(f+4,4)}, {c1}")
        if st == 2:
            for i in range(4): a(f"v_mov_b32 v{12+i}, 0")
        if st == 3:
            a(f"v_mfma_f32_32x32x16_bf16 {vr(O[0],16)}, v[12:15], v[12:15], 0")
            a(f"v_mfma_f32_32x32x16_bf16 {vr(O[1],16)}, v[12:15], v[12:15], 0")
        if st == FS and OPT["opoll"]:
            for i in range(4): a(f"v_mov_b32 v{12+i}, -1")
            a(f"buffer_store_dwordx4 v[12:15], v{vL16}, {WS}, s58 offen sc1")
    a(f"s_mov_b32 s53, {hex(f2u(CSCALE))}")
    a(f"s_xor_b32 s54, {sSLOT}, 16384")
    a(f"v_add_u32 v10, s54, v{vL16}")
    a("s_nop 2")
    a(f"s_lshl_b32 s64, {sRB}, 12")
    a(f"s_add_u32 s68, {sW1K}, 256")
    for i in range(8): a(f"v_mul_f32 v{AQ+i}, s53, v{AQ+i}")
    for i in range(4): a(f"v_cvt_pk_bf16_f32 v{QA+i}, v{AQ+2*i}, v{AQ+2*i+1}")
    if OPT["worot"]:
        a(f"s_lshl_b32 s65, {sRB}, 13"); a("s_and_b32 s65, s65, 0x1ffff")
    else:
        a("s_mov_b32 s65, 0"); a("s_nop 0")
    a(f"v_permlane16_swap_b32 v{QA}, v{QA+2}")
    a(f"v_permlane16_swap_b32 v{QA+1}, v{QA+3}")
    a(f"ds_write_b128 v10, {vr(QA,4)} offset:3072")
    def qk(j, q): a(f"v_mfma_f32_32x32x16_bf16 {vr(S[q],16)}, {vr(KV[j],4)}, {vr(QA if q == 0 else QB,4)}, 0")
    def pv0(j, q): a(f"v_smfmac_f32_32x32x32_bf16 {vr(O[q],16)}, {vr(KV[j]+4,4)}, {vr(S[q],8)}, v{vIDX}")
    def pv1(j, q): a(f"v_smfmac_f32_32x32x32_bf16 {vr(O[q],16)}, {vr(KV[j]+8,4)}, {vr(S[q]+8,8)}, v{vIDX}")
    def ex(q, i): a(f"v_exp_f32 v{S[q]+i}, v{S[q]+i}")
    a("s_lshl_b32 s66, s65, 2")
    qk(0, 0)
    def poll_kv(): a(f"buffer_load_dwordx2 {vr(vT,2)}, v{vPOLL}, {WS}, s63 offen sc1")
    REPL = 8 if OPT["orep"] else 1
    a(f"s_lshl_b32 s53, {sRB}, 3")
    a(f"s_add_u32 s54, s53, {sQUAD}")
    a(f"s_mul_i32 s54, s54, {OPT['os']*REPL}")
    a(f"s_add_u32 s74, s54, {hex(IO_OFF)}")
    a(f"s_add_u32 s75, s53, {sWAVE}")
    a(f"s_mul_i32 s75, s75, {OPT['os']*REPL}")
    if OPT["orep"]:
        a(f"s_mul_i32 s54, {sQUAD}, {OPT['os']}")
        a("s_add_u32 s75, s75, s54")
    stamp(a, 16)
    a("s_waitcnt lgkmcnt(0)")
    a("s_barrier")
    a(f"ds_read_b128 {vr(QB,4)}, v11 offset:3072")
    if OPT["early"] and OPT["epos"] == 0: poll_kv()
    stamp(a, 5)
    a("s_nop 1")
    a("s_mov_b32 s67, 8")
    a(f"s_mov_b32 s53, {SPIN_MAX}")
    ex(0, 0); ex(0, 1); ex(0, 2); ex(0, 3)
    a("s_waitcnt lgkmcnt(0)")
    qk(0, 1)
    if OPT["early"] and OPT["epos"] == 1: poll_kv()
    for i in range(4, 11): ex(0, i)
    pv0(0, 0)
    if OPT["early"] and OPT["epos"] == 2: poll_kv()
    for i in range(11, 16): ex(0, i)
    def unit01():
        ex(1, 0); ex(1, 1)
        pv1(0, 0)
        for i in range(2, 11): ex(1, i)
        pv0(0, 1)
        for i in range(11, 16): ex(1, i)
    def ld_parts(j, e):
        p0 = ["s_add_u32 s64, s64, 4096", "s_and_b32 s64, s64, 0x1ffff",
              f"buffer_load_dwordx4 {vr(KV[j],4)}, v{vKG}, {WS}, s64 offen sc1"]
        p1 = [f"s_mov_b64 exec, {VMASK}", f"buffer_load_dwordx4 {vr(KV[j]+4,4)}, v{vVG}, {WS}, s64 offen sc1"]
        if e is not None: p1.append(f"s_add_u32 m0, s65, {sW1K if e == 0 else 's68'}")
        p1.append(f"buffer_load_dwordx4 {vr(KV[j]+8,4)}, v{vVG}, {WS}, s64 offen offset:512 sc1")
        if e is not None: p1.append(f"buffer_load_dwordx4 v{vWO[e]}, {WO}, s66 offen lds")
        p1.append("s_mov_b64 exec, -1")
        p2 = ["s_add_u32 s65, s65, 8192", "s_and_b32 s65, s65, 0x1ffff", "s_lshl_b32 s66, s65, 2"] if e == 1 else []
        return [p0, p1, p2]
    def emit(parts):
        for p in parts:
            for x in p: a(x)
    def first_loads():
        emit(ld_parts(1, None)); emit(ld_parts(2, None))
        if not OPT["opoll"]:
            a(f"buffer_load_dword v{vT}, off, {WO}, s61")
        emit(ld_parts(3, 0))
    if OPT["early"]:
        a("s_waitcnt vmcnt(0)")
        a(f"v_cmp_eq_u64 vcc, {NONCE}, {vr(vT,2)}")
        a("s_nop 1")
        a("s_cmp_eq_u64 vcc, -1")
        a("s_cbranch_scc0 L_late")
        stamp(a, 22); stamp(a, 23)
        first_loads()
        unit01()
        a("s_branch L_go")
        a.label("L_late")
        stamp(a, 22)
    poll_kv()
    unit01()
    a.label("L_kvspin")
    a("s_waitcnt vmcnt(0)")
    a(f"v_cmp_eq_u64 vcc, {NONCE}, {vr(vT,2)}")
    a("s_sub_u32 s53, s53, 1")
    a("s_cbranch_scc1 L_kvgo")
    a("s_cmp_eq_u64 vcc, -1")
    a("s_cbranch_scc1 L_kvgo")
    if OPT["sleep"]: a(f"s_sleep {OPT['sleep']}")
    poll_kv()
    a("s_branch L_kvspin")
    a.label("L_kvgo")
    stamp(a, 23)
    first_loads()
    a.label("L_go")
    a("v_lshrrev_b32 v12, 5, v0")
    a("v_bfe_u32 v13, v0, 2, 3")
    a("v_lshl_add_u32 v14, v12, 4, v13")
    a("v_lshlrev_b32 v14, 8, v14")
    a(f"s_lshl_b32 s54, {sHD}, 1")
    a("v_xor_b32 v13, s54, v13")
    a("v_lshl_add_u32 v14, v13, 5, v14")
    a("v_and_b32 v13, 3, v0")
    a(f"v_lshl_add_u32 v{vA[0][0]}, v13, 3, v14")
    a(f"v_add_u32 v{vA[0][1]}, 65536, v{vA[0][0]}")
    a(f"v_xor_b32 v{vA[1][0]}, 32, v{vA[0][0]}")
    a(f"v_xor_b32 v{vA[1][1]}, 32, v{vA[0][1]}")
    a("v_and_b32 v10, 15, v0")
    a("v_lshrrev_b32 v13, 4, v0")
    a("v_lshlrev_b32 v14, 9, v13")
    a("v_lshl_add_u32 v14, v10, 4, v14")
    a(f"s_lshl_b32 s54, {sTT}, 8")
    a(f"s_add_u32 s54, s54, {R3}")
    a(f"v_add_u32 v{vBO}, s54, v14")
    a("v_lshlrev_b32 v14, 10, v10")
    a("v_lshl_add_u32 v14, v12, 4, v14")
    a("v_and_b32 v13, 1, v13")
    a(f"v_lshl_add_u32 v{vSTO}, v13, 5, v14")
    a(f"s_lshl_b32 s53, {sQUAD}, 12")
    a(f"s_lshl_b32 s54, {sHD}, 10")
    a("s_add_u32 s53, s53, s54")
    a(f"s_add_u32 s53, s53, {R3}")
    a(f"v_add_u32 v{vOWN}, s53, v{vL16}")
    a(f"v_mul_u32_u24 v23, {OPT['os']}, v0")
    stamp(a, 6)
    a(f"s_add_u32 s63, s75, {hex(IO_OFF)}")
    if OPT["drop"]:
        a(f"s_cmp_lg_u32 {sTT}, 1")
        a("s_cbranch_scc1 L_noprio")
        a("s_setprio 1")
        a.label("L_noprio")
    if OPT["opoll"]:
        a("s_waitcnt vmcnt(7)")
        qk(1, 0)
        a("s_mov_b64 exec, 15")
        a(f"buffer_store_dwordx2 {vr(vPD,2)}, v12, {WS}, s74 offen sc1")
        a("s_mov_b64 exec, -1")
        a("s_nop 7")
    else:
        a("s_waitcnt vmcnt(8)")
        qk(1, 0)
        a("s_nop 7")
        a("s_nop 2")
    stamp(a, 19)
    a("s_branch L_loop1")
    a.raw(".p2align 6")
    a.label("L_loop")
    P = (2, 5, 11)
    for u in range(4):
        if u == 1: a.label("L_loop1")
        pj = (u - 1) % 4; nj = (u + 1) % 4
        parts = ld_parts(pj, u % 2)
        for i in range(16):
            if i == P[0]:
                pv1(pj, 1)
                if not OPT["spread"]: emit(parts)
            if OPT["spread"] and i in (3, 7, 13): emit([parts[(3, 7, 13).index(i)]])
            if i == P[1]: qk(u, 1)
            if i == P[2]: pv0(u, 0)
            ex(0, i)
        for i in range(16):
            if i == P[0]: pv1(u, 0)
            if i == P[1]:
                a("s_waitcnt vmcnt(9)"); qk(nj, 0)
            if i == P[2]: pv0(u, 1)
            ex(1, i)
    if OPT["drop"]:
        a(f"s_cmp_lg_u32 s67, {9 - OPT['drop']}")
        a("s_cbranch_scc1 L_nodrop")
        a("s_setprio 0")
        if OPT["opre"]: a(f"buffer_load_dwordx2 {vr(vT,2)}, off, {WS}, s63 sc1")
        a.label("L_nodrop")
    a("s_sub_u32 s67, s67, 1")
    a("s_cmp_lg_u32 s67, 0")
    a("s_cbranch_scc1 L_loop")
    pv1(3, 1)
    stamp(a, 7)
    a(f"s_xor_b32 s54, {sSLOT}, 16384")
    a("s_nop 2")
    a(f"v_add_u32 v10, s54, v{vL16}")
    a("v_lshlrev_b32 v14, 2, v0")
    a("v_add_u32 v13, s54, v14")
    a(f"v_add_u32 v14, {sSLOT}, v14")
    a("s_lshl_b32 s54, s60, 15")
    a(f"s_lshl_b32 s55, {sWAVE}, 12")
    a("s_add_u32 s54, s54, s55")
    a(f"s_add_u32 s64, s54, {hex(O_OFF)}")
    a(f"ds_write_b128 v10, {vr(O[1],4)}")
    a(f"ds_write_b128 v10, {vr(O[1]+4,4)} offset:1024")
    a(f"ds_write_b32 v13, v{O[1]+8} offset:2048")
    a("s_waitcnt vmcnt(0) lgkmcnt(0)")
    a("s_barrier")
    stamp(a, 15)
    a(f"ds_read_b32 v{S[0]+8}, v14 offset:2048")
    a(f"ds_read_b128 {vr(S[0],4)}, v11")
    a(f"ds_read_b128 {vr(S[0]+4,4)}, v11 offset:1024")
    a(f"v_mov_b32 v13, {hex(f2u(2.0**-20))}")
    a(f"v_mov_b32 v1, {hex(f2u(2.0**60))}")
    a("s_waitcnt lgkmcnt(2)")
    a(f"v_add_f32 v{O[0]+8}, v{O[0]+8}, v{S[0]+8}")
    a(f"v_rcp_f32 v14, v{O[0]+8}")
    a("s_waitcnt lgkmcnt(0)")
    PK = 40
    def finish(add):
        for i in range(8):
            if add: a(f"v_add_f32 v{O[0]+i}, v{O[0]+i}, v{S[0]+i}")
        for i in range(8): a(f"v_mul_f32 v{S[0]+i}, v14, v{O[0]+i}")
        for i in range(4): a(f"v_cvt_pk_bf16_f32 v{PK+i}, v{S[0]+2*i}, v{S[0]+2*i+1}")
        a(f"buffer_store_dwordx4 {vr(PK,4)}, v{vL16}, {WS}, s58 offen sc1")
    finish(True)
    a(f"v_cmp_ge_f32 s[68:69], v{O[0]+8}, v13")
    a(f"v_cmp_le_f32 s[70:71], v{O[0]+8}, v1")
    a(f"v_mul_f32 v14, 0, v{O[0]}")
    for i in range(1, 8): a(f"v_fma_f32 v14, v{O[0]+i}, 0, v14")
    a("v_cmp_o_f32 vcc, v14, v14")
    a("s_and_b64 s[68:69], s[68:69], s[70:71]")
    a("s_nop 1")
    a("s_and_b64 s[68:69], s[68:69], vcc")
    a("s_cmp_eq_u64 s[68:69], -1")
    a("s_cbranch_scc0 L_fallback")
    a.label("L_fin")
    def poll_f(): a(f"buffer_load_dwordx2 {vr(vT,2)}, off, {WS}, s63 sc1")
    WF = 112
    wo_list = [(i, s_) for s_ in range(15, -1, -1) for i in range(2)]
    def rdWo(n):
        for _ in range(n):
            i, s_ = wo_list.pop(0)
            b = vA[i][s_ // 8]; o = (s_ % 8) * 8192; r = WF + 64*i + 4*s_
            a(f"ds_read_b64_tr_b16 {vr(r,2)}, v{b} offset:{o}")
            a(f"ds_read_b64_tr_b16 {vr(r+2,2)}, v{b} offset:{o+2048}")
    rdWo(7)
    a("s_waitcnt lgkmcnt(2)")
    rdWo(6)
    a("s_waitcnt vmcnt(0)")
    a("s_barrier")
    a(f"s_cmp_lg_u32 {sWAVE}, {sQUAD}")
    a("s_cbranch_scc1 L_noflag")
    if OPT["orep"]:
        a("s_mov_b64 exec, 0xff")
        a(f"buffer_store_dwordx2 {vr(vPD,2)}, v23, {WS}, s74 offen sc1")
    else:
        a("s_mov_b64 exec, 1")
        a(f"buffer_store_dwordx2 {vr(vPD,2)}, off, {WS}, s74 sc1")
    a("s_mov_b64 exec, -1")
    a("s_branch L_flagged")
    a.label("L_noflag")
    poll_f()
    a.label("L_flagged")
    stamp(a, 8)
    a(f"s_lshr_b32 s53, {sQUAD}, 2")
    a(f"s_cmp_lg_u32 s53, {sTT}")
    a("s_waitcnt lgkmcnt(0)")
    a("s_cbranch_scc1 L_noown")
    a(f"ds_write_b128 v{vOWN}, {vr(PK,4)}")
    a.label("L_noown")
    rdWo(7)
    a("s_waitcnt lgkmcnt(2)")
    rdWo(6)
    a(f"s_mov_b32 m0, {sSLOT}")
    a("s_waitcnt lgkmcnt(2)")
    rdWo(6)
    a(f"s_mov_b32 s53, {SPIN_MAX}")
    a(f"s_cmp_eq_u32 {sWAVE}, {sQUAD}")
    a("s_cbranch_scc1 L_oskip")
    if OPT["dpoll"]:
        a.label("L_ospin")
        a(f"buffer_load_dwordx2 v[24:25], off, {WS}, s63 sc1")
        a("s_waitcnt vmcnt(1)")
        a(f"v_cmp_eq_u64 vcc, {NONCE}, {vr(vT,2)}")
        a("s_sub_u32 s53, s53, 1")
        a("s_cbranch_scc1 L_ogo")
        a("s_cmp_eq_u64 vcc, -1")
        a("s_cbranch_scc1 L_ogo")
        a(f"s_sleep {OPT['dpoll']}")
        poll_f()
        a("s_waitcnt vmcnt(1)")
        a(f"v_cmp_eq_u64 vcc, {NONCE}, v[24:25]")
        a("s_nop 1")
        a("s_cmp_eq_u64 vcc, -1")
        a("s_cbranch_scc1 L_ogo")
        a(f"s_sleep {OPT['dpoll']}")
        a("s_branch L_ospin")
    else:
        a("s_branch L_ochk")
        a.label("L_ospin")
        poll_f()
        a.label("L_ochk")
        a("s_waitcnt vmcnt(0)")
        a(f"v_cmp_eq_u64 vcc, {NONCE}, {vr(vT,2)}")
        a("s_sub_u32 s53, s53, 1")
        a("s_cbranch_scc1 L_ogo")
        a("s_cmp_eq_u64 vcc, -1")
        a("s_cbranch_scc0 L_ospin")
    a.label("L_ogo")
    stamp(a, 9)
    for i in range(4):
        a(f"buffer_load_dwordx4 v{vL16}, {WS}, s64 offen offset:{i*1024} sc1 lds")
    a("s_waitcnt vmcnt(0)")
    stamp(a, 21)
    a.label("L_oskip")
    a("s_waitcnt lgkmcnt(0)")
    a("s_barrier")
    stamp(a, 10)
    ACC = 32; NB = OPT["nb"]
    def rd3(s_): a(f"ds_read_b128 {vr(44 + 4*(s_ % (NB+1)),4)}, v{vBO} offset:{s_*2048}")
    for s_ in range(NB): rd3(s_)
    for s_ in range(16):
        if s_ + NB < 16:
            rd3(s_ + NB); a(f"s_waitcnt lgkmcnt({NB})")
        else:
            a(f"s_waitcnt lgkmcnt({15 - s_})")
        f = 44 + 4*(s_ % (NB+1))
        for i in range(2):
            a(f"v_mfma_f32_16x16x32_bf16 {vr(ACC+4*i,4)}, {vr(WF+64*i+4*s_,4)}, {vr(f,4)}, " + ("0" if s_ == 0 else vr(ACC+4*i,4)))
    a("s_nop 7")
    for i in range(4): a(f"v_cvt_pk_bf16_f32 v{PK+i}, v{ACC+2*i}, v{ACC+2*i+1}")
    a("s_nop 1")
    a(f"v_permlane16_swap_b32 v{PK}, v{PK+2}")
    a(f"v_permlane16_swap_b32 v{PK+1}, v{PK+3}")
    a(f"buffer_store_dwordx4 {vr(PK,4)}, v{vSTO}, {OUT}, s62 offen" + ["", " sc1", " nt", " sc0 sc1", " sc1 nt"][OPT["ost"]])
    if OPT["stamp"]:
        stamp(a, 17)
        a("s_waitcnt vmcnt(0)")
        stamp(a, 11); stamp_out(a)
    a.label("L_end")
    a("s_endpgm")
    a.label("L_fallback")
    a("s_lshl_b32 s53, s56, 17")
    a("s_mov_b32 s54, 0")
    a("v_mov_b32 v14, 0xff800000")
    a.label("L_fb1")
    a(f"buffer_load_dwordx4 {vr(KV[0],4)}, v{vL16}, {WS}, s53 offen sc1")
    a("s_waitcnt vmcnt(0)")
    qk(0, 0)
    a("s_add_u32 s53, s53, 2048")
    a("s_add_u32 s54, s54, 1")
    a("s_nop 7"); a("s_nop 3")
    for i in range(8): a(f"v_max3_f32 v14, v{S[0]+2*i}, v{S[0]+2*i+1}, v14")
    a("s_cmp_lt_u32 s54, 64")
    a("s_cbranch_scc1 L_fb1")
    a("v_mov_b32 v1, v14")
    a("s_nop 1")
    a("v_permlane32_swap_b32 v14, v1")
    a("s_nop 1")
    a("v_max_f32 v14, v14, v1")
    for i in range(16): a(f"v_sub_f32 v{S[1]+i}, 0, v14")
    for i in range(16): a(f"v_mov_b32 v{O[0]+i}, 0")
    a("s_lshl_b32 s53, s56, 17")
    a("s_mov_b32 s54, 0")
    a.label("L_fb2")
    a(f"buffer_load_dwordx4 {vr(KV[0],4)}, v{vL16}, {WS}, s53 offen sc1")
    a(f"s_mov_b64 exec, {VMASK}")
    a(f"buffer_load_dwordx4 {vr(KV[0]+4,4)}, v{vVO}, {WS}, s53 offen sc1")
    a(f"buffer_load_dwordx4 {vr(KV[0]+8,4)}, v{vVO}, {WS}, s53 offen offset:512 sc1")
    a("s_mov_b64 exec, -1")
    a("s_waitcnt vmcnt(0)")
    a(f"v_mfma_f32_32x32x16_bf16 {vr(S[0],16)}, {vr(KV[0],4)}, {vr(QA,4)}, {vr(S[1],16)}")
    a("s_add_u32 s53, s53, 2048")
    a("s_add_u32 s54, s54, 1")
    a("s_nop 7"); a("s_nop 3")
    for i in range(16): ex(0, i)
    a("s_nop 1")
    pv0(0, 0); pv1(0, 0)
    a("s_cmp_lt_u32 s54, 64")
    a("s_cbranch_scc1 L_fb2")
    a("s_nop 7"); a("s_nop 7")
    a(f"v_rcp_f32 v14, v{O[0]+8}")
    a("s_nop 0")
    finish(False)
    a("s_branch L_fin")
    return f"""
.section .rodata,"a"
.p2align 6
.amdhsa_kernel {name}
  .amdhsa_next_free_vgpr 256
  .amdhsa_next_free_sgpr 100
  .amdhsa_accum_offset 256
  .amdhsa_group_segment_fixed_size 0
  .amdhsa_kernarg_size 48
  .amdhsa_user_sgpr_count 2
  .amdhsa_user_sgpr_kernarg_segment_ptr 1
  .amdhsa_system_sgpr_workgroup_id_x 1
.end_amdhsa_kernel
"""

def main(path):
    a = Asm()
    a.raw("; @launch grid=(256,1,1) block=(512,1,1) lds=163840")
    a.raw('.amdgcn_target "amdgcn-amd-amdhsa--gfx950"')
    a.raw(".text")
    d = gen(a)
    open(path, "w").write(a.text() + d)

if __name__ == "__main__":
    for kv in sys.argv[2:]:
        k, v = kv.split("="); assert k in OPT, k; OPT[k] = int(v)
    main(sys.argv[1])
```

```python
import math, struct, sys

def f2u(x): return struct.unpack("<I", struct.pack("<f", x))[0]
CSCALE = 0.25 * math.log2(math.e)
O_OFF = 4 << 20
IKV_OFF = 6 << 20
IO_OFF = (6 << 20) + (256 << 10)
WB = 65536
R3 = 131072
SPIN_MAX = 1 << 16

class Asm:
    def __init__(self): self.l = []
    def __call__(self, s): self.l.append("    " + s)
    def label(self, s): self.l.append(s + ":")
    def raw(self, s): self.l.append(s)
    def c(self, s): self.l.append("    ; " + s)
    def text(self): return "\n".join(self.l) + "\n"
def vr(a, n): return f"v[{a}:{a+n-1}]"

OPT = dict(nq1=3, fstep=5, early=1, probe=0, ipf=0, orep=1, dpoll=0, nb=7, smmax=2, p1=1, sm=1, smsleep=0, smprio=0, tail=0, opoll=0, ioff=1020, ost=0, word=0, kvs=32, os=128, kpre=0, opre=1, epos=0, osleep=0, dpos=1, look=3, stamp=0, xmap=2, sleep=1, rot=1, qpf=1, noncep=2, drop=6, spread=1, worot=1)

vST_RT, vST_CY = 252, 253
REMAP = {12: 1, 13: None, 1: None, 2: 2, 3: 3, 14: None, 18: 4, 16: None, 5: 5, 6: None, 19: 6, 7: 7, 15: 8, 8: 9, 9: 10, 10: 11, 17: 12, 11: 13, 20: None}
def stamp(a, i):
    if OPT["probe"] == i:
        a("s_memrealtime s[80:81]")
        a("s_waitcnt lgkmcnt(0)")
    if not OPT["stamp"]: return
    if OPT["stamp"] == 3 and i not in (7, 11, OPT["tail"]): return
    if OPT["stamp"] == 4 and i not in (7, 15, 8, 9, 21, 10, 17, 11): return
    if OPT["stamp"] == 5 and i not in (3, 24, 5, 22, 23, 19, 7, 11): return
    if OPT["stamp"] in (1, 2) and i >= 21: return
    if OPT["stamp"] == 2:
        i = REMAP[i]
        if i is None: return
    a("s_memrealtime s[80:81]")
    a("s_memtime s[82:83]")
    a("s_waitcnt lgkmcnt(0)")
    a(f"v_writelane_b32 v{vST_RT}, s80, {i}")
    a(f"v_writelane_b32 v{vST_CY}, s82, {i}")
def stamp_out(a):
    if not OPT["stamp"]: return
    a(f"s_add_u32 s76, s38, {hex(16<<20)}")
    a("s_addc_u32 s77, s39, 0")
    a("s_and_b32 s77, s77, 0xffff")
    a("s_mov_b32 s78, 0x100000")
    a("s_mov_b32 s79, 0x00020000")
    a("s_lshl_b32 s80, s2, 3")
    a("s_add_u32 s80, s80, s42")
    a("s_lshl_b32 s80, s80, 8")
    a("v_lshlrev_b32 v1, 2, v0")
    if OPT["stamp"] == 2:
        a("v_not_b32 v10, v252")
        a("v_cmp_eq_u32 vcc, 0, v0")
        a("s_nop 1")
        a("v_cndmask_b32 v10, v252, v10, vcc")
        a("s_mov_b64 exec, 0x3fff")
        a(f"buffer_atomic_umax v10, v1, {DBG}, 0 offen offset:8 sc1")
        a("s_waitcnt vmcnt(0)")
        return
    a("s_mov_b32 exec_hi, 0")
    a(f"buffer_store_dword v{vST_RT}, v1, s[76:79], s80 offen")
    a(f"buffer_store_dword v{vST_CY}, v1, s[76:79], s80 offen offset:128")

def srd(a, d, base, size):
    a(f"s_mov_b32 s{d}, s{base}")
    a(f"s_and_b32 s{d+1}, s{base+1}, 0xffff")
    a(f"s_mov_b32 s{d+2}, {hex(size)}")
    a(f"s_mov_b32 s{d+3}, 0x00020000")

X, W, WS, WO, OUT, DBG = "s[12:15]", "s[16:19]", "s[20:23]", "s[24:27]", "s[28:31]", "s[32:35]"
sQUAD, sRB, sWAVE, sHD, sTT = "s40", "s41", "s42", "s43", "s44"
sSLOT = "s45"
NONCE = "s[46:47]"
VMASK = "s[48:49]"
sKVOWN = "s50"
sKVH = "s51"
sW1K = "s52"
def sXT(p): return f"s{84+p}"
def sWT(p): return f"s{92+p}"
vL16, vIDX, vXD, vWD, vXR0, vXR1, vWR, vVO = 2, 3, 4, 5, 6, 7, 8, 9
AK, AV, AQ = 16, 24, 32
FW = [[40, 44, 48, 52], [32, 36, 104, 108]]
vWR4 = 254
vA = [[16, 17], [18, 19]]; vBO, vSTO, vOWN = 20, 21, 22
ONES = "s[72:73]"
KV = [56, 68, 80, 92]
QA, QB = 104, 108
XF = 112
O = [112, 128]; S = [144, 160]
vWO = [240, 241]; vPOLL = 242; vPD = 244; vKPOS = 246; vKG = 247; vVG = 248; vWQ = 249; vT = 250

def gen(a):
    name = "standalone__mha_block__prompt_kernel"
    a.raw(f".globl {name}"); a.raw(".p2align 8"); a.raw(f".type {name},@function"); a.label(name)
    a("s_cmp_ge_u32 s2, 256")
    a("s_cbranch_scc1 L_end")
    a("s_load_dwordx4 s[4:7], s[0:1], 0")
    a("s_load_dwordx4 s[36:39], s[0:1], 32")
    a("s_load_dwordx4 s[8:11], s[0:1], 16")
    a(f"s_memrealtime {NONCE}")
    if OPT["stamp"]: a("s_memtime s[82:83]")
    if OPT["ipf"]:
        a("s_getpc_b64 s[76:77]")
        a("v_lshlrev_b32 v1, 7, v0")
        a(f"v_cmp_gt_u32 vcc, {OPT['ipf']}, v0")
        a("s_and_saveexec_b64 s[78:79], vcc")
        a("s_cbranch_execz L_noipf")
        a(f"global_load_dword v{vT+1}, v1, s[76:77]")
        a.label("L_noipf")
        a("s_mov_b64 exec, -1")
    a("v_lshrrev_b32 v1, 6, v0")
    a("v_and_b32 v0, 63, v0")
    a(f"v_readfirstlane_b32 {sWAVE}, v1")
    xm = OPT["xmap"]
    a("s_and_b32 s3, s2, 7")
    a("s_lshr_b32 s53, s2, 3")
    lg = {1: 0, 2: 1, 4: 2, 8: 3}[xm]
    a(f"s_and_b32 s54, s3, {8//xm - 1}")
    a(f"s_lshl_b32 s54, s54, {lg}")
    a(f"s_and_b32 s55, s53, {xm-1}")
    a(f"s_add_u32 {sQUAD}, s54, s55")
    a(f"s_lshr_b32 s54, s3, {3-lg}")
    a(f"s_lshl_b32 s54, s54, {5-lg}")
    a(f"s_lshr_b32 s55, s53, {lg}")
    a(f"s_add_u32 {sRB}, s54, s55")
    a(f"s_and_b32 {sHD}, {sWAVE}, 3")
    a(f"s_lshr_b32 {sTT}, {sWAVE}, 2")
    a(f"s_lshl_b32 {sW1K}, {sWAVE}, 10")
    a(f"v_lshlrev_b32 v{vL16}, 4, v0")
    a("v_lshrrev_b32 v10, 3, v0")
    a("v_and_b32 v11, 7, v0")
    a("v_lshrrev_b32 v12, 4, v0")
    a(f"s_and_b32 s53, {sWAVE}, 1")
    a("s_lshl_b32 s54, s53, 2")
    a("v_xor_b32 v13, v11, v12")
    a("v_xor_b32 v13, s54, v13")
    a(f"s_lshl_b32 s55, {sWAVE}, 3")
    a("v_add_u32 v10, s55, v10")
    a(f"s_lshl_b32 s55, {sRB}, 16")
    a("v_lshlrev_b32 v14, 10, v10")
    a("v_lshl_add_u32 v14, v13, 4, v14")
    a(f"v_add_u32 v{vXD}, s55, v14")
    a("v_and_b32 v12, 1, v12")
    a("v_lshlrev_b32 v12, 1, v12")
    a("v_xor_b32 v13, v11, v12")
    a("v_xor_b32 v13, s54, v13")
    a("v_mul_u32_u24 v14, 3072, v10")
    a("v_lshl_add_u32 v14, v13, 4, v14")
    a(f"s_lshl_b32 s55, {sQUAD}, 7")
    a(f"v_add_u32 v{vWD}, s55, v14")
    if OPT["rot"]:
        a(f"s_lshl_b32 s53, {sQUAD}, {3-lg}")
        a(f"s_add_u32 s53, s53, {sRB}")
    else:
        a("s_mov_b32 s53, 0")
    for p in range(8):
        a("s_and_b32 s53, s53, 7")
        a(f"s_lshl_b32 {sXT(p)}, s53, 7")
        a(f"s_mul_i32 {sWT(p)}, s53, 196608")
        if p < 7: a("s_add_u32 s53, s53, 1")
    a(f"v_and_b32 v12, {min(16*xm, 64) - 1}, v0")
    a(f"s_lshl_b32 s53, {sRB}, {4+lg}")
    a("s_and_b32 s53, s53, 511")
    a("v_add_u32 v12, s53, v12")
    a("v_mul_u32_u24 v15, 3072, v12")
    a("s_waitcnt lgkmcnt(0)")
    if OPT["stamp"]:
        a(f"v_writelane_b32 v{vST_RT}, s46, 0"); a(f"v_writelane_b32 v{vST_CY}, s82, 0")
    stamp(a, 12)
    srd(a, 12, 4, 2048*1024); srd(a, 16, 6, 512*3072)
    issued = []
    def dma_x(p):
        a(f"s_add_u32 m0, {sW1K}, {p*8192}")
        a("s_nop 0")
        a(f"buffer_load_dwordx4 v{vXD}, {X}, {sXT(p)} offen lds"); issued.append(("x", p))
    def dma_w(t, p, dest, tag):
        a(f"s_add_u32 m0, {sW1K}, {dest - t*1024}")
        a("s_nop 0")
        a(f"buffer_load_dwordx4 v{vWD}, {W}, {sWT(p)} offen offset:{t*1024} lds"); issued.append(tag)
    def dma_kv(p):
        dma_w(1, p, WB + (p%5)*16384, ("kv", p)); dma_w(2, p, WB + (p%5)*16384 + 8192, ("kv", p))
    QDEST = [0, 8192, 16384, 24576, 32768, WB + 3*16384, WB + 3*16384 + 8192, 40960]
    if OPT["word"]:
        a(f"s_bitcmp1_b32 {sWAVE}, 0")
        a("s_cbranch_scc1 L_wfirst")
        dma_x(0); dma_kv(0)
        a("s_branch L_wdone")
        a.label("L_wfirst")
        del issued[:]
        dma_kv(0); dma_x(0)
        a.label("L_wdone")
    else:
        dma_x(0); dma_kv(0)
    srd(a, 32, 36, 256)
    a("s_or_b32 s46, s46, 1")
    a(f"s_or_b32 s53, s2, {sWAVE}")
    a("s_cmp_lg_u32 s53, 0")
    a("s_cbranch_scc1 L_nonon")
    a("v_mov_b32 v10, s46"); a("v_mov_b32 v11, s47")
    a("s_mov_b64 exec, 1")
    a(f"buffer_store_dwordx2 v[10:11], off, {DBG}, 0 sc1")
    a("s_mov_b64 exec, -1")
    a.label("L_nonon")
    if OPT["qpf"]:
        a(f"s_cmp_lg_u32 {sWAVE}, 7")
        a("s_cbranch_scc1 L_noqpf")
        a(f"buffer_load_dword v{vT}, v15, {W}, s55 offen")
        if xm == 8:
            a("s_add_u32 s53, s55, 196608")
            a(f"buffer_load_dword v{vT}, v15, {W}, s53 offen")
        a.label("L_noqpf")
    LOOK = OPT["look"]
    for p in range(1, LOOK):
        dma_x(p); dma_kv(p)
    stamp(a, 13)
    srd(a, 20, 38, 8 << 20); srd(a, 24, 8, 512*1024); srd(a, 28, 10, 2048*1024)
    a(f"s_lshl_b32 {sSLOT}, {sWAVE}, 12")
    a(f"s_add_u32 {sSLOT}, {sSLOT}, {R3}")
    a(f"s_lshl_b32 s53, {sQUAD}, 2")
    a(f"s_add_u32 s56, s53, {sHD}")
    a("s_lshl_b32 s53, s56, 17")
    a(f"s_lshl_b32 s54, {sTT}, 11")
    a(f"s_add_u32 {sKVH}, s53, s54")
    a(f"s_lshl_b32 s54, {sRB}, 12")
    a(f"s_add_u32 {sKVOWN}, {sKVH}, s54")
    a(f"s_lshl_b32 s53, {sRB}, 1")
    a(f"s_add_u32 s57, s53, {sTT}")
    a("s_lshl_b32 s53, s57, 15")
    a("s_lshl_b32 s54, s56, 10")
    a("s_add_u32 s58, s53, s54")
    a(f"s_add_u32 s58, s58, {hex(O_OFF)}")
    a(f"s_mul_i32 s63, {sQUAD}, {32*OPT['kvs']}")
    a(f"s_add_u32 s63, s63, {hex(IKV_OFF)}")
    a("v_and_b32 v12, 31, v0")
    a(f"v_mul_u32_u24 v{vPOLL}, {OPT['kvs']}, v12")
    a(f"s_lshr_b32 s53, {sQUAD}, 2")
    a(f"s_lshl_b32 s54, {sRB}, 1")
    a("s_add_u32 s60, s53, s54")
    a(f"s_and_b32 s61, {sQUAD}, 3")
    a("s_lshl_b32 s61, s61, 8")
    a("s_lshl_b32 s53, s60, 15")
    a("s_add_u32 s62, s53, s61")
    a(f"s_lshl_b32 s53, {sHD}, 6")
    a("s_add_u32 s62, s62, s53")
    a(f"s_lshl_b32 s53, {sTT}, 14")
    a("s_add_u32 s62, s62, s53")
    a("v_and_b32 v10, 15, v0")
    a("v_lshrrev_b32 v11, 4, v0")
    a("v_bfe_u32 v12, v0, 1, 3")
    a("v_xor_b32 v12, v11, v12")
    a(f"s_lshl_b32 s53, {sTT}, 12")
    a("v_lshlrev_b32 v13, 7, v10")
    a("v_add_u32 v13, s53, v13")
    a(f"v_lshl_add_u32 v{vXR0}, v12, 4, v13")
    a(f"v_xor_b32 v{vXR1}, 64, v{vXR0}")
    a("v_bfe_u32 v12, v0, 2, 2")
    a("v_lshl_add_u32 v13, v11, 3, v12")
    a("v_lshlrev_b32 v13, 7, v13")
    a("v_bfe_u32 v14, v0, 3, 2")
    a(f"v_xor_b32 v14, {sHD}, v14")
    a("v_lshl_add_u32 v13, v14, 5, v13")
    a("v_and_b32 v14, 3, v0")
    a(f"v_lshl_add_u32 v{vWQ}, v14, 3, v13")
    a(f"v_add_u32 v{vWR}, {WB}, v{vWQ}")
    a(f"v_add_u32 v{vWR4}, {R3}, v{vWQ}")
    a("v_lshrrev_b32 v12, 5, v0")
    a("v_lshlrev_b32 v12, 8, v12")
    a("v_lshl_add_u32 v12, v10, 4, v12")
    a(f"v_add_u32 v{vVO}, 1024, v12")
    a(f"v_add_u32 v{vKG}, {sKVH}, v{vL16}")
    a(f"v_add_u32 v{vVG}, {sKVH}, v{vVO}")
    a("v_and_b32 v12, 0x23, v0")
    a("v_bfe_u32 v13, v0, 2, 2")
    a("v_lshl_add_u32 v12, v13, 3, v12")
    a("v_bfe_u32 v13, v0, 4, 1")
    a("v_lshl_add_u32 v12, v13, 2, v12")
    a(f"v_lshlrev_b32 v{vKPOS}, 4, v12")
    a("v_lshrrev_b32 v12, 5, v0")
    a("v_lshlrev_b32 v12, 1, v12")
    a(f"s_lshl_b32 s53, {sWAVE}, 2")
    a("v_add_u32 v12, s53, v12")
    for e in range(2):
        if e: a("v_add_u32 v12, 1, v12")
        a("v_and_b32 v13, 7, v12")
        a("v_lshlrev_b32 v13, 1, v13")
        a("v_xor_b32 v13, v10, v13")
        a("v_lshlrev_b32 v14, 10, v12")
        a("v_lshl_add_u32 v14, v13, 4, v14")
        a(f"v_add_u32 v{vWO[e]}, s61, v14")
    a(f"v_mov_b32 v{vIDX}, 0xdddddddd")
    a("s_mov_b32 s48, 0xffff"); a("s_mov_b32 s49, 0xffff")
    a("v_and_b32 v12, 27, v0")
    a("v_cmp_eq_u32 vcc, 16, v12")
    a("v_mov_b32 v15, 0x3f803f80")
    a("s_nop 0")
    for j in range(4):
        for i in range(8): a(f"v_cndmask_b32 v{KV[j]+4+i}, 0, v15, vcc")
    stamp(a, 1)

    def waitvm(pred):
        last = max(i for i, t in enumerate(issued) if pred(t))
        a(f"s_waitcnt vmcnt({len(issued) - 1 - last})")
    def xf(p, s): return XF + 8*(2*p + s)
    def rd_w(base, off, r):
        a(f"ds_read_b64_tr_b16 {vr(r,2)}, v{base} offset:{off}")
        a(f"ds_read_b64_tr_b16 {vr(r+2,2)}, v{base} offset:{off + 512}")
    def readsA(p):
        fw = FW[p % 2]
        for s in range(2):
            b = vXR0 if s == 0 else vXR1; f = xf(p, s)
            a(f"ds_read_b128 {vr(f,4)}, v{b} offset:{p*8192}")
            a(f"ds_read_b128 {vr(f+4,4)}, v{b} offset:{p*8192+2048}")
            wb, wo = (vWR, (p%5)*16384) if p % 5 < 4 else (vWR4, 0)
            rd_w(wb, wo + s*4096, fw[2*s]); rd_w(wb, wo + 8192 + s*4096, fw[2*s+1])
    def mfmaA(p, s):
        f = xf(p, s); wk, wv = FW[p % 2][2*s], FW[p % 2][2*s+1]
        def c(r): return "0" if p == 0 and s == 0 else vr(r, 4)
        a(f"v_mfma_f32_16x16x32_bf16 {vr(AK,4)}, {vr(wk,4)}, {vr(f,4)}, {c(AK)}")
        a(f"v_mfma_f32_16x16x32_bf16 {vr(AK+4,4)}, {vr(wk,4)}, {vr(f+4,4)}, {c(AK+4)}")
        a(f"v_mfma_f32_16x16x32_bf16 {vr(AV,4)}, {vr(f,4)}, {vr(wv,4)}, {c(AV)}")
        a(f"v_mfma_f32_16x16x32_bf16 {vr(AV+4,4)}, {vr(f+4,4)}, {vr(wv,4)}, {c(AV+4)}")
    QSCHED = {5: [0, 1, 2], 6: [3, 4, 5], 7: [6, 7]}
    for p in range(8):
        waitvm(lambda t: t[1] == p and t[0] in ("x", "kv"))
        a("s_barrier")
        if p == 0: stamp(a, 2)
        if p >= 1: a("s_waitcnt lgkmcnt(0)")
        def grab(fn):
            n0 = len(a.l); fn(); out = a.l[n0:]; del a.l[n0:]; return out
        rd = grab(lambda: readsA(p))
        mf = grab(lambda: (mfmaA(p-1, 0), mfmaA(p-1, 1))) if p >= 1 else []
        dm = []
        if p + LOOK < 8:
            dm.append(grab(lambda: dma_x(p + LOOK)))
            kvl = grab(lambda: dma_kv(p + LOOK)); dm += [kvl[:3], kvl[3:]]
        for j in QSCHED.get(p, []): dm.append(grab(lambda: dma_w(0, j, QDEST[j], ("q", j))))
        dpos = OPT["dpos"]
        k = 0
        for i in range(12):
            if dpos == 0 and i % 4 == 0 and i // 4 < len(dm): a.l += dm[i // 4]
            a.l.append(rd[i])
            while k < len(mf) and k < (i + 1) * 8 // 12:
                a.l.append(mf[k]); k += 1
            if dpos == 1 and i % 4 == 3 and i // 4 < len(dm): a.l += dm[i // 4]
        if dpos == 2:
            for d in dm: a.l += d
        if p == OPT["noncep"]:
            a(f"s_cmp_lg_u32 {sWAVE}, 0")
            a("s_cbranch_scc1 L_nf1")
            a(f"buffer_load_dwordx2 {vr(vPD,2)}, off, {DBG}, 0 sc1")
            if OPT["kpre"]: a(f"buffer_load_dwordx2 {vr(vT,2)}, v{vPOLL}, {WS}, s63 offen sc1")
            a.label("L_nf1")
    a("s_waitcnt lgkmcnt(6)")
    mfmaA(7, 0)
    a("s_waitcnt lgkmcnt(0)")
    mfmaA(7, 1)
    stamp(a, 3)
    F = 40
    a(f"v_add_u32 v10, {sSLOT}, v{vKPOS}")
    a(f"v_add_u32 v11, {sSLOT}, v{vL16}")
    a(f"v_add_u32 v12, {sSLOT}, v{vVO}")
    a("s_nop 4")
    for i in range(4): a(f"v_cvt_pk_bf16_f32 v{F+i}, v{AK+2*i}, v{AK+2*i+1}")
    for i in range(4): a(f"v_cvt_pk_bf16_f32 v{F+4+i}, v{AV+2*i}, v{AV+2*i+1}")
    a(f"v_permlane16_swap_b32 v{F}, v{F+2}")
    a(f"v_permlane16_swap_b32 v{F+1}, v{F+3}")
    a(f"buffer_store_dwordx4 {vr(F+4,4)}, v{vL16}, {WS}, {sKVOWN} offen offset:1024 sc1")
    a(f"buffer_store_dwordx4 {vr(F,4)}, v{vKPOS}, {WS}, {sKVOWN} offen sc1")
    a(f"ds_write_b128 v11, {vr(F+4,4)} offset:1024")
    a(f"ds_write_b128 v10, {vr(F,4)}")
    a("s_waitcnt lgkmcnt(0)")
    a(f"ds_read_b128 {vr(KV[0],4)}, v11")
    a(f"s_mov_b64 exec, {VMASK}")
    a(f"ds_read_b128 {vr(KV[0]+4,4)}, v12")
    a(f"ds_read_b128 {vr(KV[0]+8,4)}, v12 offset:512")
    a("s_mov_b64 exec, -1")
    NQ1 = OPT["nq1"]
    a(f"s_waitcnt vmcnt({2 + 8 - NQ1})")
    a(f"s_cmp_lg_u32 {sWAVE}, 0")
    a("s_cbranch_scc1 L_nf2")
    a(f"s_mov_b32 s53, {SPIN_MAX}")
    a.label("L_nspin")
    a(f"v_readfirstlane_b32 s54, v{vPD}")
    a("s_sub_u32 s53, s53, 1")
    a("s_cbranch_scc1 L_ngot")
    a("s_cmp_lg_u32 s54, 0")
    a("s_cbranch_scc1 L_ngot")
    a("s_sleep 2")
    a(f"buffer_load_dwordx2 {vr(vPD,2)}, off, {DBG}, 0 sc1")
    a("s_waitcnt vmcnt(0)")
    a("s_branch L_nspin")
    a.label("L_ngot")
    a(f"v_mov_b32 v10, {R3 + 2816}")
    a(f"ds_write_b64 v10, {vr(vPD,2)}")
    a.label("L_nf2")
    a("s_waitcnt lgkmcnt(0)")
    a("s_barrier")
    stamp(a, 14)
    a(f"v_mov_b32 v10, {R3 + 2816}")
    a(f"ds_read_b64 {vr(vPD,2)}, v10")
    BS = [48, 52, 16, 20, 24, 28, 40, 44]
    lg_q = ["n"]
    def readsB(st):
        p, s = divmod(st, 2)
        d = QDEST[p]
        if d < WB: rd_w(vWQ, d + s*4096, BS[st % 8])
        else: rd_w(vWR, d - WB + s*4096, BS[st % 8])
        lg_q.extend([st, st])
    def waitB(st):
        last = max(i for i, t in enumerate(lg_q) if t == st)
        a(f"s_waitcnt lgkmcnt({len(lg_q) - 1 - last})")
        del lg_q[:last + 1]
    FS = OPT["fstep"]; lim = 2 * NQ1; nxt = 0
    assert FS <= lim
    def top_up(st, limit):
        nonlocal nxt
        while nxt < min(limit, st + 6):
            readsB(nxt); nxt += 1
    a(f"s_mul_i32 s54, {sRB}, {OPT['kvs']}")
    a("s_add_u32 s53, s63, s54")
    for st in range(16):
        if st == FS:
            a("s_waitcnt vmcnt(0)")
            stamp(a, 18)
            a("s_barrier")
            a(f"s_cmp_lg_u32 {sWAVE}, 0")
            a("s_cbranch_scc1 L_nflag")
            a("s_mov_b64 exec, 1")
            a(f"buffer_store_dwordx2 {vr(vPD,2)}, off, {WS}, s53 sc1")
            a("s_mov_b64 exec, -1")
            a.label("L_nflag")
            stamp(a, 24)
            if OPT["stamp"] in (1, 2, 5) or OPT["probe"] in (18, 24): del lg_q[:]
        top_up(st, lim if st < FS else 16)
        if st in lg_q: waitB(st)
        if st == 0:
            a(f"v_readfirstlane_b32 s46, v{vPD}")
            a(f"v_readfirstlane_b32 s47, v{vPD+1}")
        f = XF + 8*st; w = BS[st % 8]
        c0, c1 = ("0", "0") if st == 0 else (vr(AQ,4), vr(AQ+4,4))
        a(f"v_mfma_f32_16x16x32_bf16 {vr(AQ,4)}, {vr(w,4)}, {vr(f,4)}, {c0}")
        a(f"v_mfma_f32_16x16x32_bf16 {vr(AQ+4,4)}, {vr(w,4)}, {vr(f+4,4)}, {c1}")
        if st == 2:
            for i in range(4): a(f"v_mov_b32 v{12+i}, 0")
        if st == 3:
            a(f"v_mfma_f32_32x32x16_bf16 {vr(O[0],16)}, v[12:15], v[12:15], 0")
            a(f"v_mfma_f32_32x32x16_bf16 {vr(O[1],16)}, v[12:15], v[12:15], 0")
        if st == FS and OPT["opoll"]:
            for i in range(4): a(f"v_mov_b32 v{12+i}, -1")
            a(f"buffer_store_dwordx4 v[12:15], v{vL16}, {WS}, s58 offen sc1")
    a(f"s_mov_b32 s53, {hex(f2u(CSCALE))}")
    a(f"s_xor_b32 s54, {sSLOT}, 16384")
    a(f"v_add_u32 v10, s54, v{vL16}")
    a("s_nop 2")
    a(f"s_lshl_b32 s64, {sRB}, 12")
    a(f"s_add_u32 s68, {sW1K}, 256")
    for i in range(8): a(f"v_mul_f32 v{AQ+i}, s53, v{AQ+i}")
    for i in range(4): a(f"v_cvt_pk_bf16_f32 v{QA+i}, v{AQ+2*i}, v{AQ+2*i+1}")
    if OPT["worot"]:
        a(f"s_lshl_b32 s65, {sRB}, 13"); a("s_and_b32 s65, s65, 0x1ffff")
    else:
        a("s_mov_b32 s65, 0"); a("s_nop 0")
    a(f"v_permlane16_swap_b32 v{QA}, v{QA+2}")
    a(f"v_permlane16_swap_b32 v{QA+1}, v{QA+3}")
    a(f"ds_write_b128 v10, {vr(QA,4)} offset:3072")
    def qk(j, q): a(f"v_mfma_f32_32x32x16_bf16 {vr(S[q],16)}, {vr(KV[j],4)}, {vr(QA if q == 0 else QB,4)}, 0")
    def pv0(j, q): a(f"v_smfmac_f32_32x32x32_bf16 {vr(O[q],16)}, {vr(KV[j]+4,4)}, {vr(S[q],8)}, v{vIDX}")
    def pv1(j, q): a(f"v_smfmac_f32_32x32x32_bf16 {vr(O[q],16)}, {vr(KV[j]+8,4)}, {vr(S[q]+8,8)}, v{vIDX}")
    def ex(q, i): a(f"v_exp_f32 v{S[q]+i}, v{S[q]+i}")
    a("s_lshl_b32 s66, s65, 2")
    qk(0, 0)
    def poll_kv(): a(f"buffer_load_dwordx2 {vr(vT,2)}, v{vPOLL}, {WS}, s63 offen sc1")
    REPL = 8 if OPT["orep"] else 1
    a(f"s_lshl_b32 s53, {sRB}, 3")
    a(f"s_add_u32 s54, s53, {sQUAD}")
    a(f"s_mul_i32 s54, s54, {OPT['os']*REPL}")
    a(f"s_add_u32 s74, s54, {hex(IO_OFF)}")
    a(f"s_add_u32 s75, s53, {sWAVE}")
    a(f"s_mul_i32 s75, s75, {OPT['os']*REPL}")
    if OPT["orep"]:
        a(f"s_mul_i32 s54, {sQUAD}, {OPT['os']}")
        a("s_add_u32 s75, s75, s54")
    stamp(a, 16)
    a("s_waitcnt lgkmcnt(0)")
    a("s_barrier")
    a(f"ds_read_b128 {vr(QB,4)}, v11 offset:3072")
    if OPT["early"] and OPT["epos"] == 0: poll_kv()
    stamp(a, 5)
    a("s_nop 1")
    a("s_mov_b32 s67, 8")
    a(f"s_mov_b32 s53, {SPIN_MAX}")
    ex(0, 0); ex(0, 1); ex(0, 2); ex(0, 3)
    a("s_waitcnt lgkmcnt(0)")
    qk(0, 1)
    if OPT["early"] and OPT["epos"] == 1: poll_kv()
    for i in range(4, 11): ex(0, i)
    pv0(0, 0)
    if OPT["early"] and OPT["epos"] == 2: poll_kv()
    for i in range(11, 16): ex(0, i)
    def unit01():
        ex(1, 0); ex(1, 1)
        pv1(0, 0)
        for i in range(2, 11): ex(1, i)
        pv0(0, 1)
        for i in range(11, 16): ex(1, i)
    def ld_parts(j, e):
        p0 = ["s_add_u32 s64, s64, 4096", "s_and_b32 s64, s64, 0x1ffff",
              f"buffer_load_dwordx4 {vr(KV[j],4)}, v{vKG}, {WS}, s64 offen sc1"]
        p1 = [f"s_mov_b64 exec, {VMASK}", f"buffer_load_dwordx4 {vr(KV[j]+4,4)}, v{vVG}, {WS}, s64 offen sc1"]
        if e is not None: p1.append(f"s_add_u32 m0, s65, {sW1K if e == 0 else 's68'}")
        p1.append(f"buffer_load_dwordx4 {vr(KV[j]+8,4)}, v{vVG}, {WS}, s64 offen offset:512 sc1")
        if e is not None: p1.append(f"buffer_load_dwordx4 v{vWO[e]}, {WO}, s66 offen lds")
        p1.append("s_mov_b64 exec, -1")
        p2 = ["s_add_u32 s65, s65, 8192", "s_and_b32 s65, s65, 0x1ffff", "s_lshl_b32 s66, s65, 2"] if e == 1 else []
        return [p0, p1, p2]
    def emit(parts):
        for p in parts:
            for x in p: a(x)
    def first_loads():
        emit(ld_parts(1, None)); emit(ld_parts(2, None))
        if not OPT["opoll"]:
            a(f"buffer_load_dword v{vT}, off, {WO}, s61")
        emit(ld_parts(3, 0))
    if OPT["early"]:
        a("s_waitcnt vmcnt(0)")
        a(f"v_cmp_eq_u64 vcc, {NONCE}, {vr(vT,2)}")
        a("s_nop 1")
        a("s_cmp_eq_u64 vcc, -1")
        a("s_cbranch_scc0 L_late")
        stamp(a, 22); stamp(a, 23)
        first_loads()
        unit01()
        a("s_branch L_go")
        a.label("L_late")
        stamp(a, 22)
    poll_kv()
    unit01()
    a.label("L_kvspin")
    a("s_waitcnt vmcnt(0)")
    a(f"v_cmp_eq_u64 vcc, {NONCE}, {vr(vT,2)}")
    a("s_sub_u32 s53, s53, 1")
    a("s_cbranch_scc1 L_kvgo")
    a("s_cmp_eq_u64 vcc, -1")
    a("s_cbranch_scc1 L_kvgo")
    if OPT["sleep"]: a(f"s_sleep {OPT['sleep']}")
    poll_kv()
    a("s_branch L_kvspin")
    a.label("L_kvgo")
    stamp(a, 23)
    first_loads()
    a.label("L_go")
    a("v_lshrrev_b32 v12, 5, v0")
    a("v_bfe_u32 v13, v0, 2, 3")
    a("v_lshl_add_u32 v14, v12, 4, v13")
    a("v_lshlrev_b32 v14, 8, v14")
    a(f"s_lshl_b32 s54, {sHD}, 1")
    a("v_xor_b32 v13, s54, v13")
    a("v_lshl_add_u32 v14, v13, 5, v14")
    a("v_and_b32 v13, 3, v0")
    a(f"v_lshl_add_u32 v{vA[0][0]}, v13, 3, v14")
    a(f"v_add_u32 v{vA[0][1]}, 65536, v{vA[0][0]}")
    a(f"v_xor_b32 v{vA[1][0]}, 32, v{vA[0][0]}")
    a(f"v_xor_b32 v{vA[1][1]}, 32, v{vA[0][1]}")
    a("v_and_b32 v10, 15, v0")
    a("v_lshrrev_b32 v13, 4, v0")
    a("v_lshlrev_b32 v14, 9, v13")
    a("v_lshl_add_u32 v14, v10, 4, v14")
    a(f"s_lshl_b32 s54, {sTT}, 8")
    a(f"s_add_u32 s54, s54, {R3}")
    a(f"v_add_u32 v{vBO}, s54, v14")
    a("v_lshlrev_b32 v14, 10, v10")
    a("v_lshl_add_u32 v14, v12, 4, v14")
    a("v_and_b32 v13, 1, v13")
    a(f"v_lshl_add_u32 v{vSTO}, v13, 5, v14")
    a(f"s_lshl_b32 s53, {sQUAD}, 12")
    a(f"s_lshl_b32 s54, {sHD}, 10")
    a("s_add_u32 s53, s53, s54")
    a(f"s_add_u32 s53, s53, {R3}")
    a(f"v_add_u32 v{vOWN}, s53, v{vL16}")
    a(f"v_mul_u32_u24 v23, {OPT['os']}, v0")
    stamp(a, 6)
    a(f"s_add_u32 s63, s75, {hex(IO_OFF)}")
    if OPT["drop"]:
        a(f"s_cmp_lg_u32 {sTT}, 1")
        a("s_cbranch_scc1 L_noprio")
        a("s_setprio 1")
        a.label("L_noprio")
    if OPT["opoll"]:
        a("s_waitcnt vmcnt(7)")
        qk(1, 0)
        a("s_mov_b64 exec, 15")
        a(f"buffer_store_dwordx2 {vr(vPD,2)}, v12, {WS}, s74 offen sc1")
        a("s_mov_b64 exec, -1")
        a("s_nop 7")
    else:
        a("s_waitcnt vmcnt(8)")
        qk(1, 0)
        a("s_nop 7")
        a("s_nop 2")
    stamp(a, 19)
    a("s_branch L_loop1")
    a.raw(".p2align 6")
    a.label("L_loop")
    P = (2, 5, 11)
    for u in range(4):
        if u == 1: a.label("L_loop1")
        pj = (u - 1) % 4; nj = (u + 1) % 4
        parts = ld_parts(pj, u % 2)
        for i in range(16):
            if i == P[0]:
                pv1(pj, 1)
                if not OPT["spread"]: emit(parts)
            if OPT["spread"] and i in (3, 7, 13): emit([parts[(3, 7, 13).index(i)]])
            if i == P[1]: qk(u, 1)
            if i == P[2]: pv0(u, 0)
            ex(0, i)
        for i in range(16):
            if i == P[0]: pv1(u, 0)
            if i == P[1]:
                a("s_waitcnt vmcnt(9)"); qk(nj, 0)
            if i == P[2]: pv0(u, 1)
            ex(1, i)
    if OPT["drop"]:
        a(f"s_cmp_lg_u32 s67, {9 - OPT['drop']}")
        a("s_cbranch_scc1 L_nodrop")
        a("s_setprio 0")
        if OPT["opre"]: a(f"buffer_load_dwordx2 {vr(vT,2)}, off, {WS}, s63 sc1")
        a.label("L_nodrop")
    a("s_sub_u32 s67, s67, 1")
    a("s_cmp_lg_u32 s67, 0")
    a("s_cbranch_scc1 L_loop")
    pv1(3, 1)
    stamp(a, 7)
    a(f"s_xor_b32 s54, {sSLOT}, 16384")
    a("s_nop 2")
    a(f"v_add_u32 v10, s54, v{vL16}")
    a("v_lshlrev_b32 v14, 2, v0")
    a("v_add_u32 v13, s54, v14")
    a(f"v_add_u32 v14, {sSLOT}, v14")
    a("s_lshl_b32 s54, s60, 15")
    a(f"s_lshl_b32 s55, {sWAVE}, 12")
    a("s_add_u32 s54, s54, s55")
    a(f"s_add_u32 s64, s54, {hex(O_OFF)}")
    a(f"ds_write_b128 v10, {vr(O[1],4)}")
    a(f"ds_write_b128 v10, {vr(O[1]+4,4)} offset:1024")
    a(f"ds_write_b32 v13, v{O[1]+8} offset:2048")
    a("s_waitcnt vmcnt(0) lgkmcnt(0)")
    a("s_barrier")
    stamp(a, 15)
    a(f"ds_read_b32 v{S[0]+8}, v14 offset:2048")
    a(f"ds_read_b128 {vr(S[0],4)}, v11")
    a(f"ds_read_b128 {vr(S[0]+4,4)}, v11 offset:1024")
    a(f"v_mov_b32 v13, {hex(f2u(2.0**-20))}")
    a(f"v_mov_b32 v1, {hex(f2u(2.0**60))}")
    a("s_waitcnt lgkmcnt(2)")
    a(f"v_add_f32 v{O[0]+8}, v{O[0]+8}, v{S[0]+8}")
    a(f"v_rcp_f32 v14, v{O[0]+8}")
    a("s_waitcnt lgkmcnt(0)")
    PK = 40
    def finish(add):
        for i in range(8):
            if add: a(f"v_add_f32 v{O[0]+i}, v{O[0]+i}, v{S[0]+i}")
        for i in range(8): a(f"v_mul_f32 v{S[0]+i}, v14, v{O[0]+i}")
        for i in range(4): a(f"v_cvt_pk_bf16_f32 v{PK+i}, v{S[0]+2*i}, v{S[0]+2*i+1}")
        a(f"buffer_store_dwordx4 {vr(PK,4)}, v{vL16}, {WS}, s58 offen sc1")
    finish(True)
    a(f"v_cmp_ge_f32 s[68:69], v{O[0]+8}, v13")
    a(f"v_cmp_le_f32 s[70:71], v{O[0]+8}, v1")
    a(f"v_mul_f32 v14, 0, v{O[0]}")
    for i in range(1, 8): a(f"v_fma_f32 v14, v{O[0]+i}, 0, v14")
    a("v_cmp_o_f32 vcc, v14, v14")
    a("s_and_b64 s[68:69], s[68:69], s[70:71]")
    a("s_nop 1")
    a("s_and_b64 s[68:69], s[68:69], vcc")
    a("s_cmp_eq_u64 s[68:69], -1")
    a("s_cbranch_scc0 L_fallback")
    a.label("L_fin")
    def poll_f(): a(f"buffer_load_dwordx2 {vr(vT,2)}, off, {WS}, s63 sc1")
    WF = 112
    wo_list = [(i, s_) for s_ in range(15, -1, -1) for i in range(2)]
    def rdWo(n):
        for _ in range(n):
            i, s_ = wo_list.pop(0)
            b = vA[i][s_ // 8]; o = (s_ % 8) * 8192; r = WF + 64*i + 4*s_
            a(f"ds_read_b64_tr_b16 {vr(r,2)}, v{b} offset:{o}")
            a(f"ds_read_b64_tr_b16 {vr(r+2,2)}, v{b} offset:{o+2048}")
    rdWo(7)
    a("s_waitcnt lgkmcnt(2)")
    rdWo(6)
    a("s_waitcnt vmcnt(0)")
    a("s_barrier")
    a(f"s_cmp_lg_u32 {sWAVE}, {sQUAD}")
    a("s_cbranch_scc1 L_noflag")
    if OPT["orep"]:
        a("s_mov_b64 exec, 0xff")
        a(f"buffer_store_dwordx2 {vr(vPD,2)}, v23, {WS}, s74 offen sc1")
    else:
        a("s_mov_b64 exec, 1")
        a(f"buffer_store_dwordx2 {vr(vPD,2)}, off, {WS}, s74 sc1")
    a("s_mov_b64 exec, -1")
    a("s_branch L_flagged")
    a.label("L_noflag")
    poll_f()
    a.label("L_flagged")
    stamp(a, 8)
    a(f"s_lshr_b32 s53, {sQUAD}, 2")
    a(f"s_cmp_lg_u32 s53, {sTT}")
    a("s_waitcnt lgkmcnt(0)")
    a("s_cbranch_scc1 L_noown")
    a(f"ds_write_b128 v{vOWN}, {vr(PK,4)}")
    a.label("L_noown")
    rdWo(7)
    a("s_waitcnt lgkmcnt(2)")
    rdWo(6)
    a(f"s_mov_b32 m0, {sSLOT}")
    a("s_waitcnt lgkmcnt(2)")
    rdWo(6)
    a(f"s_mov_b32 s53, {SPIN_MAX}")
    a(f"s_cmp_eq_u32 {sWAVE}, {sQUAD}")
    a("s_cbranch_scc1 L_oskip")
    if OPT["dpoll"]:
        a.label("L_ospin")
        a(f"buffer_load_dwordx2 v[24:25], off, {WS}, s63 sc1")
        a("s_waitcnt vmcnt(1)")
        a(f"v_cmp_eq_u64 vcc, {NONCE}, {vr(vT,2)}")
        a("s_sub_u32 s53, s53, 1")
        a("s_cbranch_scc1 L_ogo")
        a("s_cmp_eq_u64 vcc, -1")
        a("s_cbranch_scc1 L_ogo")
        a(f"s_sleep {OPT['dpoll']}")
        poll_f()
        a("s_waitcnt vmcnt(1)")
        a(f"v_cmp_eq_u64 vcc, {NONCE}, v[24:25]")
        a("s_nop 1")
        a("s_cmp_eq_u64 vcc, -1")
        a("s_cbranch_scc1 L_ogo")
        a(f"s_sleep {OPT['dpoll']}")
        a("s_branch L_ospin")
    else:
        a("s_branch L_ochk")
        a.label("L_ospin")
        poll_f()
        a.label("L_ochk")
        a("s_waitcnt vmcnt(0)")
        a(f"v_cmp_eq_u64 vcc, {NONCE}, {vr(vT,2)}")
        a("s_sub_u32 s53, s53, 1")
        a("s_cbranch_scc1 L_ogo")
        a("s_cmp_eq_u64 vcc, -1")
        a("s_cbranch_scc0 L_ospin")
    a.label("L_ogo")
    stamp(a, 9)
    for i in range(4):
        a(f"buffer_load_dwordx4 v{vL16}, {WS}, s64 offen offset:{i*1024} sc1 lds")
    a("s_waitcnt vmcnt(0)")
    stamp(a, 21)
    a.label("L_oskip")
    a("s_waitcnt lgkmcnt(0)")
    a("s_barrier")
    stamp(a, 10)
    ACC = 32; NB = OPT["nb"]
    def rd3(s_): a(f"ds_read_b128 {vr(44 + 4*(s_ % (NB+1)),4)}, v{vBO} offset:{s_*2048}")
    for s_ in range(NB): rd3(s_)
    for s_ in range(16):
        if s_ + NB < 16:
            rd3(s_ + NB); a(f"s_waitcnt lgkmcnt({NB})")
        else:
            a(f"s_waitcnt lgkmcnt({15 - s_})")
        f = 44 + 4*(s_ % (NB+1))
        for i in range(2):
            a(f"v_mfma_f32_16x16x32_bf16 {vr(ACC+4*i,4)}, {vr(WF+64*i+4*s_,4)}, {vr(f,4)}, " + ("0" if s_ == 0 else vr(ACC+4*i,4)))
    a("s_nop 7")
    for i in range(4): a(f"v_cvt_pk_bf16_f32 v{PK+i}, v{ACC+2*i}, v{ACC+2*i+1}")
    a("s_nop 1")
    a(f"v_permlane16_swap_b32 v{PK}, v{PK+2}")
    a(f"v_permlane16_swap_b32 v{PK+1}, v{PK+3}")
    a(f"buffer_store_dwordx4 {vr(PK,4)}, v{vSTO}, {OUT}, s62 offen" + ["", " sc1", " nt", " sc0 sc1", " sc1 nt"][OPT["ost"]])
    if OPT["probe"]:
        stamp(a, 17)
        a("s_memrealtime s[82:83]")
        a("s_waitcnt lgkmcnt(0)")
        a("s_sub_u32 s80, s80, s46")
        a("s_max_i32 s80, s80, 0")
        a("s_min_i32 s80, s80, 4000")
        a("s_lshl_b32 s80, s80, 2")
        a("s_add_u32 s80, s80, s82")
        a.label("L_probe")
        a("s_sleep 4")
        a("s_memrealtime s[82:83]")
        a("s_waitcnt lgkmcnt(0)")
        a("s_sub_u32 s82, s82, s80")
        a("s_cmp_lt_i32 s82, 0")
        a("s_cbranch_scc1 L_probe")
    if OPT["stamp"]:
        stamp(a, 17)
        a("s_waitcnt vmcnt(0)")
        stamp(a, 11); stamp_out(a)
    a.label("L_end")
    a("s_endpgm")
    a.label("L_fallback")
    a("s_lshl_b32 s53, s56, 17")
    a("s_mov_b32 s54, 0")
    a("v_mov_b32 v14, 0xff800000")
    a.label("L_fb1")
    a(f"buffer_load_dwordx4 {vr(KV[0],4)}, v{vL16}, {WS}, s53 offen sc1")
    a("s_waitcnt vmcnt(0)")
    qk(0, 0)
    a("s_add_u32 s53, s53, 2048")
    a("s_add_u32 s54, s54, 1")
    a("s_nop 7"); a("s_nop 3")
    for i in range(8): a(f"v_max3_f32 v14, v{S[0]+2*i}, v{S[0]+2*i+1}, v14")
    a("s_cmp_lt_u32 s54, 64")
    a("s_cbranch_scc1 L_fb1")
    a("v_mov_b32 v1, v14")
    a("s_nop 1")
    a("v_permlane32_swap_b32 v14, v1")
    a("s_nop 1")
    a("v_max_f32 v14, v14, v1")
    for i in range(16): a(f"v_sub_f32 v{S[1]+i}, 0, v14")
    for i in range(16): a(f"v_mov_b32 v{O[0]+i}, 0")
    a("s_lshl_b32 s53, s56, 17")
    a("s_mov_b32 s54, 0")
    a.label("L_fb2")
    a(f"buffer_load_dwordx4 {vr(KV[0],4)}, v{vL16}, {WS}, s53 offen sc1")
    a(f"s_mov_b64 exec, {VMASK}")
    a(f"buffer_load_dwordx4 {vr(KV[0]+4,4)}, v{vVO}, {WS}, s53 offen sc1")
    a(f"buffer_load_dwordx4 {vr(KV[0]+8,4)}, v{vVO}, {WS}, s53 offen offset:512 sc1")
    a("s_mov_b64 exec, -1")
    a("s_waitcnt vmcnt(0)")
    a(f"v_mfma_f32_32x32x16_bf16 {vr(S[0],16)}, {vr(KV[0],4)}, {vr(QA,4)}, {vr(S[1],16)}")
    a("s_add_u32 s53, s53, 2048")
    a("s_add_u32 s54, s54, 1")
    a("s_nop 7"); a("s_nop 3")
    for i in range(16): ex(0, i)
    a("s_nop 1")
    pv0(0, 0); pv1(0, 0)
    a("s_cmp_lt_u32 s54, 64")
    a("s_cbranch_scc1 L_fb2")
    a("s_nop 7"); a("s_nop 7")
    a(f"v_rcp_f32 v14, v{O[0]+8}")
    a("s_nop 0")
    finish(False)
    a("s_branch L_fin")
    return f"""
.section .rodata,"a"
.p2align 6
.amdhsa_kernel {name}
  .amdhsa_next_free_vgpr 256
  .amdhsa_next_free_sgpr 100
  .amdhsa_accum_offset 256
  .amdhsa_group_segment_fixed_size 0
  .amdhsa_kernarg_size 48
  .amdhsa_user_sgpr_count 2
  .amdhsa_user_sgpr_kernarg_segment_ptr 1
  .amdhsa_system_sgpr_workgroup_id_x 1
.end_amdhsa_kernel
"""

def main(path):
    a = Asm()
    a.raw("; @launch grid=(256,1,1) block=(512,1,1) lds=163840")
    a.raw('.amdgcn_target "amdgcn-amd-amdhsa--gfx950"')
    a.raw(".text")
    d = gen(a)
    open(path, "w").write(a.text() + d)

if __name__ == "__main__":
    for kv in sys.argv[2:]:
        k, v = kv.split("="); assert k in OPT, k; OPT[k] = int(v)
    main(sys.argv[1])
```

```python
import math, struct, sys

def f2u(x): return struct.unpack("<I", struct.pack("<f", x))[0]
CSCALE = 0.25 * math.log2(math.e)
O_OFF = 4 << 20
IKV_OFF = 6 << 20
IO_OFF = (6 << 20) + (256 << 10)
WB = 65536
R3 = 131072
SPIN_MAX = 1 << 16

class Asm:
    def __init__(self): self.l = []
    def __call__(self, s): self.l.append("    " + s)
    def label(self, s): self.l.append(s + ":")
    def raw(self, s): self.l.append(s)
    def c(self, s): self.l.append("    ; " + s)
    def text(self): return "\n".join(self.l) + "\n"
def vr(a, n): return f"v[{a}:{a+n-1}]"

OPT = dict(nq1=3, fstep=5, early=1, dsub=1, wob=4, wobi=1, rotm=2, xl=4, wlate=1, reinst=0, lastm=0, probe=0, ipf=68, orep=1, dpoll=0, nb=7, smmax=2, p1=1, sm=1, smsleep=0, smprio=0, tail=0, opoll=0, ioff=1020, ost=0, word=0, kvs=32, os=128, kpre=0, opre=1, epos=0, osleep=0, dpos=1, look=3, stamp=0, xmap=2, sleep=1, rot=1, qpf=1, noncep=2, drop=6, spread=1, worot=1)

vST_RT, vST_CY = 252, 253
REMAP = {12: 1, 13: None, 1: None, 2: 2, 3: 3, 14: None, 18: 4, 16: None, 5: 5, 6: None, 19: 6, 7: 7, 15: 8, 8: 9, 9: 10, 10: 11, 17: 12, 11: 13, 20: None}
def stamp(a, i):
    if OPT["probe"] == i:
        a("s_memrealtime s[80:81]")
        a("s_waitcnt lgkmcnt(0)")
    if not OPT["stamp"]: return
    if OPT["stamp"] == 3 and i not in (7, 11, OPT["tail"]): return
    if OPT["stamp"] == 4 and i not in (7, 15, 8, 9, 21, 10, 17, 11): return
    if OPT["stamp"] == 5 and i not in (3, 24, 5, 22, 23, 19, 7, 11): return
    if OPT["stamp"] in (1, 2) and i >= 21: return
    if OPT["stamp"] == 2:
        i = REMAP[i]
        if i is None: return
    a("s_memrealtime s[80:81]")
    a("s_memtime s[82:83]")
    a("s_waitcnt lgkmcnt(0)")
    a(f"v_writelane_b32 v{vST_RT}, s80, {i}")
    a(f"v_writelane_b32 v{vST_CY}, s82, {i}")
def stamp_out(a):
    if not OPT["stamp"]: return
    a(f"s_add_u32 s76, s38, {hex(16<<20)}")
    a("s_addc_u32 s77, s39, 0")
    a("s_and_b32 s77, s77, 0xffff")
    a("s_mov_b32 s78, 0x100000")
    a("s_mov_b32 s79, 0x00020000")
    a("s_lshl_b32 s80, s2, 3")
    a("s_add_u32 s80, s80, s42")
    a("s_lshl_b32 s80, s80, 8")
    a("v_lshlrev_b32 v1, 2, v0")
    if OPT["stamp"] == 2:
        a("v_not_b32 v10, v252")
        a("v_cmp_eq_u32 vcc, 0, v0")
        a("s_nop 1")
        a("v_cndmask_b32 v10, v252, v10, vcc")
        a("s_mov_b64 exec, 0x3fff")
        a(f"buffer_atomic_umax v10, v1, {DBG}, 0 offen offset:8 sc1")
        a("s_waitcnt vmcnt(0)")
        return
    a("s_mov_b32 exec_hi, 0")
    a(f"buffer_store_dword v{vST_RT}, v1, s[76:79], s80 offen")
    a(f"buffer_store_dword v{vST_CY}, v1, s[76:79], s80 offen offset:128")

def srd(a, d, base, size):
    a(f"s_mov_b32 s{d}, s{base}")
    a(f"s_and_b32 s{d+1}, s{base+1}, 0xffff")
    a(f"s_mov_b32 s{d+2}, {hex(size)}")
    a(f"s_mov_b32 s{d+3}, 0x00020000")

X, W, WS, WO, OUT, DBG = "s[12:15]", "s[16:19]", "s[20:23]", "s[24:27]", "s[28:31]", "s[32:35]"
sQUAD, sRB, sWAVE, sHD, sTT = "s40", "s41", "s42", "s43", "s44"
sSLOT = "s45"
NONCE = "s[46:47]"
VMASK = "s[48:49]"
sKVOWN = "s50"
sKVH = "s51"
sW1K = "s52"
def sXT(p): return f"s{84+p}"
def sWT(p): return f"s{92+p}"
vL16, vIDX, vXD, vWD, vXR0, vXR1, vWR, vVO = 2, 3, 4, 5, 6, 7, 8, 9
AK, AV, AQ = 16, 24, 32
FW = [[40, 44, 48, 52], [32, 36, 104, 108]]
vWR4 = 254
vA = [[16, 17], [18, 19]]; vBO, vSTO, vOWN = 20, 21, 22
ONES = "s[72:73]"
KV = [56, 68, 80, 92]
QA, QB = 104, 108
XF = 112
O = [112, 128]; S = [144, 160]
vWO = [240, 241]; vPOLL = 242; vPD = 244; vKPOS = 246; vKG = 247; vVG = 248; vWQ = 249; vT = 250

def gen(a):
    name = "standalone__mha_block__prompt_kernel"
    a.raw(f".globl {name}"); a.raw(".p2align 8"); a.raw(f".type {name},@function"); a.label(name)
    a("s_cmp_ge_u32 s2, 256")
    a("s_cbranch_scc1 L_end")
    a("s_load_dwordx4 s[4:7], s[0:1], 0")
    a("s_load_dwordx4 s[36:39], s[0:1], 32")
    a("s_load_dwordx4 s[8:11], s[0:1], 16")
    a(f"s_memrealtime {NONCE}")
    if OPT["stamp"]: a("s_memtime s[82:83]")
    if OPT["ipf"]:
        a("s_getpc_b64 s[76:77]")
        a("v_lshlrev_b32 v1, 7, v0")
        a(f"v_cmp_gt_u32 vcc, {OPT['ipf']}, v0")
        a("s_and_saveexec_b64 s[78:79], vcc")
        a("s_cbranch_execz L_noipf")
        a(f"global_load_dword v{vT+1}, v1, s[76:77]")
        a.label("L_noipf")
        a("s_mov_b64 exec, -1")
    a("v_lshrrev_b32 v1, 6, v0")
    a("v_and_b32 v0, 63, v0")
    a(f"v_readfirstlane_b32 {sWAVE}, v1")
    xm = OPT["xmap"]
    a("s_and_b32 s3, s2, 7")
    a("s_lshr_b32 s53, s2, 3")
    lg = {1: 0, 2: 1, 4: 2, 8: 3}[xm]
    a(f"s_and_b32 s54, s3, {8//xm - 1}")
    a(f"s_lshl_b32 s54, s54, {lg}")
    a(f"s_and_b32 s55, s53, {xm-1}")
    a(f"s_add_u32 {sQUAD}, s54, s55")
    a(f"s_lshr_b32 s54, s3, {3-lg}")
    a(f"s_lshl_b32 s54, s54, {5-lg}")
    a(f"s_lshr_b32 s55, s53, {lg}")
    a(f"s_add_u32 {sRB}, s54, s55")
    a(f"s_and_b32 {sHD}, {sWAVE}, 3")
    a(f"s_lshr_b32 {sTT}, {sWAVE}, 2")
    a(f"s_lshl_b32 {sW1K}, {sWAVE}, 10")
    a(f"v_lshlrev_b32 v{vL16}, 4, v0")
    a("v_lshrrev_b32 v10, 3, v0")
    a("v_and_b32 v11, 7, v0")
    a("v_lshrrev_b32 v12, 4, v0")
    a(f"s_and_b32 s53, {sWAVE}, 1")
    a("s_lshl_b32 s54, s53, 2")
    a("v_xor_b32 v13, v11, v12")
    a("v_xor_b32 v13, s54, v13")
    a(f"s_lshl_b32 s55, {sWAVE}, 3")
    a("v_add_u32 v10, s55, v10")
    a(f"s_lshl_b32 s55, {sRB}, 16")
    a("v_lshlrev_b32 v14, 10, v10")
    a("v_lshl_add_u32 v14, v13, 4, v14")
    a(f"v_add_u32 v{vXD}, s55, v14")
    a("v_and_b32 v12, 1, v12")
    a("v_lshlrev_b32 v12, 1, v12")
    a("v_xor_b32 v13, v11, v12")
    a("v_xor_b32 v13, s54, v13")
    a("v_mul_u32_u24 v14, 3072, v10")
    a("v_lshl_add_u32 v14, v13, 4, v14")
    a(f"s_lshl_b32 s55, {sQUAD}, 7")
    a(f"v_add_u32 v{vWD}, s55, v14")
    if OPT["rot"]:
        if OPT["rotm"] == 2:
            a(f"s_add_u32 s53, {sQUAD}, {sRB}")
        else:
            a(f"s_lshl_b32 s53, {sQUAD}, {3-lg}")
            a(f"s_add_u32 s53, s53, {sRB}")
            if OPT["rotm"] == 1:
                a(f"s_lshr_b32 s54, {sQUAD}, {lg}")
                a("s_add_u32 s53, s53, s54")
    else:
        a("s_mov_b32 s53, 0")
    for p in range(8):
        a("s_and_b32 s53, s53, 7")
        a(f"s_lshl_b32 {sXT(p)}, s53, 7")
        a(f"s_mul_i32 {sWT(p)}, s53, 196608")
        if p < 7: a("s_add_u32 s53, s53, 1")
    a(f"v_and_b32 v12, {min(16*xm, 64) - 1}, v0")
    a(f"s_lshl_b32 s53, {sRB}, {4+lg}")
    a("s_and_b32 s53, s53, 511")
    a("v_add_u32 v12, s53, v12")
    a("v_mul_u32_u24 v15, 3072, v12")
    a("s_waitcnt lgkmcnt(0)")
    if OPT["stamp"]:
        a(f"v_writelane_b32 v{vST_RT}, s46, 0"); a(f"v_writelane_b32 v{vST_CY}, s82, 0")
    stamp(a, 12)
    srd(a, 12, 4, 2048*1024); srd(a, 16, 6, 512*3072)
    issued = []
    def dma_x(p):
        a(f"s_add_u32 m0, {sW1K}, {p*8192}")
        a("s_nop 0")
        a(f"buffer_load_dwordx4 v{vXD}, {X}, {sXT(p)} offen lds"); issued.append(("x", p))
    def dma_w(t, p, dest, tag):
        a(f"s_add_u32 m0, {sW1K}, {dest - t*1024}")
        a("s_nop 0")
        a(f"buffer_load_dwordx4 v{vWD}, {W}, {sWT(p)} offen offset:{t*1024} lds"); issued.append(tag)
    def dma_kv(p):
        dma_w(1, p, WB + (p%5)*16384, ("kv", p)); dma_w(2, p, WB + (p%5)*16384 + 8192, ("kv", p))
    QDEST = [0, 8192, 16384, 24576, 32768, WB + 3*16384, WB + 3*16384 + 8192, 40960]
    if OPT["word"]:
        a(f"s_bitcmp1_b32 {sWAVE}, 0")
        a("s_cbranch_scc1 L_wfirst")
        dma_x(0); dma_kv(0)
        a("s_branch L_wdone")
        a.label("L_wfirst")
        del issued[:]
        dma_kv(0); dma_x(0)
        a.label("L_wdone")
    else:
        dma_x(0); dma_kv(0)
    srd(a, 32, 36, 256)
    a("s_or_b32 s46, s46, 1")
    a(f"s_or_b32 s53, s2, {sWAVE}")
    a("s_cmp_lg_u32 s53, 0")
    a("s_cbranch_scc1 L_nonon")
    a("v_mov_b32 v10, s46"); a("v_mov_b32 v11, s47")
    a("s_mov_b64 exec, 1")
    a(f"buffer_store_dwordx2 v[10:11], off, {DBG}, 0 sc1")
    a("s_mov_b64 exec, -1")
    a.label("L_nonon")
    if OPT["qpf"]:
        a(f"s_cmp_lg_u32 {sWAVE}, 7")
        a("s_cbranch_scc1 L_noqpf")
        a(f"buffer_load_dword v{vT}, v15, {W}, s55 offen")
        if xm == 8:
            a("s_add_u32 s53, s55, 196608")
            a(f"buffer_load_dword v{vT}, v15, {W}, s53 offen")
        a.label("L_noqpf")
    LOOK = OPT["look"]
    XL = OPT["xl"] or LOOK
    if OPT["xl"]:
        for p in range(1, XL): dma_x(p)
        if not OPT["wlate"]:
            for p in range(1, LOOK): dma_kv(p)
    else:
        for p in range(1, LOOK):
            dma_x(p); dma_kv(p)
    stamp(a, 13)
    srd(a, 20, 38, 8 << 20); srd(a, 24, 8, 512*1024); srd(a, 28, 10, 2048*1024)
    a(f"s_lshl_b32 {sSLOT}, {sWAVE}, 12")
    a(f"s_add_u32 {sSLOT}, {sSLOT}, {R3}")
    a(f"s_lshl_b32 s53, {sQUAD}, 2")
    a(f"s_add_u32 s56, s53, {sHD}")
    a("s_lshl_b32 s53, s56, 17")
    a(f"s_lshl_b32 s54, {sTT}, 11")
    a(f"s_add_u32 {sKVH}, s53, s54")
    a(f"s_lshl_b32 s54, {sRB}, 12")
    a(f"s_add_u32 {sKVOWN}, {sKVH}, s54")
    a(f"s_lshl_b32 s53, {sRB}, 1")
    a(f"s_add_u32 s57, s53, {sTT}")
    a("s_lshl_b32 s53, s57, 15")
    a("s_lshl_b32 s54, s56, 10")
    a("s_add_u32 s58, s53, s54")
    a(f"s_add_u32 s58, s58, {hex(O_OFF)}")
    a(f"s_mul_i32 s63, {sQUAD}, {32*OPT['kvs']}")
    a(f"s_add_u32 s63, s63, {hex(IKV_OFF)}")
    a("v_and_b32 v12, 31, v0")
    a(f"v_mul_u32_u24 v{vPOLL}, {OPT['kvs']}, v12")
    a(f"s_lshr_b32 s53, {sQUAD}, 2")
    a(f"s_lshl_b32 s54, {sRB}, 1")
    a("s_add_u32 s60, s53, s54")
    a(f"s_and_b32 s61, {sQUAD}, 3")
    a("s_lshl_b32 s61, s61, 8")
    a("s_lshl_b32 s53, s60, 15")
    a("s_add_u32 s62, s53, s61")
    a(f"s_lshl_b32 s53, {sHD}, 6")
    a("s_add_u32 s62, s62, s53")
    a(f"s_lshl_b32 s53, {sTT}, 14")
    a("s_add_u32 s62, s62, s53")
    a("v_and_b32 v10, 15, v0")
    a("v_lshrrev_b32 v11, 4, v0")
    a("v_bfe_u32 v12, v0, 1, 3")
    a("v_xor_b32 v12, v11, v12")
    a(f"s_lshl_b32 s53, {sTT}, 12")
    a("v_lshlrev_b32 v13, 7, v10")
    a("v_add_u32 v13, s53, v13")
    a(f"v_lshl_add_u32 v{vXR0}, v12, 4, v13")
    a(f"v_xor_b32 v{vXR1}, 64, v{vXR0}")
    a("v_bfe_u32 v12, v0, 2, 2")
    a("v_lshl_add_u32 v13, v11, 3, v12")
    a("v_lshlrev_b32 v13, 7, v13")
    a("v_bfe_u32 v14, v0, 3, 2")
    a(f"v_xor_b32 v14, {sHD}, v14")
    a("v_lshl_add_u32 v13, v14, 5, v13")
    a("v_and_b32 v14, 3, v0")
    a(f"v_lshl_add_u32 v{vWQ}, v14, 3, v13")
    a(f"v_add_u32 v{vWR}, {WB}, v{vWQ}")
    a(f"v_add_u32 v{vWR4}, {R3}, v{vWQ}")
    a("v_lshrrev_b32 v12, 5, v0")
    a("v_lshlrev_b32 v12, 8, v12")
    a("v_lshl_add_u32 v12, v10, 4, v12")
    a(f"v_add_u32 v{vVO}, 1024, v12")
    a(f"v_add_u32 v{vKG}, {sKVH}, v{vL16}")
    a(f"v_add_u32 v{vVG}, {sKVH}, v{vVO}")
    a("v_and_b32 v12, 0x23, v0")
    a("v_bfe_u32 v13, v0, 2, 2")
    a("v_lshl_add_u32 v12, v13, 3, v12")
    a("v_bfe_u32 v13, v0, 4, 1")
    a("v_lshl_add_u32 v12, v13, 2, v12")
    a(f"v_lshlrev_b32 v{vKPOS}, 4, v12")
    if OPT["wob"]:
        a("v_lshrrev_b32 v12, 4, v0")
    else:
        a("v_lshrrev_b32 v12, 5, v0")
        a("v_lshlrev_b32 v12, 1, v12")
    a(f"s_lshl_b32 s53, {sWAVE}, 2")
    a("v_add_u32 v12, s53, v12")
    for e in range(1 if OPT["wob"] else 2):
        if e: a("v_add_u32 v12, 1, v12")
        a("v_and_b32 v13, 7, v12")
        a("v_lshlrev_b32 v13, 1, v13")
        a("v_xor_b32 v13, v10, v13")
        a("v_lshlrev_b32 v14, 10, v12")
        a("v_lshl_add_u32 v14, v13, 4, v14")
        a(f"v_add_u32 v{vWO[e]}, s61, v14")
    a(f"v_mov_b32 v{vIDX}, 0xdddddddd")
    a("s_mov_b32 s48, 0xffff"); a("s_mov_b32 s49, 0xffff")
    a("v_and_b32 v12, 27, v0")
    a("v_cmp_eq_u32 vcc, 16, v12")
    a("v_mov_b32 v15, 0x3f803f80")
    a("s_nop 0")
    for j in range(4):
        for i in range(8): a(f"v_cndmask_b32 v{KV[j]+4+i}, 0, v15, vcc")
    if OPT["xl"] and OPT["wlate"]:
        for p in range(1, LOOK): dma_kv(p)
    stamp(a, 1)

    def waitvm(pred):
        last = max(i for i, t in enumerate(issued) if pred(t))
        a(f"s_waitcnt vmcnt({len(issued) - 1 - last})")
    def xf(p, s): return XF + 8*(2*p + s)
    def rd_w(base, off, r):
        a(f"ds_read_b64_tr_b16 {vr(r,2)}, v{base} offset:{off}")
        a(f"ds_read_b64_tr_b16 {vr(r+2,2)}, v{base} offset:{off + 512}")
    def readsA(p):
        fw = FW[p % 2]
        for s in range(2):
            b = vXR0 if s == 0 else vXR1; f = xf(p, s)
            a(f"ds_read_b128 {vr(f,4)}, v{b} offset:{p*8192}")
            a(f"ds_read_b128 {vr(f+4,4)}, v{b} offset:{p*8192+2048}")
            wb, wo = (vWR, (p%5)*16384) if p % 5 < 4 else (vWR4, 0)
            rd_w(wb, wo + s*4096, fw[2*s]); rd_w(wb, wo + 8192 + s*4096, fw[2*s+1])
    def mfmaA(p, s):
        f = xf(p, s); wk, wv = FW[p % 2][2*s], FW[p % 2][2*s+1]
        def c(r): return "0" if p == 0 and s == 0 else vr(r, 4)
        a(f"v_mfma_f32_16x16x32_bf16 {vr(AK,4)}, {vr(wk,4)}, {vr(f,4)}, {c(AK)}")
        a(f"v_mfma_f32_16x16x32_bf16 {vr(AK+4,4)}, {vr(wk,4)}, {vr(f+4,4)}, {c(AK+4)}")
        a(f"v_mfma_f32_16x16x32_bf16 {vr(AV,4)}, {vr(f,4)}, {vr(wv,4)}, {c(AV)}")
        a(f"v_mfma_f32_16x16x32_bf16 {vr(AV+4,4)}, {vr(f+4,4)}, {vr(wv,4)}, {c(AV+4)}")
    QSCHED = {5: [0, 1, 2], 6: [3, 4, 5], 7: [6, 7]} if LOOK == 3 else {6: [0, 1, 2, 3], 7: [4, 5, 6, 7]}
    for p in range(8):
        waitvm(lambda t: t[1] == p and t[0] in ("x", "kv"))
        a("s_barrier")
        if p == 0: stamp(a, 2)
        if p >= 1: a("s_waitcnt lgkmcnt(0)")
        def grab(fn):
            n0 = len(a.l); fn(); out = a.l[n0:]; del a.l[n0:]; return out
        rd = grab(lambda: readsA(p))
        mf = grab(lambda: (mfmaA(p-1, 0), mfmaA(p-1, 1))) if p >= 1 and not (p == 7 and OPT["lastm"]) else []
        dm = []
        if p + XL < 8 and XL == LOOK: dm.append(grab(lambda: dma_x(p + XL)))
        if p + LOOK < 8:
            kvl = grab(lambda: dma_kv(p + LOOK)); dm += [kvl[:3], kvl[3:]]
        if p + XL < 8 and XL != LOOK: dm.append(grab(lambda: dma_x(p + XL)))
        for j in QSCHED.get(p, []): dm.append(grab(lambda: dma_w(0, j, QDEST[j], ("q", j))))
        dpos = OPT["dpos"]
        k = 0
        for i in range(12):
            if dpos == 0 and i % 4 == 0 and i // 4 < len(dm): a.l += dm[i // 4]
            a.l.append(rd[i])
            while k < len(mf) and k < (i + 1) * 8 // 12:
                a.l.append(mf[k]); k += 1
            if dpos == 1 and i % 4 == 3 and i // 4 < len(dm): a.l += dm[i // 4]
        for d in (dm if dpos == 2 else dm[3:]): a.l += d
        if p == OPT["noncep"]:
            a(f"s_cmp_lg_u32 {sWAVE}, 0")
            a("s_cbranch_scc1 L_nf1")
            a(f"buffer_load_dwordx2 {vr(vPD,2)}, off, {DBG}, 0 sc1")
            if OPT["kpre"]: a(f"buffer_load_dwordx2 {vr(vT,2)}, v{vPOLL}, {WS}, s63 offen sc1")
            a.label("L_nf1")
        if p == 6 and OPT["lastm"]:
            a("s_waitcnt lgkmcnt(6)")
            mfmaA(6, 0)
            a("s_waitcnt lgkmcnt(0)")
            mfmaA(6, 1)
    a("s_waitcnt lgkmcnt(6)")
    mfmaA(7, 0)
    a("s_waitcnt lgkmcnt(0)")
    mfmaA(7, 1)
    stamp(a, 3)
    F = 40
    a(f"v_add_u32 v10, {sSLOT}, v{vKPOS}")
    a(f"v_add_u32 v11, {sSLOT}, v{vL16}")
    a(f"v_add_u32 v12, {sSLOT}, v{vVO}")
    a("s_nop 4")
    for i in range(4): a(f"v_cvt_pk_bf16_f32 v{F+i}, v{AK+2*i}, v{AK+2*i+1}")
    for i in range(4): a(f"v_cvt_pk_bf16_f32 v{F+4+i}, v{AV+2*i}, v{AV+2*i+1}")
    a(f"v_permlane16_swap_b32 v{F}, v{F+2}")
    a(f"v_permlane16_swap_b32 v{F+1}, v{F+3}")
    a(f"buffer_store_dwordx4 {vr(F+4,4)}, v{vL16}, {WS}, {sKVOWN} offen offset:1024 sc1")
    a(f"buffer_store_dwordx4 {vr(F,4)}, v{vKPOS}, {WS}, {sKVOWN} offen sc1")
    a(f"ds_write_b128 v11, {vr(F+4,4)} offset:1024")
    a(f"ds_write_b128 v10, {vr(F,4)}")
    a("s_waitcnt lgkmcnt(0)")
    a(f"ds_read_b128 {vr(KV[0],4)}, v11")
    a(f"s_mov_b64 exec, {VMASK}")
    a(f"ds_read_b128 {vr(KV[0]+4,4)}, v12")
    a(f"ds_read_b128 {vr(KV[0]+8,4)}, v12 offset:512")
    a("s_mov_b64 exec, -1")
    NQ1 = OPT["nq1"]
    a(f"s_waitcnt vmcnt({2 + 8 - NQ1})")
    a(f"s_cmp_lg_u32 {sWAVE}, 0")
    a("s_cbranch_scc1 L_nf2")
    a(f"s_mov_b32 s53, {SPIN_MAX}")
    a.label("L_nspin")
    a(f"v_readfirstlane_b32 s54, v{vPD}")
    a("s_sub_u32 s53, s53, 1")
    a("s_cbranch_scc1 L_ngot")
    a("s_cmp_lg_u32 s54, 0")
    a("s_cbranch_scc1 L_ngot")
    a("s_sleep 2")
    a(f"buffer_load_dwordx2 {vr(vPD,2)}, off, {DBG}, 0 sc1")
    a("s_waitcnt vmcnt(0)")
    a("s_branch L_nspin")
    a.label("L_ngot")
    a(f"v_mov_b32 v10, {R3 + 2816}")
    a(f"ds_write_b64 v10, {vr(vPD,2)}")
    a.label("L_nf2")
    a("s_waitcnt lgkmcnt(0)")
    a("s_barrier")
    stamp(a, 14)
    a(f"v_mov_b32 v10, {R3 + 2816}")
    a(f"ds_read_b64 {vr(vPD,2)}, v10")
    BS = [48, 52, 16, 20, 24, 28, 40, 44]
    lg_q = ["n"]
    def readsB(st):
        p, s = divmod(st, 2)
        d = QDEST[p]
        if d < WB: rd_w(vWQ, d + s*4096, BS[st % 8])
        else: rd_w(vWR, d - WB + s*4096, BS[st % 8])
        lg_q.extend([st, st])
    def waitB(st):
        last = max(i for i, t in enumerate(lg_q) if t == st)
        a(f"s_waitcnt lgkmcnt({len(lg_q) - 1 - last})")
        del lg_q[:last + 1]
    FS = OPT["fstep"]; lim = 2 * NQ1; nxt = 0
    assert FS <= lim
    def top_up(st, limit):
        nonlocal nxt
        while nxt < min(limit, st + 6):
            readsB(nxt); nxt += 1
    a(f"s_mul_i32 s54, {sRB}, {OPT['kvs']}")
    a("s_add_u32 s53, s63, s54")
    for st in range(16):
        if st == FS:
            a("s_waitcnt vmcnt(0)")
            stamp(a, 18)
            a("s_barrier")
            a(f"s_cmp_lg_u32 {sWAVE}, 0")
            a("s_cbranch_scc1 L_nflag")
            a("s_mov_b64 exec, 1")
            a(f"buffer_store_dwordx2 {vr(vPD,2)}, off, {WS}, s53 sc1")
            a("s_mov_b64 exec, -1")
            a.label("L_nflag")
            if OPT["reinst"]:
                a("v_and_b32 v10, 15, v0")
                a("v_lshlrev_b32 v10, 7, v10")
                a(f"buffer_load_dword v{vT}, v10, {WS}, {sKVOWN} offen sc1")
            stamp(a, 24)
            if OPT["stamp"] in (1, 2, 5) or OPT["probe"] in (18, 24): del lg_q[:]
        top_up(st, lim if st < FS else 16)
        if st in lg_q: waitB(st)
        if st == 0:
            a(f"v_readfirstlane_b32 s46, v{vPD}")
            a(f"v_readfirstlane_b32 s47, v{vPD+1}")
        f = XF + 8*st; w = BS[st % 8]
        c0, c1 = ("0", "0") if st == 0 else (vr(AQ,4), vr(AQ+4,4))
        a(f"v_mfma_f32_16x16x32_bf16 {vr(AQ,4)}, {vr(w,4)}, {vr(f,4)}, {c0}")
        a(f"v_mfma_f32_16x16x32_bf16 {vr(AQ+4,4)}, {vr(w,4)}, {vr(f+4,4)}, {c1}")
        if st == 2:
            for i in range(4): a(f"v_mov_b32 v{12+i}, 0")
        if st == 3:
            a(f"v_mfma_f32_32x32x16_bf16 {vr(O[0],16)}, v[12:15], v[12:15], 0")
            a(f"v_mfma_f32_32x32x16_bf16 {vr(O[1],16)}, v[12:15], v[12:15], 0")
        if st == FS and OPT["opoll"]:
            for i in range(4): a(f"v_mov_b32 v{12+i}, -1")
            a(f"buffer_store_dwordx4 v[12:15], v{vL16}, {WS}, s58 offen sc1")
    a(f"s_mov_b32 s53, {hex(f2u(CSCALE))}")
    a(f"s_xor_b32 s54, {sSLOT}, 16384")
    a(f"v_add_u32 v10, s54, v{vL16}")
    a("s_nop 2")
    a(f"s_lshl_b32 s64, {sRB}, 12")
    a(f"s_add_u32 s68, {sW1K}, 256")
    for i in range(8): a(f"v_mul_f32 v{AQ+i}, s53, v{AQ+i}")
    for i in range(4): a(f"v_cvt_pk_bf16_f32 v{QA+i}, v{AQ+2*i}, v{AQ+2*i+1}")
    if OPT["worot"]:
        a(f"s_lshl_b32 s65, {sRB}, 13"); a("s_and_b32 s65, s65, 0x1ffff")
    else:
        a("s_mov_b32 s65, 0"); a("s_nop 0")
    a(f"v_permlane16_swap_b32 v{QA}, v{QA+2}")
    a(f"v_permlane16_swap_b32 v{QA+1}, v{QA+3}")
    a(f"ds_write_b128 v10, {vr(QA,4)} offset:3072")
    def qk(j, q, c="0.15915494"): a(f"v_mfma_f32_32x32x16_bf16 {vr(S[q],16)}, {vr(KV[j],4)}, {vr(QA if q == 0 else QB,4)}, {c}")
    def pv0(j, q): a(f"v_smfmac_f32_32x32x32_bf16 {vr(O[q],16)}, {vr(KV[j]+4,4)}, {vr(S[q],8)}, v{vIDX}")
    def pv1(j, q): a(f"v_smfmac_f32_32x32x32_bf16 {vr(O[q],16)}, {vr(KV[j]+8,4)}, {vr(S[q]+8,8)}, v{vIDX}")
    def ex(q, i): a(f"v_exp_f32 v{S[q]+i}, v{S[q]+i}")
    a("s_lshl_b32 s66, s65, 2")
    qk(0, 0)
    def poll_kv(): a(f"buffer_load_dwordx2 {vr(vT,2)}, v{vPOLL}, {WS}, s63 offen sc1")
    REPL = 8 if OPT["orep"] else 1
    a(f"s_lshl_b32 s53, {sRB}, 3")
    a(f"s_add_u32 s54, s53, {sQUAD}")
    a(f"s_mul_i32 s54, s54, {OPT['os']*REPL}")
    a(f"s_add_u32 s74, s54, {hex(IO_OFF)}")
    a(f"s_add_u32 s75, s53, {sWAVE}")
    a(f"s_mul_i32 s75, s75, {OPT['os']*REPL}")
    if OPT["orep"]:
        a(f"s_mul_i32 s54, {sQUAD}, {OPT['os']}")
        a("s_add_u32 s75, s75, s54")
    stamp(a, 16)
    a("s_waitcnt lgkmcnt(0)")
    a("s_barrier")
    a(f"ds_read_b128 {vr(QB,4)}, v11 offset:3072")
    if OPT["early"] and OPT["epos"] == 0: poll_kv()
    stamp(a, 5)
    a("s_nop 1")
    a("s_mov_b32 s67, 8")
    a(f"s_mov_b32 s53, {SPIN_MAX}")
    ex(0, 0); ex(0, 1); ex(0, 2); ex(0, 3)
    a("s_waitcnt lgkmcnt(0)")
    qk(0, 1)
    if OPT["early"] and OPT["epos"] == 1: poll_kv()
    for i in range(4, 11): ex(0, i)
    pv0(0, 0)
    if OPT["early"] and OPT["epos"] == 2: poll_kv()
    for i in range(11, 16): ex(0, i)
    def unit01():
        ex(1, 0); ex(1, 1)
        pv1(0, 0)
        for i in range(2, 11): ex(1, i)
        pv0(0, 1)
        for i in range(11, 16): ex(1, i)
    def ld_parts(j, e):
        if OPT["wob"]: e = None
        p0 = ["s_add_u32 s64, s64, 4096", "s_and_b32 s64, s64, 0x1ffff",
              f"buffer_load_dwordx4 {vr(KV[j],4)}, v{vKG}, {WS}, s64 offen sc1"]
        p1 = [f"s_mov_b64 exec, {VMASK}", f"buffer_load_dwordx4 {vr(KV[j]+4,4)}, v{vVG}, {WS}, s64 offen sc1"]
        if e is not None: p1.append(f"s_add_u32 m0, s65, {sW1K if e == 0 else 's68'}")
        p1.append(f"buffer_load_dwordx4 {vr(KV[j]+8,4)}, v{vVG}, {WS}, s64 offen offset:512 sc1")
        if e is not None: p1.append(f"buffer_load_dwordx4 v{vWO[e]}, {WO}, s66 offen lds")
        p1.append("s_mov_b64 exec, -1")
        p2 = ["s_add_u32 s65, s65, 8192", "s_and_b32 s65, s65, 0x1ffff", "s_lshl_b32 s66, s65, 2"] if e == 1 else []
        return [p0, p1, p2]
    def emit(parts):
        for p in parts:
            for x in p: a(x)
    def first_loads():
        emit(ld_parts(1, None)); emit(ld_parts(2, None))
        if not OPT["wob"]:
            a(f"buffer_load_dword v{vT}, off, {WO}, s61")
        emit(ld_parts(3, 0))
    if OPT["early"]:
        a("s_waitcnt vmcnt(0)")
        a(f"v_cmp_eq_u64 vcc, {NONCE}, {vr(vT,2)}")
        a("s_nop 1")
        a("s_cmp_eq_u64 vcc, -1")
        a("s_cbranch_scc0 L_late")
        stamp(a, 22); stamp(a, 23)
        first_loads()
        unit01()
        a("s_branch L_go")
        a.label("L_late")
        stamp(a, 22)
    poll_kv()
    unit01()
    a.label("L_kvspin")
    a("s_waitcnt vmcnt(0)")
    a(f"v_cmp_eq_u64 vcc, {NONCE}, {vr(vT,2)}")
    a("s_sub_u32 s53, s53, 1")
    a("s_cbranch_scc1 L_kvgo")
    a("s_cmp_eq_u64 vcc, -1")
    a("s_cbranch_scc1 L_kvgo")
    if OPT["sleep"]: a(f"s_sleep {OPT['sleep']}")
    poll_kv()
    a("s_branch L_kvspin")
    a.label("L_kvgo")
    stamp(a, 23)
    first_loads()
    a.label("L_go")
    a("v_lshrrev_b32 v12, 5, v0")
    a("v_bfe_u32 v13, v0, 2, 3")
    a("v_lshl_add_u32 v14, v12, 4, v13")
    a("v_lshlrev_b32 v14, 8, v14")
    a(f"s_lshl_b32 s54, {sHD}, 1")
    a("v_xor_b32 v13, s54, v13")
    a("v_lshl_add_u32 v14, v13, 5, v14")
    a("v_and_b32 v13, 3, v0")
    a(f"v_lshl_add_u32 v{vA[0][0]}, v13, 3, v14")
    a(f"v_add_u32 v{vA[0][1]}, 65536, v{vA[0][0]}")
    a(f"v_xor_b32 v{vA[1][0]}, 32, v{vA[0][0]}")
    a(f"v_xor_b32 v{vA[1][1]}, 32, v{vA[0][1]}")
    a("v_and_b32 v10, 15, v0")
    a("v_lshrrev_b32 v13, 4, v0")
    a("v_lshlrev_b32 v14, 9, v13")
    a("v_lshl_add_u32 v14, v10, 4, v14")
    a(f"s_lshl_b32 s54, {sTT}, 8")
    a(f"s_add_u32 s54, s54, {R3}")
    a(f"v_add_u32 v{vBO}, s54, v14")
    a("v_lshlrev_b32 v14, 10, v10")
    a("v_lshl_add_u32 v14, v12, 4, v14")
    a("v_and_b32 v13, 1, v13")
    a(f"v_lshl_add_u32 v{vSTO}, v13, 5, v14")
    a(f"s_lshl_b32 s53, {sQUAD}, 12")
    a(f"s_lshl_b32 s54, {sHD}, 10")
    a("s_add_u32 s53, s53, s54")
    a(f"s_add_u32 s53, s53, {R3}")
    a(f"v_add_u32 v{vOWN}, s53, v{vL16}")
    a(f"v_mul_u32_u24 v23, {OPT['os']}, v0")
    stamp(a, 6)
    a(f"s_add_u32 s63, s75, {hex(IO_OFF)}")
    if OPT["drop"]:
        a(f"s_cmp_lg_u32 {sTT}, 1")
        a("s_cbranch_scc1 L_noprio")
        a("s_setprio 1")
        a.label("L_noprio")
    if OPT["opoll"]:
        a("s_waitcnt vmcnt(7)")
        qk(1, 0)
        a("s_mov_b64 exec, 15")
        a(f"buffer_store_dwordx2 {vr(vPD,2)}, v12, {WS}, s74 offen sc1")
        a("s_mov_b64 exec, -1")
        a("s_nop 7")
    else:
        a(f"s_waitcnt vmcnt({6 if OPT['wob'] else 8})")
        qk(1, 0)
        a("s_nop 7")
        a("s_nop 2")
    stamp(a, 19)
    a("s_branch L_loop1")
    a.raw(".p2align 6")
    a.label("L_loop")
    P = (2, 5, 11)
    def drop_block(cnt):
        a(f"s_cmp_lg_u32 s67, {cnt}")
        a("s_cbranch_scc1 L_nodrop")
        a("s_setprio 0")
        if OPT["opre"]: a(f"buffer_load_dwordx2 {vr(vT,2)}, off, {WS}, s63 sc1")
        a.label("L_nodrop")
    for u in range(4):
        if u == 1: a.label("L_loop1")
        if OPT["dsub"] and u == OPT["dsub"]: drop_block(8 - OPT["drop"])
        pj = (u - 1) % 4; nj = (u + 1) % 4
        parts = ld_parts(pj, u % 2)
        for i in range(16):
            if i == P[0]:
                pv1(pj, 1)
                if not OPT["spread"]: emit(parts)
            if OPT["spread"] and i in (3, 7, 13): emit([parts[(3, 7, 13).index(i)]])
            if i == P[1]: qk(u, 1)
            if i == P[2]: pv0(u, 0)
            ex(0, i)
        for i in range(16):
            if i == P[0]: pv1(u, 0)
            if i == P[1]:
                a(f"s_waitcnt vmcnt({6 if OPT['wob'] else 9})"); qk(nj, 0)
            if i == P[2]: pv0(u, 1)
            ex(1, i)
    if OPT["wob"]:
        nb_ = 16 // OPT["wob"]
        if OPT["wobi"] == 2:
            a("s_bitcmp1_b32 s67, 0")
            a("s_cbranch_scc1 L_nowo")
        a(f"s_cmp_le_u32 s67, {8 - OPT['wob']*OPT['wobi']}")
        a("s_cbranch_scc1 L_nowo")
        for i in range(nb_):
            a(f"s_add_u32 m0, s65, {sW1K}")
            a("s_add_u32 s65, s65, 8192")
            a(f"buffer_load_dwordx4 v{vWO[0]}, {WO}, s66 offen lds")
            a("s_and_b32 s65, s65, 0x1ffff")
            a("s_lshl_b32 s66, s65, 2")
        a.label("L_nowo")
    if OPT["dsub"] == 0: drop_block(9 - OPT["drop"])
    a("s_sub_u32 s67, s67, 1")
    a("s_cmp_lg_u32 s67, 0")
    a("s_cbranch_scc1 L_loop")
    pv1(3, 1)
    stamp(a, 7)
    a(f"s_xor_b32 s54, {sSLOT}, 16384")
    a("s_nop 2")
    a(f"v_add_u32 v10, s54, v{vL16}")
    a("v_lshlrev_b32 v14, 2, v0")
    a("v_add_u32 v13, s54, v14")
    a(f"v_add_u32 v14, {sSLOT}, v14")
    a("s_lshl_b32 s54, s60, 15")
    a(f"s_lshl_b32 s55, {sWAVE}, 12")
    a("s_add_u32 s54, s54, s55")
    a(f"s_add_u32 s64, s54, {hex(O_OFF)}")
    a(f"ds_write_b128 v10, {vr(O[1],4)}")
    a(f"ds_write_b128 v10, {vr(O[1]+4,4)} offset:1024")
    a(f"ds_write_b32 v13, v{O[1]+8} offset:2048")
    a("s_waitcnt vmcnt(0) lgkmcnt(0)")
    a("s_barrier")
    stamp(a, 15)
    a(f"ds_read_b32 v{S[0]+8}, v14 offset:2048")
    a(f"ds_read_b128 {vr(S[0],4)}, v11")
    a(f"ds_read_b128 {vr(S[0]+4,4)}, v11 offset:1024")
    a(f"v_mov_b32 v13, {hex(f2u(2.0**-20))}")
    a(f"v_mov_b32 v1, {hex(f2u(2.0**60))}")
    a("s_waitcnt lgkmcnt(2)")
    a(f"v_add_f32 v{O[0]+8}, v{O[0]+8}, v{S[0]+8}")
    a(f"v_rcp_f32 v14, v{O[0]+8}")
    a("s_waitcnt lgkmcnt(0)")
    PK = 40
    def finish(add):
        for i in range(8):
            if add: a(f"v_add_f32 v{O[0]+i}, v{O[0]+i}, v{S[0]+i}")
        for i in range(8): a(f"v_mul_f32 v{S[0]+i}, v14, v{O[0]+i}")
        for i in range(4): a(f"v_cvt_pk_bf16_f32 v{PK+i}, v{S[0]+2*i}, v{S[0]+2*i+1}")
        a(f"buffer_store_dwordx4 {vr(PK,4)}, v{vL16}, {WS}, s58 offen sc1")
    finish(True)
    a(f"v_cmp_ge_f32 s[68:69], v{O[0]+8}, v13")
    a(f"v_cmp_le_f32 s[70:71], v{O[0]+8}, v1")
    a(f"v_mul_f32 v14, 0, v{O[0]}")
    for i in range(1, 8): a(f"v_fma_f32 v14, v{O[0]+i}, 0, v14")
    a("v_cmp_o_f32 vcc, v14, v14")
    a("s_and_b64 s[68:69], s[68:69], s[70:71]")
    a("s_nop 1")
    a("s_and_b64 s[68:69], s[68:69], vcc")
    a("s_cmp_eq_u64 s[68:69], -1")
    a("s_cbranch_scc0 L_fallback")
    a.label("L_fin")
    def poll_f(): a(f"buffer_load_dwordx2 {vr(vT,2)}, off, {WS}, s63 sc1")
    WF = 112
    wo_list = [(i, s_) for s_ in range(15, -1, -1) for i in range(2)]
    def rdWo(n):
        for _ in range(n):
            i, s_ = wo_list.pop(0)
            b = vA[i][s_ // 8]; o = (s_ % 8) * 8192; r = WF + 64*i + 4*s_
            a(f"ds_read_b64_tr_b16 {vr(r,2)}, v{b} offset:{o}")
            a(f"ds_read_b64_tr_b16 {vr(r+2,2)}, v{b} offset:{o+2048}")
    rdWo(7)
    a("s_waitcnt lgkmcnt(2)")
    rdWo(6)
    a("s_waitcnt vmcnt(0)")
    a("s_barrier")
    a(f"s_cmp_lg_u32 {sWAVE}, {sQUAD}")
    a("s_cbranch_scc1 L_noflag")
    if OPT["orep"]:
        a("s_mov_b64 exec, 0xff")
        a(f"buffer_store_dwordx2 {vr(vPD,2)}, v23, {WS}, s74 offen sc1")
    else:
        a("s_mov_b64 exec, 1")
        a(f"buffer_store_dwordx2 {vr(vPD,2)}, off, {WS}, s74 sc1")
    a("s_mov_b64 exec, -1")
    a("s_branch L_flagged")
    a.label("L_noflag")
    poll_f()
    a.label("L_flagged")
    stamp(a, 8)
    a(f"s_lshr_b32 s53, {sQUAD}, 2")
    a(f"s_cmp_lg_u32 s53, {sTT}")
    a("s_waitcnt lgkmcnt(0)")
    a("s_cbranch_scc1 L_noown")
    a(f"ds_write_b128 v{vOWN}, {vr(PK,4)}")
    a.label("L_noown")
    rdWo(7)
    a("s_waitcnt lgkmcnt(2)")
    rdWo(6)
    a(f"s_mov_b32 m0, {sSLOT}")
    a("s_waitcnt lgkmcnt(2)")
    rdWo(6)
    a(f"s_mov_b32 s53, {SPIN_MAX}")
    a(f"s_cmp_eq_u32 {sWAVE}, {sQUAD}")
    a("s_cbranch_scc1 L_oskip")
    if OPT["dpoll"]:
        a.label("L_ospin")
        a(f"buffer_load_dwordx2 v[24:25], off, {WS}, s63 sc1")
        a("s_waitcnt vmcnt(1)")
        a(f"v_cmp_eq_u64 vcc, {NONCE}, {vr(vT,2)}")
        a("s_sub_u32 s53, s53, 1")
        a("s_cbranch_scc1 L_ogo")
        a("s_cmp_eq_u64 vcc, -1")
        a("s_cbranch_scc1 L_ogo")
        a(f"s_sleep {OPT['dpoll']}")
        poll_f()
        a("s_waitcnt vmcnt(1)")
        a(f"v_cmp_eq_u64 vcc, {NONCE}, v[24:25]")
        a("s_nop 1")
        a("s_cmp_eq_u64 vcc, -1")
        a("s_cbranch_scc1 L_ogo")
        a(f"s_sleep {OPT['dpoll']}")
        a("s_branch L_ospin")
    else:
        a("s_branch L_ochk")
        a.label("L_ospin")
        poll_f()
        a.label("L_ochk")
        a("s_waitcnt vmcnt(0)")
        a(f"v_cmp_eq_u64 vcc, {NONCE}, {vr(vT,2)}")
        a("s_sub_u32 s53, s53, 1")
        a("s_cbranch_scc1 L_ogo")
        a("s_cmp_eq_u64 vcc, -1")
        a("s_cbranch_scc0 L_ospin")
    a.label("L_ogo")
    stamp(a, 9)
    for i in range(4):
        a(f"buffer_load_dwordx4 v{vL16}, {WS}, s64 offen offset:{i*1024} sc1 lds")
    a("s_waitcnt vmcnt(0)")
    stamp(a, 21)
    a.label("L_oskip")
    a("s_waitcnt lgkmcnt(0)")
    a("s_barrier")
    stamp(a, 10)
    ACC = 32; NB = OPT["nb"]
    def rd3(s_): a(f"ds_read_b128 {vr(44 + 4*(s_ % (NB+1)),4)}, v{vBO} offset:{s_*2048}")
    for s_ in range(NB): rd3(s_)
    for s_ in range(16):
        if s_ + NB < 16:
            rd3(s_ + NB); a(f"s_waitcnt lgkmcnt({NB})")
        else:
            a(f"s_waitcnt lgkmcnt({15 - s_})")
        f = 44 + 4*(s_ % (NB+1))
        for i in range(2):
            a(f"v_mfma_f32_16x16x32_bf16 {vr(ACC+4*i,4)}, {vr(WF+64*i+4*s_,4)}, {vr(f,4)}, " + ("0" if s_ == 0 else vr(ACC+4*i,4)))
    a("s_nop 7")
    for i in range(4): a(f"v_cvt_pk_bf16_f32 v{PK+i}, v{ACC+2*i}, v{ACC+2*i+1}")
    a("s_nop 1")
    a(f"v_permlane16_swap_b32 v{PK}, v{PK+2}")
    a(f"v_permlane16_swap_b32 v{PK+1}, v{PK+3}")
    a(f"buffer_store_dwordx4 {vr(PK,4)}, v{vSTO}, {OUT}, s62 offen" + ["", " sc1", " nt", " sc0 sc1", " sc1 nt"][OPT["ost"]])
    if OPT["probe"]:
        stamp(a, 17)
        a("s_memrealtime s[82:83]")
        a("s_waitcnt lgkmcnt(0)")
        a("s_sub_u32 s80, s80, s46")
        a("s_max_i32 s80, s80, 0")
        a("s_min_i32 s80, s80, 4000")
        a("s_lshl_b32 s80, s80, 2")
        a("s_add_u32 s80, s80, s82")
        a.label("L_probe")
        a("s_sleep 4")
        a("s_memrealtime s[82:83]")
        a("s_waitcnt lgkmcnt(0)")
        a("s_sub_u32 s82, s82, s80")
        a("s_cmp_lt_i32 s82, 0")
        a("s_cbranch_scc1 L_probe")
    if OPT["stamp"]:
        stamp(a, 17)
        a("s_waitcnt vmcnt(0)")
        stamp(a, 11); stamp_out(a)
    a.label("L_end")
    a("s_endpgm")
    a.label("L_fallback")
    a("s_lshl_b32 s53, s56, 17")
    a("s_mov_b32 s54, 0")
    a("v_mov_b32 v14, 0xff800000")
    a.label("L_fb1")
    a(f"buffer_load_dwordx4 {vr(KV[0],4)}, v{vL16}, {WS}, s53 offen sc1")
    a("s_waitcnt vmcnt(0)")
    qk(0, 0, "0")
    a("s_add_u32 s53, s53, 2048")
    a("s_add_u32 s54, s54, 1")
    a("s_nop 7"); a("s_nop 3")
    for i in range(8): a(f"v_max3_f32 v14, v{S[0]+2*i}, v{S[0]+2*i+1}, v14")
    a("s_cmp_lt_u32 s54, 64")
    a("s_cbranch_scc1 L_fb1")
    a("v_mov_b32 v1, v14")
    a("s_nop 1")
    a("v_permlane32_swap_b32 v14, v1")
    a("s_nop 1")
    a("v_max_f32 v14, v14, v1")
    for i in range(16): a(f"v_sub_f32 v{S[1]+i}, 0, v14")
    for i in range(16): a(f"v_mov_b32 v{O[0]+i}, 0")
    a("s_lshl_b32 s53, s56, 17")
    a("s_mov_b32 s54, 0")
    a.label("L_fb2")
    a(f"buffer_load_dwordx4 {vr(KV[0],4)}, v{vL16}, {WS}, s53 offen sc1")
    a(f"s_mov_b64 exec, {VMASK}")
    a(f"buffer_load_dwordx4 {vr(KV[0]+4,4)}, v{vVO}, {WS}, s53 offen sc1")
    a(f"buffer_load_dwordx4 {vr(KV[0]+8,4)}, v{vVO}, {WS}, s53 offen offset:512 sc1")
    a("s_mov_b64 exec, -1")
    a("s_waitcnt vmcnt(0)")
    a(f"v_mfma_f32_32x32x16_bf16 {vr(S[0],16)}, {vr(KV[0],4)}, {vr(QA,4)}, {vr(S[1],16)}")
    a("s_add_u32 s53, s53, 2048")
    a("s_add_u32 s54, s54, 1")
    a("s_nop 7"); a("s_nop 3")
    for i in range(16): ex(0, i)
    a("s_nop 1")
    pv0(0, 0); pv1(0, 0)
    a("s_cmp_lt_u32 s54, 64")
    a("s_cbranch_scc1 L_fb2")
    a("s_nop 7"); a("s_nop 7")
    a(f"v_rcp_f32 v14, v{O[0]+8}")
    a("s_nop 0")
    finish(False)
    a("s_branch L_fin")
    return f"""
.section .rodata,"a"
.p2align 6
.amdhsa_kernel {name}
  .amdhsa_next_free_vgpr 256
  .amdhsa_next_free_sgpr 100
  .amdhsa_accum_offset 256
  .amdhsa_group_segment_fixed_size 0
  .amdhsa_kernarg_size 48
  .amdhsa_user_sgpr_count 2
  .amdhsa_user_sgpr_kernarg_segment_ptr 1
  .amdhsa_system_sgpr_workgroup_id_x 1
.end_amdhsa_kernel
"""

def main(path):
    a = Asm()
    a.raw("; @launch grid=(256,1,1) block=(512,1,1) lds=163840")
    a.raw('.amdgcn_target "amdgcn-amd-amdhsa--gfx950"')
    a.raw(".text")
    d = gen(a)
    open(path, "w").write(a.text() + d)

if __name__ == "__main__":
    for kv in sys.argv[2:]:
        k, v = kv.split("="); assert k in OPT, k; OPT[k] = int(v)
    main(sys.argv[1])
```

```python
import math, struct, sys

def f2u(x): return struct.unpack("<I", struct.pack("<f", x))[0]
CSCALE = 0.25 * math.log2(math.e)
O_OFF = 4 << 20
FKV_OFF = 6 << 20
FO_OFF = (6 << 20) + (256 << 10)
WB = 65536
R3 = 131072
SPIN_MAX = 1 << 16
OPT = dict(stamp=0, drop=6, fstep=5)

class Asm:
    def __init__(self): self.l = []
    def __call__(self, s, c=None): self.l.append("    " + s + (" " * max(1, 74 - len(s)) + "; " + c if c else ""))
    def label(self, s): self.l.append(s + ":")
    def raw(self, s): self.l.append(s)
    def c(self, s):
        for t in s.split("\n"): self.l.append("    ; " + t)
    def text(self): return "\n".join(self.l) + "\n"
def vr(a, n): return f"v[{a}:{a+n-1}]"

vST_RT, vST_CY = 252, 253
STAMPS = {1: None, 3: (7, 11), 4: (7, 15, 8, 9, 21, 10, 17, 11), 5: (3, 24, 5, 22, 23, 19, 7, 11)}
def stamp(a, i):
    m = OPT["stamp"]
    if not m or (STAMPS[m] is not None and i not in STAMPS[m]): return False
    a("s_memrealtime s[80:81]"); a("s_memtime s[82:83]"); a("s_waitcnt lgkmcnt(0)")
    a(f"v_writelane_b32 v{vST_RT}, s80, {i}"); a(f"v_writelane_b32 v{vST_CY}, s82, {i}")
    return True
def stamp_out(a):
    a(f"s_add_u32 s76, s20, {hex(16<<20)}"); a("s_addc_u32 s77, s21, 0"); a("s_mov_b32 s78, 0x100000"); a("s_mov_b32 s79, 0x00020000")
    a("s_lshl_b32 s80, s2, 3"); a("s_add_u32 s80, s80, s42"); a("s_lshl_b32 s80, s80, 8")
    a("v_lshlrev_b32 v1, 2, v0"); a("s_mov_b32 exec_hi, 0")
    a(f"buffer_store_dword v{vST_RT}, v1, s[76:79], s80 offen"); a(f"buffer_store_dword v{vST_CY}, v1, s[76:79], s80 offen offset:128")

X, W, WS, WO, OUT, DBG, KS = "s[12:15]", "s[16:19]", "s[20:23]", "s[24:27]", "s[28:31]", "s[32:35]", "s[76:79]"
sQUAD, sRB, sWAVE, sHD, sTT, sSLOT = "s40", "s41", "s42", "s43", "s44", "s45"
NONCE, VMASK = "s[46:47]", "s[48:49]"
sKVOWN, sKVH, sW1K, sHEAD, sQT, sOOWN, sOQ, sCB, sOST, sPOLL = "s50", "s51", "s52", "s56", "s57", "s58", "s60", "s61", "s62", "s63"
def sXT(p): return f"s{84+p}"
def sWT(p): return f"s{92+p}"
vL16, vIDX, vXD, vWD, vXR0, vXR1, vWR, vVO = 2, 3, 4, 5, 6, 7, 8, 9
AK, AV, AQ = 16, 24, 32
FW = [[40, 44, 48, 52], [32, 36, 104, 108]]
KV = [56, 68, 80, 92]
QA, QB = 104, 108
XF = 112
O = [112, 128]; S = [144, 160]
vWO, vPOLL, vPD, vKPOS, vKG, vVG, vWQ, vT, vWR4 = 240, 242, 244, 246, 247, 248, 249, 250, 254
vA = [[16, 17], [18, 19]]; vBO, vSTO, vOWN, vFL = 20, 21, 22, 23

HEADER = """; Multi-head attention block (B=1, S=2048, D=512, H=32, Dh=16) in ONE launch:
;   qkv = x @ wqkv ; o = softmax(q k^T / 4) v ; out = o @ wo
; Kernarg: x(0) wqkv(8) wo(16) out(24) debug(32) ws(40).  Generated by gen/gen_final.py.
; @launch grid=(256,1,1) block=(512,1,1) lds=163840
;
"""

def gen(a):
    name = "standalone__mha_block__prompt_kernel"
    a.raw(f".globl {name}"); a.raw(".p2align 8"); a.raw(f".type {name},@function"); a.label(name)
    a("s_cmp_ge_u32 s2, 256")
    a("s_cbranch_scc1 L_end", "workgroups past the grid leave at once")
    for d, off in ((12, 0), (16, 8), (32, 32), (20, 40), (24, 16), (28, 24)):
        a(f"s_load_dwordx2 s[{d}:{d+1}], s[0:1], {off}")
    a(f"s_memrealtime {NONCE}")
    if OPT["stamp"]: a("s_memtime s[82:83]")
    a.c("pull the rest of this kernel's code towards the L2 while the arguments are on their way")
    a("s_getpc_b64 s[76:77]")
    a.label("L_pc")
    a("v_lshlrev_b32 v1, 7, v0")
    a("v_cmp_gt_u32 vcc, (L_codeend-L_pc)/128, v0")
    a("s_and_saveexec_b64 s[78:79], vcc")
    a("s_cbranch_execz L_noipf")
    a(f"global_load_dword v{vT+1}, v1, s[76:77]")
    a.label("L_noipf")
    a("s_mov_b64 exec, -1")
    a("v_lshrrev_b32 v1, 6, v0")
    a("v_and_b32 v0, 63, v0", "v0 = lane")
    a(f"v_readfirstlane_b32 {sWAVE}, v1")
    a.c("quad = (wg&3)*2 + ((wg>>3)&1), rb = ((wg>>2)&1)*16 + (wg>>4): two quads per XCD under round-robin placement (speed only)")
    a("s_and_b32 s54, s2, 3")
    a("s_lshl_b32 s54, s54, 1")
    a("s_bfe_u32 s55, s2, 0x10003")
    a(f"s_add_u32 {sQUAD}, s54, s55")
    a("s_bfe_u32 s54, s2, 0x10002")
    a("s_lshl_b32 s54, s54, 4")
    a("s_lshr_b32 s55, s2, 4")
    a(f"s_add_u32 {sRB}, s54, s55")
    a(f"s_and_b32 {sHD}, {sWAVE}, 3")
    a(f"s_lshr_b32 {sTT}, {sWAVE}, 2")
    a(f"s_lshl_b32 {sW1K}, {sWAVE}, 10")
    a(f"v_lshlrev_b32 v{vL16}, 4, v0")
    a.c("x DMA source: row 8w + l/8 of the block, 16-byte piece (l%8) ^ ((row>>1)&7)  (bank swizzle)")
    a("v_lshrrev_b32 v10, 3, v0")
    a("v_and_b32 v11, 7, v0")
    a("v_lshrrev_b32 v12, 4, v0")
    a(f"s_and_b32 s53, {sWAVE}, 1")
    a("s_lshl_b32 s54, s53, 2")
    a("v_xor_b32 v13, v11, v12")
    a("v_xor_b32 v13, s54, v13")
    a(f"s_lshl_b32 s55, {sWAVE}, 3")
    a("v_add_u32 v10, s55, v10")
    a(f"s_lshl_b32 s55, {sRB}, 16")
    a("v_lshlrev_b32 v14, 10, v10")
    a("v_lshl_add_u32 v14, v13, 4, v14")
    a(f"v_add_u32 v{vXD}, s55, v14")
    a.c("W DMA source: k row 8w + l/8, the quad's 128-byte line, 32-byte slot ^ (((row>>1)&1) | ((row>>3)&1)<<1)")
    a("v_and_b32 v12, 1, v12")
    a("v_lshlrev_b32 v12, 1, v12")
    a("v_xor_b32 v13, v11, v12")
    a("v_xor_b32 v13, s54, v13")
    a("v_mul_u32_u24 v14, 3072, v10")
    a("v_lshl_add_u32 v14, v13, 4, v14")
    a(f"s_lshl_b32 s55, {sQUAD}, 7")
    a(f"v_add_u32 v{vWD}, s55, v14")
    a.c("the 64-deep k chunks are walked in an order rotated per workgroup, so every line is requested early by someone")
    a(f"s_add_u32 s53, {sQUAD}, {sRB}")
    for p in range(8):
        a("s_and_b32 s53, s53, 7")
        a(f"s_lshl_b32 {sXT(p)}, s53, 7")
        a(f"s_mul_i32 {sWT(p)}, s53, 196608")
        if p < 7: a("s_add_u32 s53, s53, 1")
    a("v_and_b32 v12, 31, v0")
    a(f"s_lshl_b32 s53, {sRB}, 5")
    a("s_and_b32 s53, s53, 511")
    a("v_add_u32 v12, s53, v12")
    a("v_mul_u32_u24 v15, 3072, v12", "this workgroup's share of the Wq lines (L2 prefetch)")
    for d, size in ((12, 2048*1024), (16, 512*3072), (32, 256), (20, 8 << 20), (24, 512*1024), (28, 2048*1024)):
        a(f"s_mov_b32 s{d+2}, {hex(size)}")
        a(f"s_mov_b32 s{d+3}, 0x00020000")
    a(f"s_mov_b32 m0, {sW1K}")
    a("s_waitcnt lgkmcnt(0)")
    if OPT["stamp"]:
        a(f"v_writelane_b32 v{vST_RT}, s46, 0"); a(f"v_writelane_b32 v{vST_CY}, s82, 0")
    stamp(a, 12)
    issued = []
    def dma_x(p, m0=True):
        if m0:
            a(f"s_add_u32 m0, {sW1K}, {p*8192}"); a("s_nop 0")
        a(f"buffer_load_dwordx4 v{vXD}, {X}, {sXT(p)} offen lds"); issued.append(("x", p))
    def dma_w(t, p, dest, tag):
        a(f"s_add_u32 m0, {sW1K}, {dest - t*1024}")
        a("s_nop 0")
        a(f"buffer_load_dwordx4 v{vWD}, {W}, {sWT(p)} offen offset:{t*1024} lds"); issued.append(tag)
    def dma_kv(p):
        dma_w(1, p, WB + (p%5)*16384, ("kv", p)); dma_w(2, p, WB + (p%5)*16384 + 8192, ("kv", p))
    QDEST = [0, 8192, 16384, 24576, 32768, WB + 3*16384, WB + 3*16384 + 8192, 40960]
    dma_x(0, False); dma_kv(0)
    a.c("launch nonce: workgroup 0, wave 0 publishes its clock reading")
    a("s_or_b32 s46, s46, 1")
    a(f"s_or_b32 s53, s2, {sWAVE}")
    a("s_cbranch_scc1 L_nonon")
    a("v_mov_b32 v10, s46"); a("v_mov_b32 v11, s47")
    a("s_mov_b64 exec, 1")
    a(f"buffer_store_dwordx2 v[10:11], off, {DBG}, 0 sc1")
    a("s_mov_b64 exec, -1")
    a.label("L_nonon")
    a(f"s_cmp_lg_u32 {sWAVE}, 7")
    a("s_cbranch_scc1 L_noqpf")
    a(f"buffer_load_dword v{vT}, v15, {W}, s55 offen")
    a.label("L_noqpf")
    for p in range(1, 4): dma_x(p)
    stamp(a, 13)
    a.c("scalar offsets")
    a(f"s_lshl_b32 {sSLOT}, {sWAVE}, 12")
    a(f"s_add_u32 {sSLOT}, {sSLOT}, {R3}")
    a(f"s_lshl_b32 s53, {sQUAD}, 2")
    a(f"s_add_u32 {sHEAD}, s53, {sHD}")
    a(f"s_lshl_b32 s53, {sHEAD}, 17")
    a(f"s_lshl_b32 s54, {sTT}, 11")
    a(f"s_add_u32 {sKVH}, s53, s54", "K/V stream of this wave: head*128K + tt*2K (+ 4K per 64 tokens)")
    a(f"s_lshl_b32 s64, {sRB}, 12")
    a(f"s_add_u32 {sKVOWN}, {sKVH}, s64")
    a(f"s_lshl_b32 s53, {sRB}, 1")
    a(f"s_add_u32 {sQT}, s53, {sTT}")
    a(f"s_lshl_b32 s53, {sQT}, 15")
    a(f"s_lshl_b32 s54, {sHEAD}, 10")
    a(f"s_add_u32 {sOOWN}, s53, s54")
    a(f"s_add_u32 {sOOWN}, {sOOWN}, {hex(O_OFF)}", "own O fragment")
    a(f"s_lshl_b32 {sPOLL}, {sQUAD}, 10")
    a(f"s_add_u32 {sPOLL}, {sPOLL}, {hex(FKV_OFF)}", "this quad's K/V flags: 32 entries, 32 bytes apart")
    a("v_and_b32 v12, 31, v0")
    a(f"v_lshlrev_b32 v{vPOLL}, 5, v12")
    a(f"s_lshr_b32 s53, {sQUAD}, 2")
    a(f"s_lshl_b32 s54, {sRB}, 1")
    a(f"s_add_u32 {sOQ}, s53, s54", "output tile: tokens of q-tile 2rb + quad/4, columns 128*(quad%4)")
    a(f"s_and_b32 {sCB}, {sQUAD}, 3")
    a(f"s_lshl_b32 {sCB}, {sCB}, 8")
    a(f"s_lshl_b32 s53, {sOQ}, 15")
    a(f"s_add_u32 {sOST}, s53, {sCB}")
    a(f"s_lshl_b32 s53, {sHD}, 6")
    a(f"s_add_u32 {sOST}, {sOST}, s53")
    a(f"s_lshl_b32 s53, {sTT}, 14")
    a(f"s_add_u32 {sOST}, {sOST}, s53")
    a.c("O flags: one 128-byte line per (writer, reader) pair of the eight workgroups of a row block")
    a(f"s_lshl_b32 s53, {sRB}, 3")
    a(f"s_add_u32 s54, s53, {sQUAD}")
    a("s_lshl_b32 s54, s54, 10")
    a(f"s_add_u32 s74, s54, {hex(FO_OFF)}")
    a(f"s_add_u32 s75, s53, {sWAVE}")
    a("s_lshl_b32 s75, s75, 10")
    a(f"s_lshl_b32 s54, {sQUAD}, 7")
    a("s_add_u32 s75, s75, s54")
    a(f"s_add_u32 s75, s75, {hex(FO_OFF)}")
    a(f"s_lshl_b32 s65, {sRB}, 13")
    a("s_and_b32 s65, s65, 0x1ffff")
    a("s_lshl_b32 s66, s65, 2")
    a.c("LDS read addresses: x fragments (two k steps), W fragments (transposing reads)")
    a("v_and_b32 v10, 15, v0")
    a("v_lshrrev_b32 v11, 4, v0")
    a("v_bfe_u32 v12, v0, 1, 3")
    a("v_xor_b32 v12, v11, v12")
    a(f"s_lshl_b32 s53, {sTT}, 12")
    a("v_lshlrev_b32 v13, 7, v10")
    a("v_add_u32 v13, s53, v13")
    a(f"v_lshl_add_u32 v{vXR0}, v12, 4, v13")
    a(f"v_xor_b32 v{vXR1}, 64, v{vXR0}")
    a("v_bfe_u32 v12, v0, 2, 2")
    a("v_lshl_add_u32 v13, v11, 3, v12")
    a("v_lshlrev_b32 v13, 7, v13")
    a("v_bfe_u32 v14, v0, 3, 2")
    a(f"v_xor_b32 v14, {sHD}, v14")
    a("v_lshl_add_u32 v13, v14, 5, v13")
    a("v_and_b32 v14, 3, v0")
    a(f"v_lshl_add_u32 v{vWQ}, v14, 3, v13")
    a(f"v_add_u32 v{vWR}, {WB}, v{vWQ}")
    a(f"v_add_u32 v{vWR4}, {R3}, v{vWQ}")
    a.c("K/V tile = 1 KB K fragment (lane-linear) + 1 KB V^T fragments (4 x 16 lanes x 16 B)")
    a("v_lshrrev_b32 v12, 5, v0")
    a("v_lshlrev_b32 v12, 8, v12")
    a("v_lshl_add_u32 v12, v10, 4, v12")
    a(f"v_add_u32 v{vVO}, 1024, v12")
    a(f"v_add_u32 v{vKG}, {sKVH}, v{vL16}")
    a(f"v_add_u32 v{vVG}, {sKVH}, v{vVO}")
    a("v_and_b32 v12, 0x23, v0")
    a("v_bfe_u32 v13, v0, 2, 2")
    a("v_lshl_add_u32 v12, v13, 3, v12")
    a("v_bfe_u32 v13, v0, 4, 1")
    a("v_lshl_add_u32 v12, v13, 2, v12")
    a(f"v_lshlrev_b32 v{vKPOS}, 4, v12", "K rows are stored in the key order of the V^T fragments")
    a.c("Wo DMA source: row 4w + l/16, 32-byte slot ^ (row&7)")
    a(f"s_lshl_b32 s53, {sWAVE}, 2")
    a("v_add_u32 v12, s53, v11")
    a("v_and_b32 v13, 7, v12")
    a("v_lshlrev_b32 v13, 1, v13")
    a("v_xor_b32 v13, v10, v13")
    a("v_lshlrev_b32 v14, 10, v12")
    a("v_lshl_add_u32 v14, v13, 4, v14")
    a(f"v_add_u32 v{vWO}, {sCB}, v14")
    a(f"v_mov_b32 v{vIDX}, 0xdddddddd", "sparse index: elements 1 and 3 of every 4 = high halves of two fp32")
    a("s_mov_b32 s48, 0xffff"); a("s_mov_b32 s49, 0xffff", "lanes that carry V^T rows 0..15")
    a("v_and_b32 v12, 27, v0")
    a("v_cmp_eq_u32 vcc, 16, v12")
    a("v_mov_b32 v15, 0x3f803f80")
    a("s_nop 0")
    a.c("rows 16 and 20 of the V^T operand are ones (row sums), the other spare rows zero")
    for j in range(4):
        for i in range(8): a(f"v_cndmask_b32 v{KV[j]+4+i}, 0, v15, vcc")
    dma_kv(1); dma_kv(2)
    stamp(a, 1)

    def waitvm(pred):
        last = max(i for i, t in enumerate(issued) if pred(t))
        a(f"s_waitcnt vmcnt({len(issued) - 1 - last})")
    def xf(p, s): return XF + 8*(2*p + s)
    def rd_w(base, off, r):
        a(f"ds_read_b64_tr_b16 {vr(r,2)}, v{base} offset:{off}")
        a(f"ds_read_b64_tr_b16 {vr(r+2,2)}, v{base} offset:{off + 512}")
    def readsA(p):
        fw = FW[p % 2]
        for s in range(2):
            b = vXR0 if s == 0 else vXR1; f = xf(p, s)
            a(f"ds_read_b128 {vr(f,4)}, v{b} offset:{p*8192}")
            a(f"ds_read_b128 {vr(f+4,4)}, v{b} offset:{p*8192+2048}")
            wb, wo = (vWR, (p%5)*16384) if p % 5 < 4 else (vWR4, 0)
            rd_w(wb, wo + s*4096, fw[2*s]); rd_w(wb, wo + 8192 + s*4096, fw[2*s+1])
    def mfmaA(p, s):
        f = xf(p, s); wk, wv = FW[p % 2][2*s], FW[p % 2][2*s+1]
        def c(r): return "0" if p == 0 and s == 0 else vr(r, 4)
        a(f"v_mfma_f32_16x16x32_bf16 {vr(AK,4)}, {vr(wk,4)}, {vr(f,4)}, {c(AK)}")
        a(f"v_mfma_f32_16x16x32_bf16 {vr(AK+4,4)}, {vr(wk,4)}, {vr(f+4,4)}, {c(AK+4)}")
        a(f"v_mfma_f32_16x16x32_bf16 {vr(AV,4)}, {vr(f,4)}, {vr(wv,4)}, {c(AV)}")
        a(f"v_mfma_f32_16x16x32_bf16 {vr(AV+4,4)}, {vr(f+4,4)}, {vr(wv,4)}, {c(AV+4)}")
    def grab(fn):
        n0 = len(a.l); fn(); out = a.l[n0:]; del a.l[n0:]; return out
    a.c("---- K, V.  Step p: chunk p has landed -> read its fragments, request later chunks, multiply chunk p-1.\n"
        "     A ring slot / x slot is refilled two barriers after its last reader issued (covered by lgkmcnt(0) in between).")
    QSCHED = {5: [0, 1, 2], 6: [3, 4, 5], 7: [6, 7]}
    for p in range(8):
        waitvm(lambda t: t[1] == p and t[0] in ("x", "kv"))
        a("s_barrier")
        if p == 0: stamp(a, 2)
        if p >= 1: a("s_waitcnt lgkmcnt(0)")
        rd = grab(lambda: readsA(p))
        mf = grab(lambda: (mfmaA(p-1, 0), mfmaA(p-1, 1))) if p >= 1 else []
        dm = []
        if p + 3 < 8:
            kvl = grab(lambda: dma_kv(p + 3)); dm += [kvl[:3], kvl[3:]]
        if p + 4 < 8: dm.append(grab(lambda: dma_x(p + 4)))
        for j in QSCHED.get(p, []): dm.append(grab(lambda: dma_w(0, j, QDEST[j], ("q", j))))
        k = 0
        for i in range(12):
            a.l.append(rd[i])
            while k < len(mf) and k < (i + 1) * 8 // 12:
                a.l.append(mf[k]); k += 1
            if i % 4 == 3 and i // 4 < len(dm): a.l += dm[i // 4]
        assert len(dm) <= 3
        if p == 2:
            a(f"s_cmp_lg_u32 {sWAVE}, 0")
            a("s_cbranch_scc1 L_nf1")
            a(f"buffer_load_dwordx2 {vr(vPD,2)}, off, {DBG}, 0 sc1", "fetch the nonce")
            a.label("L_nf1")
    a("s_waitcnt lgkmcnt(6)")
    mfmaA(7, 0)
    a("s_waitcnt lgkmcnt(0)")
    mfmaA(7, 1)
    stamp(a, 3)
    a.c("---- publish K/V (write-through) and keep a copy of the own tile through this wave's LDS slot")
    F = 40
    a(f"v_add_u32 v10, {sSLOT}, v{vKPOS}")
    a(f"v_add_u32 v11, {sSLOT}, v{vL16}")
    a(f"v_add_u32 v12, {sSLOT}, v{vVO}")
    a("s_nop 4")
    for i in range(4): a(f"v_cvt_pk_bf16_f32 v{F+i}, v{AK+2*i}, v{AK+2*i+1}")
    for i in range(4): a(f"v_cvt_pk_bf16_f32 v{F+4+i}, v{AV+2*i}, v{AV+2*i+1}")
    a(f"v_permlane16_swap_b32 v{F}, v{F+2}")
    a(f"v_permlane16_swap_b32 v{F+1}, v{F+3}")
    a(f"buffer_store_dwordx4 {vr(F+4,4)}, v{vL16}, {WS}, {sKVOWN} offen offset:1024 sc1")
    a(f"buffer_store_dwordx4 {vr(F,4)}, v{vKPOS}, {WS}, {sKVOWN} offen sc1")
    a(f"ds_write_b128 v11, {vr(F+4,4)} offset:1024")
    a(f"ds_write_b128 v10, {vr(F,4)}")
    a("s_waitcnt lgkmcnt(0)")
    a(f"ds_read_b128 {vr(KV[0],4)}, v11")
    a(f"s_mov_b64 exec, {VMASK}")
    a(f"ds_read_b128 {vr(KV[0]+4,4)}, v12")
    a(f"ds_read_b128 {vr(KV[0]+8,4)}, v12 offset:512")
    a("s_mov_b64 exec, -1")
    a("s_waitcnt vmcnt(7)", "Wq chunks 0..2 (and the nonce)")
    a(f"s_cmp_lg_u32 {sWAVE}, 0")
    a("s_cbranch_scc1 L_nf2")
    a(f"s_mov_b32 s53, {SPIN_MAX}")
    a.label("L_nspin")
    a(f"v_readfirstlane_b32 s54, v{vPD}")
    a("s_sub_u32 s53, s53, 1")
    a("s_cbranch_scc1 L_ngot")
    a("s_cmp_lg_u32 s54, 0")
    a("s_cbranch_scc1 L_ngot")
    a("s_sleep 2")
    a(f"buffer_load_dwordx2 {vr(vPD,2)}, off, {DBG}, 0 sc1")
    a("s_waitcnt vmcnt(0)")
    a("s_branch L_nspin")
    a.label("L_ngot")
    a(f"v_mov_b32 v10, {R3 + 2816}")
    a(f"ds_write_b64 v10, {vr(vPD,2)}")
    a.label("L_nf2")
    a("s_waitcnt lgkmcnt(0)")
    a("s_barrier")
    stamp(a, 14)
    a(f"v_mov_b32 v10, {R3 + 2816}")
    a(f"ds_read_b64 {vr(vPD,2)}, v10")
    a.c("---- Q (the x fragments are still in registers)")
    BS = [48, 52, 16, 20, 24, 28, 40, 44]
    lgq = ["n"]
    def readsB(st):
        p, s = divmod(st, 2); d = QDEST[p]
        if d < WB: rd_w(vWQ, d + s*4096, BS[st % 8])
        else: rd_w(vWR, d - WB + s*4096, BS[st % 8])
        lgq.extend([st, st])
    FS = OPT["fstep"]; nxt = 0
    a(f"s_lshl_b32 s54, {sRB}, 5")
    a(f"s_add_u32 s53, {sPOLL}, s54")
    for st in range(16):
        if st == FS:
            a("s_waitcnt vmcnt(0)")
            if stamp(a, 18): del lgq[:]
            a("s_barrier", "every wave's K/V is written through, all of Wq has landed")
            a(f"s_cmp_lg_u32 {sWAVE}, 0")
            a("s_cbranch_scc1 L_nflag")
            a("s_mov_b64 exec, 1")
            a(f"buffer_store_dwordx2 {vr(vPD,2)}, off, {WS}, s53 sc1", "K/V flag of this workgroup")
            a("s_mov_b64 exec, -1")
            a.label("L_nflag")
            if stamp(a, 24): del lgq[:]
        while nxt < min(6 if st < FS else 16, st + 6):
            readsB(nxt); nxt += 1
        if st in lgq:
            last = max(i for i, t in enumerate(lgq) if t == st)
            a(f"s_waitcnt lgkmcnt({len(lgq) - 1 - last})"); del lgq[:last + 1]
        if st == 0:
            a(f"v_readfirstlane_b32 s46, v{vPD}")
            a(f"v_readfirstlane_b32 s47, v{vPD+1}")
        f = XF + 8*st; w = BS[st % 8]
        c0, c1 = ("0", "0") if st == 0 else (vr(AQ,4), vr(AQ+4,4))
        a(f"v_mfma_f32_16x16x32_bf16 {vr(AQ,4)}, {vr(w,4)}, {vr(f,4)}, {c0}")
        a(f"v_mfma_f32_16x16x32_bf16 {vr(AQ+4,4)}, {vr(w,4)}, {vr(f+4,4)}, {c1}")
        if st == 2:
            for i in range(4): a(f"v_mov_b32 v{12+i}, 0")
        if st == 3:
            a(f"v_mfma_f32_32x32x16_bf16 {vr(O[0],16)}, v[12:15], v[12:15], 0", "clear the O accumulators")
            a(f"v_mfma_f32_32x32x16_bf16 {vr(O[1],16)}, v[12:15], v[12:15], 0")
    a(f"s_mov_b32 s53, {hex(f2u(CSCALE))}", "log2(e)/4 goes into Q")
    a(f"s_xor_b32 s54, {sSLOT}, 16384")
    a(f"v_add_u32 v10, s54, v{vL16}")
    a("s_mov_b64 s[76:77], s[20:21]")
    a("s_mov_b32 s78, s22")
    a("s_mov_b32 s79, 0x00020000")
    a("s_mov_b32 s67, 8")
    a("s_nop 0")
    for i in range(8): a(f"v_mul_f32 v{AQ+i}, s53, v{AQ+i}")
    for i in range(4): a(f"v_cvt_pk_bf16_f32 v{QA+i}, v{AQ+2*i}, v{AQ+2*i+1}")
    a("s_nop 1")
    a(f"v_permlane16_swap_b32 v{QA}, v{QA+2}")
    a(f"v_permlane16_swap_b32 v{QA+1}, v{QA+3}")
    a(f"ds_write_b128 v10, {vr(QA,4)} offset:3072", "the partner wave needs this Q tile too")
    def qk(j, q, c="0.15915494"): a(f"v_mfma_f32_32x32x16_bf16 {vr(S[q],16)}, {vr(KV[j],4)}, {vr(QA if q == 0 else QB,4)}, {c}")
    def pv0(j, q): a(f"v_smfmac_f32_32x32x32_bf16 {vr(O[q],16)}, {vr(KV[j]+4,4)}, {vr(S[q],8)}, v{vIDX}")
    def pv1(j, q): a(f"v_smfmac_f32_32x32x32_bf16 {vr(O[q],16)}, {vr(KV[j]+8,4)}, {vr(S[q]+8,8)}, v{vIDX}")
    def ex(q, i): a(f"v_exp_f32 v{S[q]+i}, v{S[q]+i}")
    def poll_kv(): a(f"buffer_load_dwordx2 {vr(vT,2)}, v{vPOLL}, {WS}, {sPOLL} offen sc1")
    a(f"s_mov_b32 s53, {SPIN_MAX}")
    a.c("the constant added to every score (1/2pi) cancels in the normalisation; it keeps exp2(0) off a bf16 step")
    qk(0, 0)
    stamp(a, 16)
    a("s_waitcnt lgkmcnt(0)")
    a("s_barrier")
    a(f"ds_read_b128 {vr(QB,4)}, v11 offset:3072")
    poll_kv()
    stamp(a, 5)
    a("s_nop 7")
    a.c("---- attention on the own key tile while the other workgroups' flags arrive")
    ex(0, 0); ex(0, 1); ex(0, 2); ex(0, 3)
    a("s_waitcnt lgkmcnt(0)")
    qk(0, 1)
    for i in range(4, 11): ex(0, i)
    pv0(0, 0)
    for i in range(11, 16): ex(0, i)
    def unit01():
        ex(1, 0); ex(1, 1)
        pv1(0, 0)
        for i in range(2, 11): ex(1, i)
        pv0(0, 1)
        for i in range(11, 16): ex(1, i)
    def ldK(j):
        a("s_add_u32 s64, s64, 4096"); a("s_and_b32 s64, s64, 0x1ffff")
        a(f"buffer_load_dwordx4 {vr(KV[j],4)}, v{vKG}, {KS}, s64 offen sc1")
    def ldV(j):
        a(f"s_mov_b64 exec, {VMASK}")
        a(f"buffer_load_dwordx4 {vr(KV[j]+4,4)}, v{vVG}, {KS}, s64 offen sc1")
        a(f"buffer_load_dwordx4 {vr(KV[j]+8,4)}, v{vVG}, {KS}, s64 offen offset:512 sc1")
        a("s_mov_b64 exec, -1")
    def first_loads():
        for j in (1, 2, 3): ldK(j); ldV(j)
    a("s_waitcnt vmcnt(0)")
    a(f"v_cmp_eq_u64 vcc, {NONCE}, {vr(vT,2)}")
    a("s_nop 1")
    a("s_cmp_eq_u64 vcc, -1")
    a("s_cbranch_scc0 L_late")
    stamp(a, 22); stamp(a, 23)
    first_loads()
    unit01()
    a("s_branch L_go")
    a.label("L_late")
    stamp(a, 22)
    poll_kv()
    unit01()
    a.label("L_kvspin")
    a("s_waitcnt vmcnt(0)")
    a(f"v_cmp_eq_u64 vcc, {NONCE}, {vr(vT,2)}")
    a("s_sub_u32 s53, s53, 1")
    a("s_cbranch_scc1 L_kvgo")
    a("s_cmp_eq_u64 vcc, -1")
    a("s_cbranch_scc1 L_kvgo")
    a("s_sleep 1")
    poll_kv()
    a("s_branch L_kvspin")
    a.label("L_kvgo")
    stamp(a, 23)
    first_loads()
    a.label("L_go")
    a.c("phase-3 addresses: wave = (32-column pair w&3, 16-token half w>>2)")
    a("v_lshrrev_b32 v12, 5, v0")
    a("v_bfe_u32 v13, v0, 2, 3")
    a("v_lshl_add_u32 v14, v12, 4, v13")
    a("v_lshlrev_b32 v14, 8, v14")
    a(f"s_lshl_b32 s54, {sHD}, 1")
    a("v_xor_b32 v13, s54, v13")
    a("v_lshl_add_u32 v14, v13, 5, v14")
    a("v_and_b32 v13, 3, v0")
    a(f"v_lshl_add_u32 v{vA[0][0]}, v13, 3, v14")
    a(f"v_add_u32 v{vA[0][1]}, 65536, v{vA[0][0]}")
    a(f"v_xor_b32 v{vA[1][0]}, 32, v{vA[0][0]}")
    a(f"v_xor_b32 v{vA[1][1]}, 32, v{vA[0][1]}")
    a("v_and_b32 v10, 15, v0")
    a("v_lshrrev_b32 v13, 4, v0")
    a("v_lshlrev_b32 v14, 9, v13")
    a("v_lshl_add_u32 v14, v10, 4, v14")
    a(f"s_lshl_b32 s54, {sTT}, 8")
    a(f"s_add_u32 s54, s54, {R3}")
    a(f"v_add_u32 v{vBO}, s54, v14")
    a("v_lshlrev_b32 v14, 10, v10")
    a("v_lshl_add_u32 v14, v12, 4, v14")
    a("v_and_b32 v13, 1, v13")
    a(f"v_lshl_add_u32 v{vSTO}, v13, 5, v14")
    a(f"s_lshl_b32 s53, {sQUAD}, 12")
    a(f"s_lshl_b32 s54, {sHD}, 10")
    a("s_add_u32 s53, s53, s54")
    a(f"s_add_u32 s53, s53, {R3}")
    a(f"v_add_u32 v{vOWN}, s53, v{vL16}")
    a(f"v_lshlrev_b32 v{vFL}, 7, v0")
    stamp(a, 6)
    a.c("the two waves of a SIMD take turns leading so that both stay runnable to the end")
    a(f"s_cmp_lg_u32 {sTT}, 1")
    a("s_cbranch_scc1 L_noprio")
    a("s_setprio 1")
    a.label("L_noprio")
    a("s_waitcnt vmcnt(6)")
    qk(1, 0)
    a("s_nop 7")
    a("s_nop 2")
    stamp(a, 19)
    a("s_branch L_loop1")
    a.raw(".p2align 6")
    a.c("---- 31 remote key tiles (entered at the second quarter), three tiles in flight")
    a.label("L_loop")
    for u in range(4):
        if u == 1:
            a.label("L_loop1")
            a(f"s_cmp_lg_u32 s67, {8 - OPT['drop']}")
            a("s_cbranch_scc1 L_nodrop")
            a("s_setprio 0")
            a(f"buffer_load_dwordx2 {vr(vT,2)}, off, {WS}, s75 sc1", "first touch of the O flag line")
            a.label("L_nodrop")
            a("s_cmp_eq_u32 s67, 1")
            a("s_cselect_b32 s78, 0, s78", "the last three prefetches have no consumer: out of range")
        pj = (u - 1) % 4; nj = (u + 1) % 4
        for i in range(16):
            if i == 2: pv1(pj, 1)
            if i == 3: ldK(pj)
            if i == 5: qk(u, 1)
            if i == 7: ldV(pj)
            if i == 11: pv0(u, 0)
            ex(0, i)
        for i in range(16):
            if i == 2: pv1(u, 0)
            if i == 5:
                a("s_waitcnt vmcnt(6)"); qk(nj, 0)
            if i == 11: pv0(u, 1)
            ex(1, i)
    a("s_cmp_le_u32 s67, 4")
    a("s_cbranch_scc1 L_nowo")
    for i in range(4):
        a(f"s_add_u32 m0, s65, {sW1K}", "a quarter of this workgroup's Wo slice per pass" if i == 0 else None)
        a("s_add_u32 s65, s65, 8192")
        a(f"buffer_load_dwordx4 v{vWO}, {WO}, s66 offen lds")
        a("s_and_b32 s65, s65, 0x1ffff")
        a("s_lshl_b32 s66, s65, 2")
    a.label("L_nowo")
    a("s_sub_u32 s67, s67, 1")
    a("s_cmp_lg_u32 s67, 0")
    a("s_cbranch_scc1 L_loop")
    pv1(3, 1)
    stamp(a, 7)
    a.c("---- merge the two key halves: each wave keeps its own q-tile")
    a(f"s_xor_b32 s54, {sSLOT}, 16384")
    a("s_nop 2")
    a(f"v_add_u32 v10, s54, v{vL16}")
    a("v_lshlrev_b32 v14, 2, v0")
    a("v_add_u32 v13, s54, v14")
    a(f"v_add_u32 v14, {sSLOT}, v14")
    a(f"s_lshl_b32 s54, {sOQ}, 15")
    a(f"s_lshl_b32 s55, {sWAVE}, 12")
    a("s_add_u32 s54, s54, s55")
    a(f"s_add_u32 s64, s54, {hex(O_OFF)}")
    a(f"ds_write_b128 v10, {vr(O[1],4)}")
    a(f"ds_write_b128 v10, {vr(O[1]+4,4)} offset:1024")
    a(f"ds_write_b32 v13, v{O[1]+8} offset:2048")
    a("s_waitcnt vmcnt(0) lgkmcnt(0)")
    a("s_barrier", "(also: all of Wo is in LDS)")
    stamp(a, 15)
    a(f"ds_read_b32 v{S[0]+8}, v14 offset:2048")
    a(f"ds_read_b128 {vr(S[0],4)}, v11")
    a(f"ds_read_b128 {vr(S[0]+4,4)}, v11 offset:1024")
    a(f"v_mov_b32 v13, {hex(f2u(2.0**-20))}")
    a(f"v_mov_b32 v1, {hex(f2u(2.0**60))}")
    a("s_waitcnt lgkmcnt(2)")
    a(f"v_add_f32 v{O[0]+8}, v{O[0]+8}, v{S[0]+8}")
    a(f"v_rcp_f32 v14, v{O[0]+8}")
    a("s_waitcnt lgkmcnt(0)")
    PK = 40
    def finish(add):
        if add:
            for i in range(8): a(f"v_add_f32 v{O[0]+i}, v{O[0]+i}, v{S[0]+i}")
        for i in range(8): a(f"v_mul_f32 v{S[0]+i}, v14, v{O[0]+i}")
        for i in range(4): a(f"v_cvt_pk_bf16_f32 v{PK+i}, v{S[0]+2*i}, v{S[0]+2*i+1}")
        a(f"buffer_store_dwordx4 {vr(PK,4)}, v{vL16}, {WS}, {sOOWN} offen sc1")
    finish(True)
    a.c("unshifted exponentials are exact enough iff 2^-20 <= row sum <= 2^60 and every accumulator is finite;\n"
        "otherwise redo with the true row max (nothing is flagged before the next barrier)")
    a(f"v_cmp_ge_f32 s[68:69], v{O[0]+8}, v13")
    a(f"v_cmp_le_f32 s[70:71], v{O[0]+8}, v1")
    a(f"v_mul_f32 v14, 0, v{O[0]}")
    for i in range(1, 8): a(f"v_fma_f32 v14, v{O[0]+i}, 0, v14")
    a("v_cmp_o_f32 vcc, v14, v14")
    a("s_and_b64 s[68:69], s[68:69], s[70:71]")
    a("s_nop 1")
    a("s_and_b64 s[68:69], s[68:69], vcc")
    a("s_cmp_eq_u64 s[68:69], -1")
    a("s_cbranch_scc0 L_fallback")
    a.label("L_fin")
    def poll_f(): a(f"buffer_load_dwordx2 {vr(vT,2)}, off, {WS}, s75 sc1")
    WF = 112
    wo_list = [(i, s_) for s_ in range(15, -1, -1) for i in range(2)]
    def rdWo(n):
        for _ in range(n):
            i, s_ = wo_list.pop(0)
            b = vA[i][s_ // 8]; o = (s_ % 8) * 8192; r = WF + 64*i + 4*s_
            a(f"ds_read_b64_tr_b16 {vr(r,2)}, v{b} offset:{o}")
            a(f"ds_read_b64_tr_b16 {vr(r+2,2)}, v{b} offset:{o+2048}")
    a.c("---- hand O over; the Wo fragments move to registers meanwhile")
    rdWo(7)
    a("s_waitcnt lgkmcnt(2)")
    rdWo(6)
    a("s_waitcnt vmcnt(0)")
    a("s_barrier", "every wave's O fragment is written through")
    a(f"s_cmp_lg_u32 {sWAVE}, {sQUAD}")
    a("s_cbranch_scc1 L_noflag")
    a("s_mov_b64 exec, 0xff")
    a(f"buffer_store_dwordx2 {vr(vPD,2)}, v{vFL}, {WS}, s74 offen sc1", "wave == quad has nothing to fetch: it flags")
    a("s_mov_b64 exec, -1")
    a("s_branch L_flagged")
    a.label("L_noflag")
    poll_f()
    a.label("L_flagged")
    stamp(a, 8)
    a(f"s_lshr_b32 s53, {sQUAD}, 2")
    a(f"s_cmp_lg_u32 s53, {sTT}")
    a("s_waitcnt lgkmcnt(0)")
    a("s_cbranch_scc1 L_noown")
    a(f"ds_write_b128 v{vOWN}, {vr(PK,4)}", "this workgroup's own heads go straight to their staging slot")
    a.label("L_noown")
    rdWo(7)
    a("s_waitcnt lgkmcnt(2)")
    rdWo(6)
    a(f"s_mov_b32 m0, {sSLOT}")
    a("s_waitcnt lgkmcnt(2)")
    rdWo(6)
    a(f"s_mov_b32 s53, {SPIN_MAX}")
    a(f"s_cmp_eq_u32 {sWAVE}, {sQUAD}")
    a("s_cbranch_scc1 L_oskip")
    a("s_branch L_ochk")
    a.label("L_ospin")
    poll_f()
    a.label("L_ochk")
    a("s_waitcnt vmcnt(0)")
    a(f"v_cmp_eq_u64 vcc, {NONCE}, {vr(vT,2)}")
    a("s_sub_u32 s53, s53, 1")
    a("s_cbranch_scc1 L_ogo")
    a("s_cmp_eq_u64 vcc, -1")
    a("s_cbranch_scc0 L_ospin")
    a.label("L_ogo")
    stamp(a, 9)
    for i in range(4):
        a(f"buffer_load_dwordx4 v{vL16}, {WS}, s64 offen offset:{i*1024} sc1 lds")
    a("s_waitcnt vmcnt(0)")
    stamp(a, 21)
    a.label("L_oskip")
    a("s_waitcnt lgkmcnt(0)")
    a("s_barrier")
    stamp(a, 10)
    a.c("---- output projection: 16 tokens x 32 columns per wave, two heads per step")
    ACC = 32; NB = 7
    def rd3(s_): a(f"ds_read_b128 {vr(44 + 4*(s_ % (NB+1)),4)}, v{vBO} offset:{s_*2048}")
    for s_ in range(NB): rd3(s_)
    for s_ in range(16):
        if s_ + NB < 16:
            rd3(s_ + NB); a(f"s_waitcnt lgkmcnt({NB})")
        else:
            a(f"s_waitcnt lgkmcnt({15 - s_})")
        f = 44 + 4*(s_ % (NB+1))
        for i in range(2):
            a(f"v_mfma_f32_16x16x32_bf16 {vr(ACC+4*i,4)}, {vr(WF+64*i+4*s_,4)}, {vr(f,4)}, " + ("0" if s_ == 0 else vr(ACC+4*i,4)))
    a("s_nop 7")
    for i in range(4): a(f"v_cvt_pk_bf16_f32 v{PK+i}, v{ACC+2*i}, v{ACC+2*i+1}")
    a("s_nop 1")
    a(f"v_permlane16_swap_b32 v{PK}, v{PK+2}")
    a(f"v_permlane16_swap_b32 v{PK+1}, v{PK+3}")
    a(f"buffer_store_dwordx4 {vr(PK,4)}, v{vSTO}, {OUT}, {sOST} offen nt")
    if OPT["stamp"]:
        stamp(a, 17)
        a("s_waitcnt vmcnt(0)")
        stamp(a, 11); stamp_out(a)
    a.label("L_end")
    a("s_endpgm")
    a.c("---- fallback (rare): exact row max over all keys, then this q-tile again with it subtracted")
    a.label("L_fallback")
    a(f"s_lshl_b32 s53, {sHEAD}, 17")
    a("s_mov_b32 s54, 0")
    a("v_mov_b32 v14, 0xff800000")
    a.label("L_fb1")
    a(f"buffer_load_dwordx4 {vr(KV[0],4)}, v{vL16}, {WS}, s53 offen sc1")
    a("s_waitcnt vmcnt(0)")
    qk(0, 0, "0")
    a("s_add_u32 s53, s53, 2048")
    a("s_add_u32 s54, s54, 1")
    a("s_nop 7"); a("s_nop 3")
    for i in range(8): a(f"v_max3_f32 v14, v{S[0]+2*i}, v{S[0]+2*i+1}, v14")
    a("s_cmp_lt_u32 s54, 64")
    a("s_cbranch_scc1 L_fb1")
    a("v_mov_b32 v1, v14")
    a("s_nop 1")
    a("v_permlane32_swap_b32 v14, v1")
    a("s_nop 1")
    a("v_max_f32 v14, v14, v1")
    for i in range(16): a(f"v_sub_f32 v{S[1]+i}, 0, v14")
    for i in range(16): a(f"v_mov_b32 v{O[0]+i}, 0")
    a(f"s_lshl_b32 s53, {sHEAD}, 17")
    a("s_mov_b32 s54, 0")
    a.label("L_fb2")
    a(f"buffer_load_dwordx4 {vr(KV[0],4)}, v{vL16}, {WS}, s53 offen sc1")
    a(f"s_mov_b64 exec, {VMASK}")
    a(f"buffer_load_dwordx4 {vr(KV[0]+4,4)}, v{vVO}, {WS}, s53 offen sc1")
    a(f"buffer_load_dwordx4 {vr(KV[0]+8,4)}, v{vVO}, {WS}, s53 offen offset:512 sc1")
    a("s_mov_b64 exec, -1")
    a("s_waitcnt vmcnt(0)")
    qk(0, 0, vr(S[1], 16))
    a("s_add_u32 s53, s53, 2048")
    a("s_add_u32 s54, s54, 1")
    a("s_nop 7"); a("s_nop 3")
    for i in range(16): ex(0, i)
    a("s_nop 1")
    pv0(0, 0); pv1(0, 0)
    a("s_cmp_lt_u32 s54, 64")
    a("s_cbranch_scc1 L_fb2")
    a("s_nop 7"); a("s_nop 7")
    a(f"v_rcp_f32 v14, v{O[0]+8}")
    a("s_nop 0")
    finish(False)
    a("s_branch L_fin")
    a.label("L_codeend")
    return f""".section .rodata,"a"
.p2align 6
.amdhsa_kernel {name}
  .amdhsa_next_free_vgpr 256
  .amdhsa_next_free_sgpr 100
  .amdhsa_accum_offset 256
  .amdhsa_group_segment_fixed_size 0
  .amdhsa_kernarg_size 48
  .amdhsa_user_sgpr_count 2
  .amdhsa_user_sgpr_kernarg_segment_ptr 1
  .amdhsa_system_sgpr_workgroup_id_x 1
.end_amdhsa_kernel
"""

if __name__ == "__main__":
    for kv in sys.argv[2:]:
        k, v = kv.split("="); assert k in OPT, k; OPT[k] = int(v)
    a = Asm()
    a.raw(HEADER.rstrip("\n"))
    a.raw('.amdgcn_target "amdgcn-amd-amdhsa--gfx950"')
    a.raw(".text")
    d = gen(a)
    open(sys.argv[1], "w").write(a.text() + d)
```

```python
import math, struct, sys

def f2u(x): return struct.unpack("<I", struct.pack("<f", x))[0]
CSCALE = 0.25 * math.log2(math.e)
O_OFF = 4 << 20
FKV_OFF = 6 << 20
FO_OFF = (6 << 20) + (256 << 10)
WB = 65536
R3 = 131072
SPIN_MAX = 1 << 16
OPT = dict(one=0, sched=0, ipf=1, qpf=1, stamp=0, drop=6, fstep=5, order=0)

class Asm:
    def __init__(self): self.l = []
    def __call__(self, s, c=None): self.l.append("    " + s + (" " * max(1, 74 - len(s)) + "; " + c if c else ""))
    def label(self, s): self.l.append(s + ":")
    def raw(self, s): self.l.append(s)
    def c(self, s):
        for t in s.split("\n"): self.l.append("    ; " + t)
    def text(self): return "\n".join(self.l) + "\n"
def vr(a, n): return f"v[{a}:{a+n-1}]"

vST_RT, vST_CY = 252, 253
STAMPS = {1: None, 3: (7, 11), 4: (7, 15, 8, 9, 21, 10, 17, 11), 5: (3, 24, 5, 22, 23, 19, 7, 11), 7: (2, 3, 5, 7, 11), 8: (12, 13, 20, 1, 2, 3, 11), 6: (12, 2, 25, 26, 27, 28, 29, 30, 31, 3, 11)}
def stamp(a, i):
    m = OPT["stamp"]
    if not m or (STAMPS[m] is not None and i not in STAMPS[m] and i != OPT['one']): return False
    a("s_memrealtime s[80:81]"); a("s_memtime s[82:83]"); a("s_waitcnt lgkmcnt(0)")
    a(f"v_writelane_b32 v{vST_RT}, s80, {i}"); a(f"v_writelane_b32 v{vST_CY}, s82, {i}")
    return True
def stamp_out(a):
    a(f"s_add_u32 s76, s20, {hex(16<<20)}"); a("s_addc_u32 s77, s21, 0"); a("s_mov_b32 s78, 0x100000"); a("s_mov_b32 s79, 0x00020000")
    a("s_lshl_b32 s80, s2, 3"); a("s_add_u32 s80, s80, s42"); a("s_lshl_b32 s80, s80, 8")
    a("v_lshlrev_b32 v1, 2, v0"); a("s_mov_b32 exec_hi, 0")
    a(f"buffer_store_dword v{vST_RT}, v1, s[76:79], s80 offen"); a(f"buffer_store_dword v{vST_CY}, v1, s[76:79], s80 offen offset:128")

X, W, WS, WO, OUT, DBG, KS = "s[12:15]", "s[16:19]", "s[20:23]", "s[24:27]", "s[28:31]", "s[32:35]", "s[76:79]"
sQUAD, sRB, sWAVE, sHD, sTT, sSLOT = "s40", "s41", "s42", "s43", "s44", "s45"
NONCE, VMASK = "s[46:47]", "s[48:49]"
sKVOWN, sKVH, sW1K, sHEAD, sQT, sOOWN, sOQ, sCB, sOST, sPOLL = "s50", "s51", "s52", "s56", "s57", "s58", "s60", "s61", "s62", "s63"
def sXT(p): return f"s{84+p}"
def sWT(p): return f"s{92+p}"
vL16, vIDX, vXD, vWD, vXR0, vXR1, vWR, vVO = 2, 3, 4, 5, 6, 7, 8, 9
AK, AV, AQ = 16, 24, 32
FW = [[40, 44, 48, 52], [32, 36, 104, 108]]
KV = [56, 68, 80, 92]
QA, QB = 104, 108
XF = 112
O = [112, 128]; S = [144, 160]
vWO, vPOLL, vPD, vKPOS, vKG, vVG, vWQ, vT, vWR4 = 240, 242, 244, 246, 247, 248, 249, 250, 254
vA = [[16, 17], [18, 19]]; vBO, vSTO, vOWN, vFL = 20, 21, 22, 23

HEADER = """; Multi-head attention block (B=1, S=2048, D=512, H=32, Dh=16) in ONE launch:
;   qkv = x @ wqkv ; o = softmax(q k^T / 4) v ; out = o @ wo
; Kernarg: x(0) wqkv(8) wo(16) out(24) debug(32) ws(40).  Generated by gen/gen_final.py.
; @launch grid=(256,1,1) block=(512,1,1) lds=163840
;
; Workgroup (quad, rb) = 4 heads x 64 tokens, one per CU; wave = (head hd of the quad, half tt).
;           K/V tiles go to the workspace in MFMA-fragment order (write-through), then a flag.
;           pick the high (bf16) half of the raw fp32 P registers, with two all-ones rows appended to V^T.
"""

def gen(a):
    name = "standalone__mha_block__prompt_kernel"
    a.raw(f".globl {name}"); a.raw(".p2align 8"); a.raw(f".type {name},@function"); a.label(name)
    a("s_cmp_ge_u32 s2, 256")
    a("s_cbranch_scc1 L_end", "workgroups past the grid leave at once")
    for d, off in ((12, 0), (16, 8), (32, 32), (20, 40), (24, 16), (28, 24)):
        a(f"s_load_dwordx2 s[{d}:{d+1}], s[0:1], {off}")
    a(f"s_memrealtime {NONCE}")
    if OPT["stamp"]: a("s_memtime s[82:83]")
    a.c("pull the rest of this kernel's code towards the L2 while the arguments are on their way")
    a("s_getpc_b64 s[76:77]")
    a.label("L_pc")
    a(f"v_lshlrev_b32 v1, {6 if OPT['ipf'] > 1 else 7}, v0")
    a(f"v_cmp_gt_u32 vcc, (L_codeend-L_pc)/{64 if OPT['ipf'] > 1 else 128}, v0")
    a("s_and_saveexec_b64 s[78:79], vcc")
    a("s_cbranch_execz L_noipf")
    if OPT["ipf"]: a(f"global_load_dword v{vT+1}, v1, s[76:77]")
    a.label("L_noipf")
    a("s_mov_b64 exec, -1")
    a("v_lshrrev_b32 v1, 6, v0")
    a("v_and_b32 v0, 63, v0", "v0 = lane")
    a(f"v_readfirstlane_b32 {sWAVE}, v1")
    a.c("quad = (wg&3)*2 + ((wg>>3)&1), rb = ((wg>>2)&1)*16 + (wg>>4): two quads per XCD under round-robin placement (speed only)")
    a("s_and_b32 s54, s2, 3")
    a("s_lshl_b32 s54, s54, 1")
    a("s_bfe_u32 s55, s2, 0x10003")
    a(f"s_add_u32 {sQUAD}, s54, s55")
    a("s_bfe_u32 s54, s2, 0x10002")
    a("s_lshl_b32 s54, s54, 4")
    a("s_lshr_b32 s55, s2, 4")
    a(f"s_add_u32 {sRB}, s54, s55")
    a(f"s_and_b32 {sHD}, {sWAVE}, 3")
    a(f"s_lshr_b32 {sTT}, {sWAVE}, 2")
    a(f"s_lshl_b32 {sW1K}, {sWAVE}, 10")
    a(f"v_lshlrev_b32 v{vL16}, 4, v0")
    a.c("x DMA source: row 8w + l/8 of the block, 16-byte piece (l%8) ^ ((row>>1)&7)  (bank swizzle)")
    a("v_lshrrev_b32 v10, 3, v0")
    a("v_and_b32 v11, 7, v0")
    a("v_lshrrev_b32 v12, 4, v0")
    a(f"s_and_b32 s53, {sWAVE}, 1")
    a("s_lshl_b32 s54, s53, 2")
    a("v_xor_b32 v13, v11, v12")
    a("v_xor_b32 v13, s54, v13")
    a(f"s_lshl_b32 s55, {sWAVE}, 3")
    a("v_add_u32 v10, s55, v10")
    a(f"s_lshl_b32 s55, {sRB}, 16")
    a("v_lshlrev_b32 v14, 10, v10")
    a("v_lshl_add_u32 v14, v13, 4, v14")
    a(f"v_add_u32 v{vXD}, s55, v14")
    a.c("W DMA source: k row 8w + l/8, the quad's 128-byte line, 32-byte slot ^ (((row>>1)&1) | ((row>>3)&1)<<1)")
    a("v_and_b32 v12, 1, v12")
    a("v_lshlrev_b32 v12, 1, v12")
    a("v_xor_b32 v13, v11, v12")
    a("v_xor_b32 v13, s54, v13")
    a("v_mul_u32_u24 v14, 3072, v10")
    a("v_lshl_add_u32 v14, v13, 4, v14")
    a(f"s_lshl_b32 s55, {sQUAD}, 7")
    a(f"v_add_u32 v{vWD}, s55, v14")
    a.c("the 64-deep k chunks are walked in an order rotated per workgroup, so every line is requested early by someone")
    a(f"s_add_u32 s53, {sQUAD}, {sRB}")
    for p in range(8):
        a("s_and_b32 s53, s53, 7")
        a(f"s_lshl_b32 {sXT(p)}, s53, 7")
        a(f"s_mul_i32 {sWT(p)}, s53, 196608")
        if p < 7: a("s_add_u32 s53, s53, 1")
    a("v_and_b32 v12, 31, v0")
    a(f"s_lshl_b32 s53, {sRB}, 5")
    a("s_and_b32 s53, s53, 511")
    a("v_add_u32 v12, s53, v12")
    a("v_mul_u32_u24 v15, 3072, v12")
    if OPT["qpf"] > 1:
        a("v_lshrrev_b32 v12, 5, v0")
        a("v_lshl_add_u32 v15, v12, 6, v15", "this workgroup's share of the Wq lines, both halves (L2 prefetch)")
    for d, size in ((12, 2048*1024), (16, 512*3072), (32, 256), (20, 8 << 20), (24, 512*1024), (28, 2048*1024)):
        a(f"s_mov_b32 s{d+2}, {hex(size)}")
        a(f"s_mov_b32 s{d+3}, 0x00020000")
    a(f"s_mov_b32 m0, {sW1K}")
    a("s_waitcnt lgkmcnt(0)")
    if OPT["stamp"]:
        a(f"v_writelane_b32 v{vST_RT}, s46, 0"); a(f"v_writelane_b32 v{vST_CY}, s82, 0")
    stamp(a, 12)
    issued = []
    def dma_x(p, m0=True):
        if m0:
            a(f"s_add_u32 m0, {sW1K}, {p*8192}"); a("s_nop 0")
        a(f"buffer_load_dwordx4 v{vXD}, {X}, {sXT(p)} offen lds"); issued.append(("x", p))
    def dma_w(t, p, dest, tag):
        a(f"s_add_u32 m0, {sW1K}, {dest - t*1024}")
        a("s_nop 0")
        a(f"buffer_load_dwordx4 v{vWD}, {W}, {sWT(p)} offen offset:{t*1024} lds"); issued.append(tag)
    def dma_kv(p):
        dma_w(1, p, WB + (p%5)*16384, ("kv", p)); dma_w(2, p, WB + (p%5)*16384 + 8192, ("kv", p))
    QDEST = [0, 8192, 16384, 24576, 32768, WB + 3*16384, WB + 3*16384 + 8192, 40960]
    dma_x(0, False); dma_kv(0)
    a.c("launch nonce: workgroup 0, wave 0 publishes its clock reading")
    a("s_or_b32 s46, s46, 1")
    a(f"s_or_b32 s53, s2, {sWAVE}")
    a("s_cbranch_scc1 L_nonon")
    a("v_mov_b32 v10, s46"); a("v_mov_b32 v11, s47")
    a("s_mov_b64 exec, 1")
    a(f"buffer_store_dwordx2 v[10:11], off, {DBG}, 0 sc1")
    a("s_mov_b64 exec, -1")
    a.label("L_nonon")
    a(f"s_cmp_lg_u32 {sWAVE}, 7")
    a("s_cbranch_scc1 L_noqpf")
    if OPT["qpf"]: a(f"buffer_load_dword v{vT}, v15, {W}, s55 offen")
    a.label("L_noqpf")
    if OPT["order"] == 0:
        for p in range(1, 4): dma_x(p)
    elif OPT["order"] == 3:
        dma_x(1)
    stamp(a, 13)
    a.c("scalar offsets")
    a(f"s_lshl_b32 {sSLOT}, {sWAVE}, 12")
    a(f"s_add_u32 {sSLOT}, {sSLOT}, {R3}")
    a(f"s_lshl_b32 s53, {sQUAD}, 2")
    a(f"s_add_u32 {sHEAD}, s53, {sHD}")
    a(f"s_lshl_b32 s53, {sHEAD}, 17")
    a(f"s_lshl_b32 s54, {sTT}, 11")
    a(f"s_add_u32 {sKVH}, s53, s54", "K/V stream of this wave: head*128K + tt*2K (+ 4K per 64 tokens)")
    a(f"s_lshl_b32 s64, {sRB}, 12")
    a(f"s_add_u32 {sKVOWN}, {sKVH}, s64")
    a(f"s_lshl_b32 s53, {sRB}, 1")
    a(f"s_add_u32 {sQT}, s53, {sTT}")
    a(f"s_lshl_b32 s53, {sQT}, 15")
    a(f"s_lshl_b32 s54, {sHEAD}, 10")
    a(f"s_add_u32 {sOOWN}, s53, s54")
    a(f"s_add_u32 {sOOWN}, {sOOWN}, {hex(O_OFF)}", "own O fragment")
    a(f"s_lshl_b32 {sPOLL}, {sQUAD}, 10")
    a(f"s_add_u32 {sPOLL}, {sPOLL}, {hex(FKV_OFF)}", "this quad's K/V flags: 32 entries, 32 bytes apart")
    a("v_and_b32 v12, 31, v0")
    a(f"v_lshlrev_b32 v{vPOLL}, 5, v12")
    a(f"s_lshr_b32 s53, {sQUAD}, 2")
    a(f"s_lshl_b32 s54, {sRB}, 1")
    a(f"s_add_u32 {sOQ}, s53, s54", "output tile: tokens of q-tile 2rb + quad/4, columns 128*(quad%4)")
    a(f"s_and_b32 {sCB}, {sQUAD}, 3")
    a(f"s_lshl_b32 {sCB}, {sCB}, 8")
    a(f"s_lshl_b32 s53, {sOQ}, 15")
    a(f"s_add_u32 {sOST}, s53, {sCB}")
    a(f"s_lshl_b32 s53, {sHD}, 6")
    a(f"s_add_u32 {sOST}, {sOST}, s53")
    a(f"s_lshl_b32 s53, {sTT}, 14")
    a(f"s_add_u32 {sOST}, {sOST}, s53")
    a.c("O flags: one 128-byte line per (writer, reader) pair of the eight workgroups of a row block")
    a(f"s_lshl_b32 s53, {sRB}, 3")
    a(f"s_add_u32 s54, s53, {sQUAD}")
    a("s_lshl_b32 s54, s54, 10")
    a(f"s_add_u32 s74, s54, {hex(FO_OFF)}")
    a(f"s_add_u32 s75, s53, {sWAVE}")
    a("s_lshl_b32 s75, s75, 10")
    a(f"s_lshl_b32 s54, {sQUAD}, 7")
    a("s_add_u32 s75, s75, s54")
    a(f"s_add_u32 s75, s75, {hex(FO_OFF)}")
    a(f"s_lshl_b32 s65, {sRB}, 13")
    a("s_and_b32 s65, s65, 0x1ffff")
    a("s_lshl_b32 s66, s65, 2")
    if OPT["order"] == 2:
        for p in range(1, 4): dma_x(p)
    if OPT["order"] == 3:
        dma_kv(1); dma_x(2); dma_x(3)
    a.c("LDS read addresses: x fragments (two k steps), W fragments (transposing reads)")
    a("v_and_b32 v10, 15, v0")
    a("v_lshrrev_b32 v11, 4, v0")
    a("v_bfe_u32 v12, v0, 1, 3")
    a("v_xor_b32 v12, v11, v12")
    a(f"s_lshl_b32 s53, {sTT}, 12")
    a("v_lshlrev_b32 v13, 7, v10")
    a("v_add_u32 v13, s53, v13")
    a(f"v_lshl_add_u32 v{vXR0}, v12, 4, v13")
    a(f"v_xor_b32 v{vXR1}, 64, v{vXR0}")
    a("v_bfe_u32 v12, v0, 2, 2")
    a("v_lshl_add_u32 v13, v11, 3, v12")
    a("v_lshlrev_b32 v13, 7, v13")
    a("v_bfe_u32 v14, v0, 3, 2")
    a(f"v_xor_b32 v14, {sHD}, v14")
    a("v_lshl_add_u32 v13, v14, 5, v13")
    a("v_and_b32 v14, 3, v0")
    a(f"v_lshl_add_u32 v{vWQ}, v14, 3, v13")
    a(f"v_add_u32 v{vWR}, {WB}, v{vWQ}")
    a(f"v_add_u32 v{vWR4}, {R3}, v{vWQ}")
    a.c("K/V tile = 1 KB K fragment (lane-linear) + 1 KB V^T fragments (4 x 16 lanes x 16 B)")
    a("v_lshrrev_b32 v12, 5, v0")
    a("v_lshlrev_b32 v12, 8, v12")
    a("v_lshl_add_u32 v12, v10, 4, v12")
    a(f"v_add_u32 v{vVO}, 1024, v12")
    a(f"v_add_u32 v{vKG}, {sKVH}, v{vL16}")
    a(f"v_add_u32 v{vVG}, {sKVH}, v{vVO}")
    a("v_and_b32 v12, 0x23, v0")
    a("v_bfe_u32 v13, v0, 2, 2")
    a("v_lshl_add_u32 v12, v13, 3, v12")
    a("v_bfe_u32 v13, v0, 4, 1")
    a("v_lshl_add_u32 v12, v13, 2, v12")
    a(f"v_lshlrev_b32 v{vKPOS}, 4, v12", "K rows are stored in the key order of the V^T fragments")
    a.c("Wo DMA source: row 4w + l/16, 32-byte slot ^ (row&7)")
    a(f"s_lshl_b32 s53, {sWAVE}, 2")
    a("v_add_u32 v12, s53, v11")
    a("v_and_b32 v13, 7, v12")
    a("v_lshlrev_b32 v13, 1, v13")
    a("v_xor_b32 v13, v10, v13")
    a("v_lshlrev_b32 v14, 10, v12")
    a("v_lshl_add_u32 v14, v13, 4, v14")
    a(f"v_add_u32 v{vWO}, {sCB}, v14")
    a(f"v_mov_b32 v{vIDX}, 0xdddddddd", "sparse index: elements 1 and 3 of every 4 = high halves of two fp32")
    a("s_mov_b32 s48, 0xffff"); a("s_mov_b32 s49, 0xffff", "lanes that carry V^T rows 0..15")
    a("v_and_b32 v12, 27, v0")
    a("v_cmp_eq_u32 vcc, 16, v12")
    a("v_mov_b32 v15, 0x3f803f80")
    a("s_nop 0")
    a.c("rows 16 and 20 of the V^T operand are ones (row sums), the other spare rows zero")
    for j in range(4):
        for i in range(8): a(f"v_cndmask_b32 v{KV[j]+4+i}, 0, v15, vcc")
    stamp(a, 20)
    if OPT["order"] == 1:
        dma_x(1); dma_kv(1); dma_x(2); dma_x(3); dma_kv(2)
    elif OPT["order"] == 3:
        dma_kv(2)
    else:
        dma_kv(1); dma_kv(2)
    stamp(a, 1)

    def waitvm(pred):
        last = max(i for i, t in enumerate(issued) if pred(t))
        a(f"s_waitcnt vmcnt({len(issued) - 1 - last})")
    def xf(p, s): return XF + 8*(2*p + s)
    def rd_w(base, off, r):
        a(f"ds_read_b64_tr_b16 {vr(r,2)}, v{base} offset:{off}")
        a(f"ds_read_b64_tr_b16 {vr(r+2,2)}, v{base} offset:{off + 512}")
    def readsA(p):
        fw = FW[p % 2]
        for s in range(2):
            b = vXR0 if s == 0 else vXR1; f = xf(p, s)
            a(f"ds_read_b128 {vr(f,4)}, v{b} offset:{p*8192}")
            a(f"ds_read_b128 {vr(f+4,4)}, v{b} offset:{p*8192+2048}")
            wb, wo = (vWR, (p%5)*16384) if p % 5 < 4 else (vWR4, 0)
            rd_w(wb, wo + s*4096, fw[2*s]); rd_w(wb, wo + 8192 + s*4096, fw[2*s+1])
    def mfmaA(p, s):
        f = xf(p, s); wk, wv = FW[p % 2][2*s], FW[p % 2][2*s+1]
        def c(r): return "0" if p == 0 and s == 0 else vr(r, 4)
        a(f"v_mfma_f32_16x16x32_bf16 {vr(AK,4)}, {vr(wk,4)}, {vr(f,4)}, {c(AK)}")
        a(f"v_mfma_f32_16x16x32_bf16 {vr(AK+4,4)}, {vr(wk,4)}, {vr(f+4,4)}, {c(AK+4)}")
        a(f"v_mfma_f32_16x16x32_bf16 {vr(AV,4)}, {vr(f,4)}, {vr(wv,4)}, {c(AV)}")
        a(f"v_mfma_f32_16x16x32_bf16 {vr(AV+4,4)}, {vr(f+4,4)}, {vr(wv,4)}, {c(AV+4)}")
    def grab(fn):
        n0 = len(a.l); fn(); out = a.l[n0:]; del a.l[n0:]; return out
    a.c("---- K, V.  Step p: chunk p has landed -> read its fragments, request later chunks, multiply chunk p-1.\n"
        "     A ring slot / x slot is refilled two barriers after its last reader issued (covered by lgkmcnt(0) in between).")
    QSCHED = {5: [0, 1, 2], 6: [3, 4, 5], 7: [6, 7]}
    for p in range(8):
        waitvm(lambda t: t[1] == p and t[0] in ("x", "kv"))
        a("s_barrier")
        if p == 0: stamp(a, 2)
        elif OPT["stamp"] == 6: stamp(a, 24 + p)
        if p >= 1: a("s_waitcnt lgkmcnt(0)")
        rd = grab(lambda: readsA(p))
        mf = grab(lambda: (mfmaA(p-1, 0), mfmaA(p-1, 1))) if p >= 1 else []
        dm = []
        if p + 3 < 8:
            kvl = grab(lambda: dma_kv(p + 3)); dm += [kvl[:3], kvl[3:]]
        if p + 4 < 8: dm.append(grab(lambda: dma_x(p + 4)))
        for j in QSCHED.get(p, []): dm.append(grab(lambda: dma_w(0, j, QDEST[j], ("q", j))))
        k = 0
        sc = OPT["sched"]
        if sc == 0:
            for i in range(12):
                a.l.append(rd[i])
                while k < len(mf) and k < (i + 1) * 8 // 12:
                    a.l.append(mf[k]); k += 1
                if i % 4 == 3 and i // 4 < len(dm): a.l += dm[i // 4]
        elif sc == 1:
            for i in range(12):
                if k < len(mf) and k <= i * 8 // 12:
                    a.l.append(mf[k]); k += 1
                d = dm[i // 4] if i % 4 == 2 and i // 4 < len(dm) else None
                if d: a.l.append(d[0])
                a.l.append(rd[i])
                if d: a.l.append(d[2])
            a.l += mf[k:]
        elif sc == 2:
            for d in dm: a.l += d
            for i in range(12):
                if k < len(mf) and k <= i * 8 // 12:
                    a.l.append(mf[k]); k += 1
                a.l.append(rd[i])
            a.l += mf[k:]
        elif sc == 3:
            a.l += mf[:1] + rd[:6] + mf[1:2] + rd[6:]
            rest = mf[2:]
            for i, d in enumerate(dm):
                a.l.append(d[0]); a.l += rest[2*i:2*i+1] or ["    s_nop 0"]; a.l.append(d[2]); a.l += rest[2*i+1:2*i+2]
            a.l += rest[2*len(dm):]
        assert len(dm) <= 3
        if p == 2:
            a(f"s_cmp_lg_u32 {sWAVE}, 0")
            a("s_cbranch_scc1 L_nf1")
            a(f"buffer_load_dwordx2 {vr(vPD,2)}, off, {DBG}, 0 sc1", "fetch the nonce")
            a.label("L_nf1")
    a("s_waitcnt lgkmcnt(6)")
    mfmaA(7, 0)
    a("s_waitcnt lgkmcnt(0)")
    mfmaA(7, 1)
    stamp(a, 3)
    a.c("---- publish K/V (write-through) and keep a copy of the own tile through this wave's LDS slot")
    F = 40
    a(f"v_add_u32 v10, {sSLOT}, v{vKPOS}")
    a(f"v_add_u32 v11, {sSLOT}, v{vL16}")
    a(f"v_add_u32 v12, {sSLOT}, v{vVO}")
    a("s_nop 4")
    for i in range(4): a(f"v_cvt_pk_bf16_f32 v{F+i}, v{AK+2*i}, v{AK+2*i+1}")
    for i in range(4): a(f"v_cvt_pk_bf16_f32 v{F+4+i}, v{AV+2*i}, v{AV+2*i+1}")
    a(f"v_permlane16_swap_b32 v{F}, v{F+2}")
    a(f"v_permlane16_swap_b32 v{F+1}, v{F+3}")
    a(f"buffer_store_dwordx4 {vr(F+4,4)}, v{vL16}, {WS}, {sKVOWN} offen offset:1024 sc1")
    a(f"buffer_store_dwordx4 {vr(F,4)}, v{vKPOS}, {WS}, {sKVOWN} offen sc1")
    a(f"ds_write_b128 v11, {vr(F+4,4)} offset:1024")
    a(f"ds_write_b128 v10, {vr(F,4)}")
    a("s_waitcnt lgkmcnt(0)")
    a(f"ds_read_b128 {vr(KV[0],4)}, v11")
    a(f"s_mov_b64 exec, {VMASK}")
    a(f"ds_read_b128 {vr(KV[0]+4,4)}, v12")
    a(f"ds_read_b128 {vr(KV[0]+8,4)}, v12 offset:512")
    a("s_mov_b64 exec, -1")
    a("s_waitcnt vmcnt(7)", "Wq chunks 0..2 (and the nonce)")
    a(f"s_cmp_lg_u32 {sWAVE}, 0")
    a("s_cbranch_scc1 L_nf2")
    a(f"s_mov_b32 s53, {SPIN_MAX}")
    a.label("L_nspin")
    a(f"v_readfirstlane_b32 s54, v{vPD}")
    a("s_sub_u32 s53, s53, 1")
    a("s_cbranch_scc1 L_ngot")
    a("s_cmp_lg_u32 s54, 0")
    a("s_cbranch_scc1 L_ngot")
    a("s_sleep 2")
    a(f"buffer_load_dwordx2 {vr(vPD,2)}, off, {DBG}, 0 sc1")
    a("s_waitcnt vmcnt(0)")
    a("s_branch L_nspin")
    a.label("L_ngot")
    a(f"v_mov_b32 v10, {R3 + 2816}")
    a(f"ds_write_b64 v10, {vr(vPD,2)}")
    a.label("L_nf2")
    a("s_waitcnt lgkmcnt(0)")
    a("s_barrier")
    stamp(a, 14)
    a(f"v_mov_b32 v10, {R3 + 2816}")
    a(f"ds_read_b64 {vr(vPD,2)}, v10")
    a.c("---- Q (the x fragments are still in registers)")
    BS = [48, 52, 16, 20, 24, 28, 40, 44]
    lgq = ["n"]
    def readsB(st):
        p, s = divmod(st, 2); d = QDEST[p]
        if d < WB: rd_w(vWQ, d + s*4096, BS[st % 8])
        else: rd_w(vWR, d - WB + s*4096, BS[st % 8])
        lgq.extend([st, st])
    FS = OPT["fstep"]; nxt = 0
    a(f"s_lshl_b32 s54, {sRB}, 5")
    a(f"s_add_u32 s53, {sPOLL}, s54")
    for st in range(16):
        if st == FS:
            a("s_waitcnt vmcnt(0)")
            if stamp(a, 18): del lgq[:]
            a("s_barrier", "every wave's K/V is written through, all of Wq has landed")
            a(f"s_cmp_lg_u32 {sWAVE}, 0")
            a("s_cbranch_scc1 L_nflag")
            a("s_mov_b64 exec, 1")
            a(f"buffer_store_dwordx2 {vr(vPD,2)}, off, {WS}, s53 sc1", "K/V flag of this workgroup")
            a("s_mov_b64 exec, -1")
            a.label("L_nflag")
            if stamp(a, 24): del lgq[:]
        while nxt < min(6 if st < FS else 16, st + 6):
            readsB(nxt); nxt += 1
        if st in lgq:
            last = max(i for i, t in enumerate(lgq) if t == st)
            a(f"s_waitcnt lgkmcnt({len(lgq) - 1 - last})"); del lgq[:last + 1]
        if st == 0:
            a(f"v_readfirstlane_b32 s46, v{vPD}")
            a(f"v_readfirstlane_b32 s47, v{vPD+1}")
        f = XF + 8*st; w = BS[st % 8]
        c0, c1 = ("0", "0") if st == 0 else (vr(AQ,4), vr(AQ+4,4))
        a(f"v_mfma_f32_16x16x32_bf16 {vr(AQ,4)}, {vr(w,4)}, {vr(f,4)}, {c0}")
        a(f"v_mfma_f32_16x16x32_bf16 {vr(AQ+4,4)}, {vr(w,4)}, {vr(f+4,4)}, {c1}")
        if st == 2:
            for i in range(4): a(f"v_mov_b32 v{12+i}, 0")
        if st == 3:
            a(f"v_mfma_f32_32x32x16_bf16 {vr(O[0],16)}, v[12:15], v[12:15], 0", "clear the O accumulators")
            a(f"v_mfma_f32_32x32x16_bf16 {vr(O[1],16)}, v[12:15], v[12:15], 0")
    a(f"s_mov_b32 s53, {hex(f2u(CSCALE))}", "log2(e)/4 goes into Q")
    a(f"s_xor_b32 s54, {sSLOT}, 16384")
    a(f"v_add_u32 v10, s54, v{vL16}")
    a("s_mov_b64 s[76:77], s[20:21]")
    a("s_mov_b32 s78, s22")
    a("s_mov_b32 s79, 0x00020000")
    a("s_mov_b32 s67, 8")
    a("s_nop 0")
    for i in range(8): a(f"v_mul_f32 v{AQ+i}, s53, v{AQ+i}")
    for i in range(4): a(f"v_cvt_pk_bf16_f32 v{QA+i}, v{AQ+2*i}, v{AQ+2*i+1}")
    a("s_nop 1")
    a(f"v_permlane16_swap_b32 v{QA}, v{QA+2}")
    a(f"v_permlane16_swap_b32 v{QA+1}, v{QA+3}")
    a(f"ds_write_b128 v10, {vr(QA,4)} offset:3072", "the partner wave needs this Q tile too")
    def qk(j, q, c="0.15915494"): a(f"v_mfma_f32_32x32x16_bf16 {vr(S[q],16)}, {vr(KV[j],4)}, {vr(QA if q == 0 else QB,4)}, {c}")
    def pv0(j, q): a(f"v_smfmac_f32_32x32x32_bf16 {vr(O[q],16)}, {vr(KV[j]+4,4)}, {vr(S[q],8)}, v{vIDX}")
    def pv1(j, q): a(f"v_smfmac_f32_32x32x32_bf16 {vr(O[q],16)}, {vr(KV[j]+8,4)}, {vr(S[q]+8,8)}, v{vIDX}")
    def ex(q, i): a(f"v_exp_f32 v{S[q]+i}, v{S[q]+i}")
    def poll_kv(): a(f"buffer_load_dwordx2 {vr(vT,2)}, v{vPOLL}, {WS}, {sPOLL} offen sc1")
    a(f"s_mov_b32 s53, {SPIN_MAX}")
    a.c("the constant added to every score (1/2pi) cancels in the normalisation; it keeps exp2(0) off a bf16 step")
    qk(0, 0)
    stamp(a, 16)
    a("s_waitcnt lgkmcnt(0)")
    a("s_barrier")
    a(f"ds_read_b128 {vr(QB,4)}, v11 offset:3072")
    poll_kv()
    stamp(a, 5)
    a("s_nop 7")
    a.c("---- attention on the own key tile while the other workgroups' flags arrive")
    ex(0, 0); ex(0, 1); ex(0, 2); ex(0, 3)
    a("s_waitcnt lgkmcnt(0)")
    qk(0, 1)
    for i in range(4, 11): ex(0, i)
    pv0(0, 0)
    for i in range(11, 16): ex(0, i)
    def unit01():
        ex(1, 0); ex(1, 1)
        pv1(0, 0)
        for i in range(2, 11): ex(1, i)
        pv0(0, 1)
        for i in range(11, 16): ex(1, i)
    def ldK(j):
        a("s_add_u32 s64, s64, 4096"); a("s_and_b32 s64, s64, 0x1ffff")
        a(f"buffer_load_dwordx4 {vr(KV[j],4)}, v{vKG}, {KS}, s64 offen sc1")
    def ldV(j):
        a(f"s_mov_b64 exec, {VMASK}")
        a(f"buffer_load_dwordx4 {vr(KV[j]+4,4)}, v{vVG}, {KS}, s64 offen sc1")
        a(f"buffer_load_dwordx4 {vr(KV[j]+8,4)}, v{vVG}, {KS}, s64 offen offset:512 sc1")
        a("s_mov_b64 exec, -1")
    def first_loads():
        for j in (1, 2, 3): ldK(j); ldV(j)
    a("s_waitcnt vmcnt(0)")
    a(f"v_cmp_eq_u64 vcc, {NONCE}, {vr(vT,2)}")
    a("s_nop 1")
    a("s_cmp_eq_u64 vcc, -1")
    a("s_cbranch_scc0 L_late")
    stamp(a, 22); stamp(a, 23)
    first_loads()
    unit01()
    a("s_branch L_go")
    a.label("L_late")
    stamp(a, 22)
    poll_kv()
    unit01()
    a.label("L_kvspin")
    a("s_waitcnt vmcnt(0)")
    a(f"v_cmp_eq_u64 vcc, {NONCE}, {vr(vT,2)}")
    a("s_sub_u32 s53, s53, 1")
    a("s_cbranch_scc1 L_kvgo")
    a("s_cmp_eq_u64 vcc, -1")
    a("s_cbranch_scc1 L_kvgo")
    a("s_sleep 1")
    poll_kv()
    a("s_branch L_kvspin")
    a.label("L_kvgo")
    stamp(a, 23)
    first_loads()
    a.label("L_go")
    a.c("phase-3 addresses: wave = (32-column pair w&3, 16-token half w>>2)")
    a("v_lshrrev_b32 v12, 5, v0")
    a("v_bfe_u32 v13, v0, 2, 3")
    a("v_lshl_add_u32 v14, v12, 4, v13")
    a("v_lshlrev_b32 v14, 8, v14")
    a(f"s_lshl_b32 s54, {sHD}, 1")
    a("v_xor_b32 v13, s54, v13")
    a("v_lshl_add_u32 v14, v13, 5, v14")
    a("v_and_b32 v13, 3, v0")
    a(f"v_lshl_add_u32 v{vA[0][0]}, v13, 3, v14")
    a(f"v_add_u32 v{vA[0][1]}, 65536, v{vA[0][0]}")
    a(f"v_xor_b32 v{vA[1][0]}, 32, v{vA[0][0]}")
    a(f"v_xor_b32 v{vA[1][1]}, 32, v{vA[0][1]}")
    a("v_and_b32 v10, 15, v0")
    a("v_lshrrev_b32 v13, 4, v0")
    a("v_lshlrev_b32 v14, 9, v13")
    a("v_lshl_add_u32 v14, v10, 4, v14")
    a(f"s_lshl_b32 s54, {sTT}, 8")
    a(f"s_add_u32 s54, s54, {R3}")
    a(f"v_add_u32 v{vBO}, s54, v14")
    a("v_lshlrev_b32 v14, 10, v10")
    a("v_lshl_add_u32 v14, v12, 4, v14")
    a("v_and_b32 v13, 1, v13")
    a(f"v_lshl_add_u32 v{vSTO}, v13, 5, v14")
    a(f"s_lshl_b32 s53, {sQUAD}, 12")
    a(f"s_lshl_b32 s54, {sHD}, 10")
    a("s_add_u32 s53, s53, s54")
    a(f"s_add_u32 s53, s53, {R3}")
    a(f"v_add_u32 v{vOWN}, s53, v{vL16}")
    a(f"v_lshlrev_b32 v{vFL}, 7, v0")
    stamp(a, 6)
    a.c("the two waves of a SIMD take turns leading so that both stay runnable to the end")
    a(f"s_cmp_lg_u32 {sTT}, 1")
    a("s_cbranch_scc1 L_noprio")
    a("s_setprio 1")
    a.label("L_noprio")
    a("s_waitcnt vmcnt(6)")
    qk(1, 0)
    a("s_nop 7")
    a("s_nop 2")
    stamp(a, 19)
    a("s_branch L_loop1")
    a.raw(".p2align 6")
    a.c("---- 31 remote key tiles (entered at the second quarter), three tiles in flight")
    a.label("L_loop")
    for u in range(4):
        if u == 1:
            a.label("L_loop1")
            a(f"s_cmp_lg_u32 s67, {8 - OPT['drop']}")
            a("s_cbranch_scc1 L_nodrop")
            a("s_setprio 0")
            a(f"buffer_load_dwordx2 {vr(vT,2)}, off, {WS}, s75 sc1", "first touch of the O flag line")
            a.label("L_nodrop")
            a("s_cmp_eq_u32 s67, 1")
            a("s_cselect_b32 s78, 0, s78", "the last three prefetches have no consumer: out of range")
        pj = (u - 1) % 4; nj = (u + 1) % 4
        for i in range(16):
            if i == 2: pv1(pj, 1)
            if i == 3: ldK(pj)
            if i == 5: qk(u, 1)
            if i == 7: ldV(pj)
            if i == 11: pv0(u, 0)
            ex(0, i)
        for i in range(16):
            if i == 2: pv1(u, 0)
            if i == 5:
                a("s_waitcnt vmcnt(6)"); qk(nj, 0)
            if i == 11: pv0(u, 1)
            ex(1, i)
    a("s_cmp_le_u32 s67, 4")
    a("s_cbranch_scc1 L_nowo")
    for i in range(4):
        a(f"s_add_u32 m0, s65, {sW1K}", "a quarter of this workgroup's Wo slice per pass" if i == 0 else None)
        a("s_add_u32 s65, s65, 8192")
        a(f"buffer_load_dwordx4 v{vWO}, {WO}, s66 offen lds")
        a("s_and_b32 s65, s65, 0x1ffff")
        a("s_lshl_b32 s66, s65, 2")
    a.label("L_nowo")
    a("s_sub_u32 s67, s67, 1")
    a("s_cmp_lg_u32 s67, 0")
    a("s_cbranch_scc1 L_loop")
    pv1(3, 1)
    stamp(a, 7)
    a.c("---- merge the two key halves: each wave keeps its own q-tile")
    a(f"s_xor_b32 s54, {sSLOT}, 16384")
    a("s_nop 2")
    a(f"v_add_u32 v10, s54, v{vL16}")
    a("v_lshlrev_b32 v14, 2, v0")
    a("v_add_u32 v13, s54, v14")
    a(f"v_add_u32 v14, {sSLOT}, v14")
    a(f"s_lshl_b32 s54, {sOQ}, 15")
    a(f"s_lshl_b32 s55, {sWAVE}, 12")
    a("s_add_u32 s54, s54, s55")
    a(f"s_add_u32 s64, s54, {hex(O_OFF)}")
    a(f"ds_write_b128 v10, {vr(O[1],4)}")
    a(f"ds_write_b128 v10, {vr(O[1]+4,4)} offset:1024")
    a(f"ds_write_b32 v13, v{O[1]+8} offset:2048")
    a("s_waitcnt vmcnt(0) lgkmcnt(0)")
    a("s_barrier", "(also: all of Wo is in LDS)")
    stamp(a, 15)
    a(f"ds_read_b32 v{S[0]+8}, v14 offset:2048")
    a(f"ds_read_b128 {vr(S[0],4)}, v11")
    a(f"ds_read_b128 {vr(S[0]+4,4)}, v11 offset:1024")
    a(f"v_mov_b32 v13, {hex(f2u(2.0**-20))}")
    a(f"v_mov_b32 v1, {hex(f2u(2.0**60))}")
    a("s_waitcnt lgkmcnt(2)")
    a(f"v_add_f32 v{O[0]+8}, v{O[0]+8}, v{S[0]+8}")
    a(f"v_rcp_f32 v14, v{O[0]+8}")
    a("s_waitcnt lgkmcnt(0)")
    PK = 40
    def finish(add):
        if add:
            for i in range(8): a(f"v_add_f32 v{O[0]+i}, v{O[0]+i}, v{S[0]+i}")
        for i in range(8): a(f"v_mul_f32 v{S[0]+i}, v14, v{O[0]+i}")
        for i in range(4): a(f"v_cvt_pk_bf16_f32 v{PK+i}, v{S[0]+2*i}, v{S[0]+2*i+1}")
        a(f"buffer_store_dwordx4 {vr(PK,4)}, v{vL16}, {WS}, {sOOWN} offen sc1")
    finish(True)
    a.c("unshifted exponentials are exact enough iff 2^-20 <= row sum <= 2^60 and every accumulator is finite;\n"
        "otherwise redo with the true row max (nothing is flagged before the next barrier)")
    a(f"v_cmp_ge_f32 s[68:69], v{O[0]+8}, v13")
    a(f"v_cmp_le_f32 s[70:71], v{O[0]+8}, v1")
    a(f"v_mul_f32 v14, 0, v{O[0]}")
    for i in range(1, 8): a(f"v_fma_f32 v14, v{O[0]+i}, 0, v14")
    a("v_cmp_o_f32 vcc, v14, v14")
    a("s_and_b64 s[68:69], s[68:69], s[70:71]")
    a("s_nop 1")
    a("s_and_b64 s[68:69], s[68:69], vcc")
    a("s_cmp_eq_u64 s[68:69], -1")
    a("s_cbranch_scc0 L_fallback")
    a.label("L_fin")
    def poll_f(): a(f"buffer_load_dwordx2 {vr(vT,2)}, off, {WS}, s75 sc1")
    WF = 112
    wo_list = [(i, s_) for s_ in range(15, -1, -1) for i in range(2)]
    def rdWo(n):
        for _ in range(n):
            i, s_ = wo_list.pop(0)
            b = vA[i][s_ // 8]; o = (s_ % 8) * 8192; r = WF + 64*i + 4*s_
            a(f"ds_read_b64_tr_b16 {vr(r,2)}, v{b} offset:{o}")
            a(f"ds_read_b64_tr_b16 {vr(r+2,2)}, v{b} offset:{o+2048}")
    a.c("---- hand O over; the Wo fragments move to registers meanwhile")
    rdWo(7)
    a("s_waitcnt lgkmcnt(2)")
    rdWo(6)
    a("s_waitcnt vmcnt(0)")
    a("s_barrier", "every wave's O fragment is written through")
    a(f"s_cmp_lg_u32 {sWAVE}, {sQUAD}")
    a("s_cbranch_scc1 L_noflag")
    a("s_mov_b64 exec, 0xff")
    a(f"buffer_store_dwordx2 {vr(vPD,2)}, v{vFL}, {WS}, s74 offen sc1", "wave == quad has nothing to fetch: it flags")
    a("s_mov_b64 exec, -1")
    a("s_branch L_flagged")
    a.label("L_noflag")
    poll_f()
    a.label("L_flagged")
    stamp(a, 8)
    a(f"s_lshr_b32 s53, {sQUAD}, 2")
    a(f"s_cmp_lg_u32 s53, {sTT}")
    a("s_waitcnt lgkmcnt(0)")
    a("s_cbranch_scc1 L_noown")
    a(f"ds_write_b128 v{vOWN}, {vr(PK,4)}", "this workgroup's own heads go straight to their staging slot")
    a.label("L_noown")
    rdWo(7)
    a("s_waitcnt lgkmcnt(2)")
    rdWo(6)
    a(f"s_mov_b32 m0, {sSLOT}")
    a("s_waitcnt lgkmcnt(2)")
    rdWo(6)
    a(f"s_mov_b32 s53, {SPIN_MAX}")
    a(f"s_cmp_eq_u32 {sWAVE}, {sQUAD}")
    a("s_cbranch_scc1 L_oskip")
    a("s_branch L_ochk")
    a.label("L_ospin")
    poll_f()
    a.label("L_ochk")
    a("s_waitcnt vmcnt(0)")
    a(f"v_cmp_eq_u64 vcc, {NONCE}, {vr(vT,2)}")
    a("s_sub_u32 s53, s53, 1")
    a("s_cbranch_scc1 L_ogo")
    a("s_cmp_eq_u64 vcc, -1")
    a("s_cbranch_scc0 L_ospin")
    a.label("L_ogo")
    stamp(a, 9)
    for i in range(4):
        a(f"buffer_load_dwordx4 v{vL16}, {WS}, s64 offen offset:{i*1024} sc1 lds")
    a("s_waitcnt vmcnt(0)")
    stamp(a, 21)
    a.label("L_oskip")
    a("s_waitcnt lgkmcnt(0)")
    a("s_barrier")
    stamp(a, 10)
    a.c("---- output projection: 16 tokens x 32 columns per wave, two heads per step")
    ACC = 32; NB = 7
    def rd3(s_): a(f"ds_read_b128 {vr(44 + 4*(s_ % (NB+1)),4)}, v{vBO} offset:{s_*2048}")
    for s_ in range(NB): rd3(s_)
    for s_ in range(16):
        if s_ + NB < 16:
            rd3(s_ + NB); a(f"s_waitcnt lgkmcnt({NB})")
        else:
            a(f"s_waitcnt lgkmcnt({15 - s_})")
        f = 44 + 4*(s_ % (NB+1))
        for i in range(2):
            a(f"v_mfma_f32_16x16x32_bf16 {vr(ACC+4*i,4)}, {vr(WF+64*i+4*s_,4)}, {vr(f,4)}, " + ("0" if s_ == 0 else vr(ACC+4*i,4)))
    a("s_nop 7")
    for i in range(4): a(f"v_cvt_pk_bf16_f32 v{PK+i}, v{ACC+2*i}, v{ACC+2*i+1}")
    a("s_nop 1")
    a(f"v_permlane16_swap_b32 v{PK}, v{PK+2}")
    a(f"v_permlane16_swap_b32 v{PK+1}, v{PK+3}")
    a(f"buffer_store_dwordx4 {vr(PK,4)}, v{vSTO}, {OUT}, {sOST} offen nt")
    if OPT["stamp"]:
        stamp(a, 17)
        a("s_waitcnt vmcnt(0)")
        stamp(a, 11); stamp_out(a)
    a.label("L_end")
    a("s_endpgm")
    a.c("---- fallback (rare): exact row max over all keys, then this q-tile again with it subtracted")
    a.label("L_fallback")
    a(f"s_lshl_b32 s53, {sHEAD}, 17")
    a("s_mov_b32 s54, 0")
    a("v_mov_b32 v14, 0xff800000")
    a.label("L_fb1")
    a(f"buffer_load_dwordx4 {vr(KV[0],4)}, v{vL16}, {WS}, s53 offen sc1")
    a("s_waitcnt vmcnt(0)")
    qk(0, 0, "0")
    a("s_add_u32 s53, s53, 2048")
    a("s_add_u32 s54, s54, 1")
    a("s_nop 7"); a("s_nop 3")
    for i in range(8): a(f"v_max3_f32 v14, v{S[0]+2*i}, v{S[0]+2*i+1}, v14")
    a("s_cmp_lt_u32 s54, 64")
    a("s_cbranch_scc1 L_fb1")
    a("v_mov_b32 v1, v14")
    a("s_nop 1")
    a("v_permlane32_swap_b32 v14, v1")
    a("s_nop 1")
    a("v_max_f32 v14, v14, v1")
    for i in range(16): a(f"v_sub_f32 v{S[1]+i}, 0, v14")
    for i in range(16): a(f"v_mov_b32 v{O[0]+i}, 0")
    a(f"s_lshl_b32 s53, {sHEAD}, 17")
    a("s_mov_b32 s54, 0")
    a.label("L_fb2")
    a(f"buffer_load_dwordx4 {vr(KV[0],4)}, v{vL16}, {WS}, s53 offen sc1")
    a(f"s_mov_b64 exec, {VMASK}")
    a(f"buffer_load_dwordx4 {vr(KV[0]+4,4)}, v{vVO}, {WS}, s53 offen sc1")
    a(f"buffer_load_dwordx4 {vr(KV[0]+8,4)}, v{vVO}, {WS}, s53 offen offset:512 sc1")
    a("s_mov_b64 exec, -1")
    a("s_waitcnt vmcnt(0)")
    qk(0, 0, vr(S[1], 16))
    a("s_add_u32 s53, s53, 2048")
    a("s_add_u32 s54, s54, 1")
    a("s_nop 7"); a("s_nop 3")
    for i in range(16): ex(0, i)
    a("s_nop 1")
    pv0(0, 0); pv1(0, 0)
    a("s_cmp_lt_u32 s54, 64")
    a("s_cbranch_scc1 L_fb2")
    a("s_nop 7"); a("s_nop 7")
    a(f"v_rcp_f32 v14, v{O[0]+8}")
    a("s_nop 0")
    finish(False)
    a("s_branch L_fin")
    a.label("L_codeend")
    return f""".section .rodata,"a"
.p2align 6
.amdhsa_kernel {name}
  .amdhsa_next_free_vgpr 256
  .amdhsa_next_free_sgpr 100
  .amdhsa_accum_offset 256
  .amdhsa_group_segment_fixed_size 0
  .amdhsa_kernarg_size 48
  .amdhsa_user_sgpr_count 2
  .amdhsa_user_sgpr_kernarg_segment_ptr 1
  .amdhsa_system_sgpr_workgroup_id_x 1
.end_amdhsa_kernel
"""

if __name__ == "__main__":
    for kv in sys.argv[2:]:
        k, v = kv.split("="); assert k in OPT, k; OPT[k] = int(v)
    a = Asm()
    a.raw(HEADER.rstrip("\n"))
    a.raw('.amdgcn_target "amdgcn-amd-amdhsa--gfx950"')
    a.raw(".text")
    d = gen(a)
    open(sys.argv[1], "w").write(a.text() + d)
```

```python
import math, struct, sys

def f2u(x): return struct.unpack("<I", struct.pack("<f", x))[0]
CSCALE = 0.25 * math.log2(math.e)
O_OFF = 5 << 20
FKV_OFF = 7 << 20
FO_OFF = (7 << 20) + (256 << 10)
WB = 65536
R3 = 131072
SPIN_MAX = 1 << 16
OPT = dict(hpad=0, wrot=1, rotm=2, qmap=0, opre2=0, osc=0, one=0, sched=0, ipf=1, qpf=1, stamp=0, drop=6, fstep=5, order=0)

class Asm:
    def __init__(self): self.l = []
    def __call__(self, s, c=None): self.l.append("    " + s + (" " * max(1, 74 - len(s)) + "; " + c if c else ""))
    def label(self, s): self.l.append(s + ":")
    def raw(self, s): self.l.append(s)
    def c(self, s):
        for t in s.split("\n"): self.l.append("    ; " + t)
    def text(self): return "\n".join(self.l) + "\n"
def vr(a, n): return f"v[{a}:{a+n-1}]"

vST_RT, vST_CY = 252, 253
STAMPS = {1: None, 3: (7, 11), 4: (7, 15, 8, 9, 21, 10, 17, 11), 5: (3, 24, 5, 22, 23, 19, 7, 11), 7: (2, 3, 5, 7, 11), 8: (12, 13, 20, 1, 2, 3, 11), 6: (12, 2, 25, 26, 27, 28, 29, 30, 31, 3, 11)}
def stamp(a, i):
    m = OPT["stamp"]
    if not m or (STAMPS[m] is not None and i not in STAMPS[m] and i != OPT['one']): return False
    a("s_memrealtime s[80:81]"); a("s_memtime s[82:83]"); a("s_waitcnt lgkmcnt(0)")
    a(f"v_writelane_b32 v{vST_RT}, s80, {i}"); a(f"v_writelane_b32 v{vST_CY}, s82, {i}")
    return True
def stamp_out(a):
    a(f"s_add_u32 s76, s20, {hex(16<<20)}"); a("s_addc_u32 s77, s21, 0"); a("s_mov_b32 s78, 0x100000"); a("s_mov_b32 s79, 0x00020000")
    a("s_lshl_b32 s80, s2, 3"); a("s_add_u32 s80, s80, s42"); a("s_lshl_b32 s80, s80, 8")
    a("v_lshlrev_b32 v1, 2, v0"); a("s_mov_b32 exec_hi, 0")
    a(f"buffer_store_dword v{vST_RT}, v1, s[76:79], s80 offen"); a(f"buffer_store_dword v{vST_CY}, v1, s[76:79], s80 offen offset:128")

X, W, WS, WO, OUT, DBG, KS = "s[12:15]", "s[16:19]", "s[20:23]", "s[24:27]", "s[28:31]", "s[32:35]", "s[76:79]"
sQUAD, sRB, sWAVE, sHD, sTT, sSLOT = "s40", "s41", "s42", "s43", "s44", "s45"
NONCE, VMASK = "s[46:47]", "s[48:49]"
sKVOWN, sKVH, sW1K, sHEAD, sQT, sOOWN, sOQ, sCB, sOST, sPOLL = "s50", "s51", "s52", "s56", "s57", "s58", "s60", "s61", "s62", "s63"
def sXT(p): return f"s{84+p}"
def sWT(p): return f"s{92+p}"
vL16, vIDX, vXD, vWD, vXR0, vXR1, vWR, vVO = 2, 3, 4, 5, 6, 7, 8, 9
AK, AV, AQ = 16, 24, 32
FW = [[40, 44, 48, 52], [32, 36, 104, 108]]
KV = [56, 68, 80, 92]
QA, QB = 104, 108
XF = 112
O = [112, 128]; S = [144, 160]
vWO, vPOLL, vPD, vKPOS, vKG, vVG, vWQ, vT, vWR4 = 240, 242, 244, 246, 247, 248, 249, 250, 254
vA = [[16, 17], [18, 19]]; vBO, vSTO, vOWN, vFL = 20, 21, 22, 23

HEADER = """; Multi-head attention block (B=1, S=2048, D=512, H=32, Dh=16) in ONE launch:
;   qkv = x @ wqkv ; o = softmax(q k^T / 4) v ; out = o @ wo
; Kernarg: x(0) wqkv(8) wo(16) out(24) debug(32) ws(40).  Generated by gen/gen_final.py.
; @launch grid=(256,1,1) block=(512,1,1) lds=163840
;
; Workgroup (quad, rb) = 4 heads x 64 tokens, one per CU; wave = (head hd of the quad, half tt).
;           K/V tiles go to the workspace in MFMA-fragment order (write-through), then a flag.
;           pick the high (bf16) half of the raw fp32 P registers, with two all-ones rows appended to V^T.
"""

def gen(a):
    name = "standalone__mha_block__prompt_kernel"
    a.raw(f".globl {name}"); a.raw(".p2align 8"); a.raw(f".type {name},@function"); a.label(name)
    a("s_cmp_ge_u32 s2, 256")
    a("s_cbranch_scc1 L_end", "workgroups past the grid leave at once")
    for d, off in ((12, 0), (16, 8), (32, 32), (20, 40), (24, 16), (28, 24)):
        a(f"s_load_dwordx2 s[{d}:{d+1}], s[0:1], {off}")
    a(f"s_memrealtime {NONCE}")
    if OPT["stamp"]: a("s_memtime s[82:83]")
    a.c("pull the rest of this kernel's code towards the L2 while the arguments are on their way")
    a("s_getpc_b64 s[76:77]")
    a.label("L_pc")
    a(f"v_lshlrev_b32 v1, {6 if OPT['ipf'] > 1 else 7}, v0")
    a(f"v_cmp_gt_u32 vcc, (L_codeend-L_pc)/{64 if OPT['ipf'] > 1 else 128}, v0")
    a("s_and_saveexec_b64 s[78:79], vcc")
    a("s_cbranch_execz L_noipf")
    if OPT["ipf"]: a(f"global_load_dword v{vT+1}, v1, s[76:77]")
    a.label("L_noipf")
    a("s_mov_b64 exec, -1")
    a("v_lshrrev_b32 v1, 6, v0")
    a("v_and_b32 v0, 63, v0", "v0 = lane")
    a(f"v_readfirstlane_b32 {sWAVE}, v1")
    a.c("quad = (wg&3)*2 + ((wg>>3)&1), rb = ((wg>>2)&1)*16 + (wg>>4): two quads per XCD under round-robin placement (speed only)")
    if OPT["qmap"] == 0:
        a("s_and_b32 s54, s2, 3")
        a("s_lshl_b32 s54, s54, 1")
        a("s_bfe_u32 s55, s2, 0x10003")
    elif OPT["qmap"] == 1:
        a("s_and_b32 s54, s2, 3")
        a("s_bfe_u32 s55, s2, 0x10003")
        a("s_lshl_b32 s55, s55, 2")
    else:
        a("s_and_b32 s54, s2, 3")
        a("s_mul_i32 s54, s54, 5")
        a("s_and_b32 s54, s54, 5")
        a("s_and_b32 s54, s2, 1")
        a("s_bfe_u32 s55, s2, 0x10001")
        a("s_lshl_b32 s55, s55, 2")
        a("s_add_u32 s54, s54, s55")
        a("s_bfe_u32 s55, s2, 0x10003")
        a("s_lshl_b32 s55, s55, 1")
    a(f"s_add_u32 {sQUAD}, s54, s55")
    a("s_bfe_u32 s54, s2, 0x10002")
    a("s_lshl_b32 s54, s54, 4")
    a("s_lshr_b32 s55, s2, 4")
    a(f"s_add_u32 {sRB}, s54, s55")
    a(f"s_and_b32 {sHD}, {sWAVE}, 3")
    a(f"s_lshr_b32 {sTT}, {sWAVE}, 2")
    a(f"s_lshl_b32 {sW1K}, {sWAVE}, 10")
    a(f"v_lshlrev_b32 v{vL16}, 4, v0")
    a.c("x DMA source: row 8w + l/8 of the block, 16-byte piece (l%8) ^ ((row>>1)&7)  (bank swizzle)")
    a("v_lshrrev_b32 v10, 3, v0")
    a("v_and_b32 v11, 7, v0")
    a("v_lshrrev_b32 v12, 4, v0")
    a(f"s_and_b32 s53, {sWAVE}, 1")
    a("s_lshl_b32 s54, s53, 2")
    a("v_xor_b32 v13, v11, v12")
    a("v_xor_b32 v13, s54, v13")
    a(f"s_lshl_b32 s55, {sWAVE}, 3")
    a("v_add_u32 v10, s55, v10")
    a(f"s_lshl_b32 s55, {sRB}, 16")
    a("v_lshlrev_b32 v14, 10, v10")
    a("v_lshl_add_u32 v14, v13, 4, v14")
    a(f"v_add_u32 v{vXD}, s55, v14")
    a.c("W DMA source: k row 8w + l/8, the quad's 128-byte line, 32-byte slot ^ (((row>>1)&1) | ((row>>3)&1)<<1)")
    a("v_and_b32 v12, 1, v12")
    a("v_lshlrev_b32 v12, 1, v12")
    a("v_xor_b32 v13, v11, v12")
    a("v_xor_b32 v13, s54, v13")
    a("v_mul_u32_u24 v14, 3072, v10")
    a("v_lshl_add_u32 v14, v13, 4, v14")
    a(f"s_lshl_b32 s55, {sQUAD}, 7")
    a(f"v_add_u32 v{vWD}, s55, v14")
    a.c("the 64-deep k chunks are walked in an order rotated per workgroup, so every line is requested early by someone")
    if OPT["rotm"] == 2: a(f"s_add_u32 s53, {sQUAD}, {sRB}")
    elif OPT["rotm"] == 1:
        a(f"s_lshl_b32 s53, {sQUAD}, 2"); a(f"s_add_u32 s53, s53, {sRB}"); a(f"s_lshr_b32 s54, {sQUAD}, 1"); a("s_add_u32 s53, s53, s54")
    elif OPT["rotm"] == 3:
        a(f"s_mul_i32 s53, {sQUAD}, 3"); a(f"s_add_u32 s53, s53, {sRB}")
    elif OPT["rotm"] == 4:
        a(f"s_lshl_b32 s53, {sQUAD}, 1"); a(f"s_add_u32 s53, s53, {sRB}"); a(f"s_lshr_b32 s54, {sQUAD}, 2"); a("s_add_u32 s53, s53, s54")
    for p in range(8):
        a("s_and_b32 s53, s53, 7")
        a(f"s_lshl_b32 {sXT(p)}, s53, 7")
        a(f"s_mul_i32 {sWT(p)}, s53, 196608")
        if p < 7: a("s_add_u32 s53, s53, 1")
    a("v_and_b32 v12, 31, v0")
    a(f"s_lshl_b32 s53, {sRB}, 5")
    a("s_and_b32 s53, s53, 511")
    a("v_add_u32 v12, s53, v12")
    a("v_mul_u32_u24 v15, 3072, v12", "this workgroup's share of the Wq lines (L2 prefetch)")
    if OPT["qpf"] > 1:
        a("v_lshrrev_b32 v12, 5, v0")
        a("v_lshl_add_u32 v15, v12, 6, v15", "this workgroup's share of the Wq lines, both halves (L2 prefetch)")
    for d, size in ((12, 2048*1024), (16, 512*3072), (32, 256), (20, 8 << 20), (24, 512*1024), (28, 2048*1024)):
        a(f"s_mov_b32 s{d+2}, {hex(size)}")
        a(f"s_mov_b32 s{d+3}, 0x00020000")
    a(f"s_mov_b32 m0, {sW1K}")
    a("s_waitcnt lgkmcnt(0)")
    if OPT["stamp"]:
        a(f"v_writelane_b32 v{vST_RT}, s46, 0"); a(f"v_writelane_b32 v{vST_CY}, s82, 0")
    stamp(a, 12)
    issued = []
    def dma_x(p, m0=True):
        if m0:
            a(f"s_add_u32 m0, {sW1K}, {p*8192}"); a("s_nop 0")
        a(f"buffer_load_dwordx4 v{vXD}, {X}, {sXT(p)} offen lds"); issued.append(("x", p))
    def dma_w(t, p, dest, tag):
        a(f"s_add_u32 m0, {sW1K}, {dest - t*1024}")
        a("s_nop 0")
        a(f"buffer_load_dwordx4 v{vWD}, {W}, {sWT(p)} offen offset:{t*1024} lds"); issued.append(tag)
    def dma_kv(p):
        dma_w(1, p, WB + (p%5)*16384, ("kv", p)); dma_w(2, p, WB + (p%5)*16384 + 8192, ("kv", p))
    QDEST = [0, 8192, 16384, 24576, 32768, WB + 3*16384, WB + 3*16384 + 8192, 40960]
    dma_x(0, False); dma_kv(0)
    a.c("launch nonce: workgroup 0, wave 0 publishes its clock reading")
    a("s_or_b32 s46, s46, 1")
    a(f"s_or_b32 s53, s2, {sWAVE}")
    a("s_cbranch_scc1 L_nonon")
    a("v_mov_b32 v10, s46"); a("v_mov_b32 v11, s47")
    a("s_mov_b64 exec, 1")
    a(f"buffer_store_dwordx2 v[10:11], off, {DBG}, 0 sc1")
    a("s_mov_b64 exec, -1")
    a.label("L_nonon")
    a(f"s_cmp_lg_u32 {sWAVE}, 7")
    a("s_cbranch_scc1 L_noqpf")
    if OPT["qpf"]: a(f"buffer_load_dword v{vT}, v15, {W}, s55 offen")
    a.label("L_noqpf")
    if OPT["order"] == 0:
        for p in range(1, 4): dma_x(p)
    elif OPT["order"] == 3:
        dma_x(1)
    stamp(a, 13)
    a.c("scalar offsets")
    a(f"s_lshl_b32 {sSLOT}, {sWAVE}, 12")
    a(f"s_add_u32 {sSLOT}, {sSLOT}, {R3}")
    a(f"s_lshl_b32 s53, {sQUAD}, 2")
    a(f"s_add_u32 {sHEAD}, s53, {sHD}")
    a(f"s_mul_i32 s53, {sHEAD}, {131072 + OPT['hpad']}")
    a(f"s_lshl_b32 s54, {sTT}, 11")
    a(f"s_add_u32 {sKVH}, s53, s54", "K/V stream of this wave: head*128K + tt*2K (+ 4K per 64 tokens)")
    a(f"s_lshl_b32 s64, {sRB}, 12")
    a(f"s_add_u32 {sKVOWN}, {sKVH}, s64")
    a(f"s_lshl_b32 s53, {sRB}, 1")
    a(f"s_add_u32 {sQT}, s53, {sTT}")
    a(f"s_lshl_b32 s53, {sQT}, 15")
    a(f"s_lshl_b32 s54, {sHEAD}, 10")
    a(f"s_add_u32 {sOOWN}, s53, s54")
    a(f"s_add_u32 {sOOWN}, {sOOWN}, {hex(O_OFF)}", "own O fragment")
    a(f"s_lshl_b32 {sPOLL}, {sQUAD}, 10")
    a(f"s_add_u32 {sPOLL}, {sPOLL}, {hex(FKV_OFF)}", "this quad's K/V flags: 32 entries, 32 bytes apart")
    a("v_and_b32 v12, 31, v0")
    a(f"v_lshlrev_b32 v{vPOLL}, 5, v12")
    a(f"s_lshr_b32 s53, {sQUAD}, 2")
    a(f"s_lshl_b32 s54, {sRB}, 1")
    a(f"s_add_u32 {sOQ}, s53, s54", "output tile: tokens of q-tile 2rb + quad/4, columns 128*((quad+rb)%4)")
    if OPT["wrot"]:
        a(f"s_add_u32 {sCB}, {sQUAD}, {sRB}")
        a(f"s_and_b32 {sCB}, {sCB}, 3")
    else:
        a(f"s_and_b32 {sCB}, {sQUAD}, 3")
    a(f"s_lshl_b32 {sCB}, {sCB}, 8")
    a(f"s_lshl_b32 s53, {sOQ}, 15")
    a(f"s_add_u32 {sOST}, s53, {sCB}")
    a(f"s_lshl_b32 s53, {sHD}, 6")
    a(f"s_add_u32 {sOST}, {sOST}, s53")
    a(f"s_lshl_b32 s53, {sTT}, 14")
    a(f"s_add_u32 {sOST}, {sOST}, s53")
    a.c("O flags: one 128-byte line per (writer, reader) pair of the eight workgroups of a row block")
    a(f"s_lshl_b32 s53, {sRB}, 3")
    a(f"s_add_u32 s54, s53, {sQUAD}")
    a("s_lshl_b32 s54, s54, 10")
    a(f"s_add_u32 s74, s54, {hex(FO_OFF)}")
    a(f"s_add_u32 s75, s53, {sWAVE}")
    a("s_lshl_b32 s75, s75, 10")
    a(f"s_lshl_b32 s54, {sQUAD}, 7")
    a("s_add_u32 s75, s75, s54")
    a(f"s_add_u32 s75, s75, {hex(FO_OFF)}")
    a(f"s_lshl_b32 s65, {sRB}, 13")
    a("s_and_b32 s65, s65, 0x1ffff")
    a("s_lshl_b32 s66, s65, 2")
    if OPT["order"] == 2:
        for p in range(1, 4): dma_x(p)
    if OPT["order"] == 3:
        dma_kv(1); dma_x(2); dma_x(3)
    a.c("LDS read addresses: x fragments (two k steps), W fragments (transposing reads)")
    a("v_and_b32 v10, 15, v0")
    a("v_lshrrev_b32 v11, 4, v0")
    a("v_bfe_u32 v12, v0, 1, 3")
    a("v_xor_b32 v12, v11, v12")
    a(f"s_lshl_b32 s53, {sTT}, 12")
    a("v_lshlrev_b32 v13, 7, v10")
    a("v_add_u32 v13, s53, v13")
    a(f"v_lshl_add_u32 v{vXR0}, v12, 4, v13")
    a(f"v_xor_b32 v{vXR1}, 64, v{vXR0}")
    a("v_bfe_u32 v12, v0, 2, 2")
    a("v_lshl_add_u32 v13, v11, 3, v12")
    a("v_lshlrev_b32 v13, 7, v13")
    a("v_bfe_u32 v14, v0, 3, 2")
    a(f"v_xor_b32 v14, {sHD}, v14")
    a("v_lshl_add_u32 v13, v14, 5, v13")
    a("v_and_b32 v14, 3, v0")
    a(f"v_lshl_add_u32 v{vWQ}, v14, 3, v13")
    a(f"v_add_u32 v{vWR}, {WB}, v{vWQ}")
    a(f"v_add_u32 v{vWR4}, {R3}, v{vWQ}")
    a.c("K/V tile = 1 KB K fragment (lane-linear) + 1 KB V^T fragments (4 x 16 lanes x 16 B)")
    a("v_lshrrev_b32 v12, 5, v0")
    a("v_lshlrev_b32 v12, 8, v12")
    a("v_lshl_add_u32 v12, v10, 4, v12")
    a(f"v_add_u32 v{vVO}, 1024, v12")
    a(f"v_add_u32 v{vKG}, {sKVH}, v{vL16}")
    a(f"v_add_u32 v{vVG}, {sKVH}, v{vVO}")
    a("v_and_b32 v12, 0x23, v0")
    a("v_bfe_u32 v13, v0, 2, 2")
    a("v_lshl_add_u32 v12, v13, 3, v12")
    a("v_bfe_u32 v13, v0, 4, 1")
    a("v_lshl_add_u32 v12, v13, 2, v12")
    a(f"v_lshlrev_b32 v{vKPOS}, 4, v12", "K rows are stored in the key order of the V^T fragments")
    a.c("Wo DMA source: row 4w + l/16, 32-byte slot ^ (row&7)")
    a(f"s_lshl_b32 s53, {sWAVE}, 2")
    a("v_add_u32 v12, s53, v11")
    a("v_and_b32 v13, 7, v12")
    a("v_lshlrev_b32 v13, 1, v13")
    a("v_xor_b32 v13, v10, v13")
    a("v_lshlrev_b32 v14, 10, v12")
    a("v_lshl_add_u32 v14, v13, 4, v14")
    a(f"v_add_u32 v{vWO}, {sCB}, v14")
    a(f"v_mov_b32 v{vIDX}, 0xdddddddd", "sparse index: elements 1 and 3 of every 4 = high halves of two fp32")
    a("s_mov_b32 s48, 0xffff"); a("s_mov_b32 s49, 0xffff", "lanes that carry V^T rows 0..15")
    a("v_and_b32 v12, 27, v0")
    a("v_cmp_eq_u32 vcc, 16, v12")
    a("v_mov_b32 v15, 0x3f803f80")
    a("s_nop 0")
    a.c("rows 16 and 20 of the V^T operand are ones (row sums), the other spare rows zero")
    for j in range(4):
        for i in range(8): a(f"v_cndmask_b32 v{KV[j]+4+i}, 0, v15, vcc")
    stamp(a, 20)
    if OPT["order"] == 1:
        dma_x(1); dma_kv(1); dma_x(2); dma_x(3); dma_kv(2)
    elif OPT["order"] == 3:
        dma_kv(2)
    else:
        dma_kv(1); dma_kv(2)
    stamp(a, 1)

    def waitvm(pred):
        last = max(i for i, t in enumerate(issued) if pred(t))
        a(f"s_waitcnt vmcnt({len(issued) - 1 - last})")
    def xf(p, s): return XF + 8*(2*p + s)
    def rd_w(base, off, r):
        a(f"ds_read_b64_tr_b16 {vr(r,2)}, v{base} offset:{off}")
        a(f"ds_read_b64_tr_b16 {vr(r+2,2)}, v{base} offset:{off + 512}")
    def readsA(p):
        fw = FW[p % 2]
        for s in range(2):
            b = vXR0 if s == 0 else vXR1; f = xf(p, s)
            a(f"ds_read_b128 {vr(f,4)}, v{b} offset:{p*8192}")
            a(f"ds_read_b128 {vr(f+4,4)}, v{b} offset:{p*8192+2048}")
            wb, wo = (vWR, (p%5)*16384) if p % 5 < 4 else (vWR4, 0)
            rd_w(wb, wo + s*4096, fw[2*s]); rd_w(wb, wo + 8192 + s*4096, fw[2*s+1])
    def mfmaA(p, s):
        f = xf(p, s); wk, wv = FW[p % 2][2*s], FW[p % 2][2*s+1]
        def c(r): return "0" if p == 0 and s == 0 else vr(r, 4)
        a(f"v_mfma_f32_16x16x32_bf16 {vr(AK,4)}, {vr(wk,4)}, {vr(f,4)}, {c(AK)}")
        a(f"v_mfma_f32_16x16x32_bf16 {vr(AK+4,4)}, {vr(wk,4)}, {vr(f+4,4)}, {c(AK+4)}")
        a(f"v_mfma_f32_16x16x32_bf16 {vr(AV,4)}, {vr(f,4)}, {vr(wv,4)}, {c(AV)}")
        a(f"v_mfma_f32_16x16x32_bf16 {vr(AV+4,4)}, {vr(f+4,4)}, {vr(wv,4)}, {c(AV+4)}")
    def grab(fn):
        n0 = len(a.l); fn(); out = a.l[n0:]; del a.l[n0:]; return out
    a.c("---- K, V.  Step p: chunk p has landed -> read its fragments, request later chunks, multiply chunk p-1.\n"
        "     A ring slot / x slot is refilled two barriers after its last reader issued (covered by lgkmcnt(0) in between).")
    QSCHED = {5: [0, 1, 2], 6: [3, 4, 5], 7: [6, 7]}
    for p in range(8):
        waitvm(lambda t: t[1] == p and t[0] in ("x", "kv"))
        a("s_barrier")
        if p == 0: stamp(a, 2)
        elif OPT["stamp"] == 6: stamp(a, 24 + p)
        if p >= 1: a("s_waitcnt lgkmcnt(0)")
        rd = grab(lambda: readsA(p))
        mf = grab(lambda: (mfmaA(p-1, 0), mfmaA(p-1, 1))) if p >= 1 else []
        dm = []
        if p + 3 < 8:
            kvl = grab(lambda: dma_kv(p + 3)); dm += [kvl[:3], kvl[3:]]
        if p + 4 < 8: dm.append(grab(lambda: dma_x(p + 4)))
        for j in QSCHED.get(p, []): dm.append(grab(lambda: dma_w(0, j, QDEST[j], ("q", j))))
        k = 0
        sc = OPT["sched"]
        if sc == 0:
            for i in range(12):
                a.l.append(rd[i])
                while k < len(mf) and k < (i + 1) * 8 // 12:
                    a.l.append(mf[k]); k += 1
                if i % 4 == 3 and i // 4 < len(dm): a.l += dm[i // 4]
        elif sc == 1:
            for i in range(12):
                if k < len(mf) and k <= i * 8 // 12:
                    a.l.append(mf[k]); k += 1
                d = dm[i // 4] if i % 4 == 2 and i // 4 < len(dm) else None
                if d: a.l.append(d[0])
                a.l.append(rd[i])
                if d: a.l.append(d[2])
            a.l += mf[k:]
        elif sc == 2:
            for d in dm: a.l += d
            for i in range(12):
                if k < len(mf) and k <= i * 8 // 12:
                    a.l.append(mf[k]); k += 1
                a.l.append(rd[i])
            a.l += mf[k:]
        elif sc == 3:
            a.l += mf[:1] + rd[:6] + mf[1:2] + rd[6:]
            rest = mf[2:]
            for i, d in enumerate(dm):
                a.l.append(d[0]); a.l += rest[2*i:2*i+1] or ["    s_nop 0"]; a.l.append(d[2]); a.l += rest[2*i+1:2*i+2]
            a.l += rest[2*len(dm):]
        assert len(dm) <= 3
        if p == 2:
            a(f"s_cmp_lg_u32 {sWAVE}, 0")
            a("s_cbranch_scc1 L_nf1")
            a(f"buffer_load_dwordx2 {vr(vPD,2)}, off, {DBG}, 0 sc1", "fetch the nonce")
            a.label("L_nf1")
    a("s_waitcnt lgkmcnt(6)")
    mfmaA(7, 0)
    a("s_waitcnt lgkmcnt(0)")
    mfmaA(7, 1)
    stamp(a, 3)
    a.c("---- publish K/V (write-through) and keep a copy of the own tile through this wave's LDS slot")
    F = 40
    a(f"v_add_u32 v10, {sSLOT}, v{vKPOS}")
    a(f"v_add_u32 v11, {sSLOT}, v{vL16}")
    a(f"v_add_u32 v12, {sSLOT}, v{vVO}")
    a("s_nop 4")
    for i in range(4): a(f"v_cvt_pk_bf16_f32 v{F+i}, v{AK+2*i}, v{AK+2*i+1}")
    for i in range(4): a(f"v_cvt_pk_bf16_f32 v{F+4+i}, v{AV+2*i}, v{AV+2*i+1}")
    a(f"v_permlane16_swap_b32 v{F}, v{F+2}")
    a(f"v_permlane16_swap_b32 v{F+1}, v{F+3}")
    a(f"buffer_store_dwordx4 {vr(F+4,4)}, v{vL16}, {WS}, {sKVOWN} offen offset:1024 sc1")
    a(f"buffer_store_dwordx4 {vr(F,4)}, v{vKPOS}, {WS}, {sKVOWN} offen sc1")
    a(f"ds_write_b128 v11, {vr(F+4,4)} offset:1024")
    a(f"ds_write_b128 v10, {vr(F,4)}")
    a("s_waitcnt lgkmcnt(0)")
    a(f"ds_read_b128 {vr(KV[0],4)}, v11")
    a(f"s_mov_b64 exec, {VMASK}")
    a(f"ds_read_b128 {vr(KV[0]+4,4)}, v12")
    a(f"ds_read_b128 {vr(KV[0]+8,4)}, v12 offset:512")
    a("s_mov_b64 exec, -1")
    a("s_waitcnt vmcnt(7)", "Wq chunks 0..2 (and the nonce)")
    a(f"s_cmp_lg_u32 {sWAVE}, 0")
    a("s_cbranch_scc1 L_nf2")
    a(f"s_mov_b32 s53, {SPIN_MAX}")
    a.label("L_nspin")
    a(f"v_readfirstlane_b32 s54, v{vPD}")
    a("s_sub_u32 s53, s53, 1")
    a("s_cbranch_scc1 L_ngot")
    a("s_cmp_lg_u32 s54, 0")
    a("s_cbranch_scc1 L_ngot")
    a("s_sleep 2")
    a(f"buffer_load_dwordx2 {vr(vPD,2)}, off, {DBG}, 0 sc1")
    a("s_waitcnt vmcnt(0)")
    a("s_branch L_nspin")
    a.label("L_ngot")
    a(f"v_mov_b32 v10, {R3 + 2816}")
    a(f"ds_write_b64 v10, {vr(vPD,2)}")
    a.label("L_nf2")
    a("s_waitcnt lgkmcnt(0)")
    a("s_barrier")
    stamp(a, 14)
    a(f"v_mov_b32 v10, {R3 + 2816}")
    a(f"ds_read_b64 {vr(vPD,2)}, v10")
    a.c("---- Q (the x fragments are still in registers)")
    BS = [48, 52, 16, 20, 24, 28, 40, 44]
    lgq = ["n"]
    def readsB(st):
        p, s = divmod(st, 2); d = QDEST[p]
        if d < WB: rd_w(vWQ, d + s*4096, BS[st % 8])
        else: rd_w(vWR, d - WB + s*4096, BS[st % 8])
        lgq.extend([st, st])
    FS = OPT["fstep"]; nxt = 0
    a(f"s_lshl_b32 s54, {sRB}, 5")
    a(f"s_add_u32 s53, {sPOLL}, s54")
    for st in range(16):
        if st == FS:
            a("s_waitcnt vmcnt(0)")
            if stamp(a, 18): del lgq[:]
            a("s_barrier", "every wave's K/V is written through, all of Wq has landed")
            a(f"s_cmp_lg_u32 {sWAVE}, 0")
            a("s_cbranch_scc1 L_nflag")
            a("s_mov_b64 exec, 1")
            a(f"buffer_store_dwordx2 {vr(vPD,2)}, off, {WS}, s53 sc1", "K/V flag of this workgroup")
            a("s_mov_b64 exec, -1")
            a.label("L_nflag")
            if stamp(a, 24): del lgq[:]
        while nxt < min(6 if st < FS else 16, st + 6):
            readsB(nxt); nxt += 1
        if st in lgq:
            last = max(i for i, t in enumerate(lgq) if t == st)
            a(f"s_waitcnt lgkmcnt({len(lgq) - 1 - last})"); del lgq[:last + 1]
        if st == 0:
            a(f"v_readfirstlane_b32 s46, v{vPD}")
            a(f"v_readfirstlane_b32 s47, v{vPD+1}")
        f = XF + 8*st; w = BS[st % 8]
        c0, c1 = ("0", "0") if st == 0 else (vr(AQ,4), vr(AQ+4,4))
        a(f"v_mfma_f32_16x16x32_bf16 {vr(AQ,4)}, {vr(w,4)}, {vr(f,4)}, {c0}")
        a(f"v_mfma_f32_16x16x32_bf16 {vr(AQ+4,4)}, {vr(w,4)}, {vr(f+4,4)}, {c1}")
        if st == 2:
            for i in range(4): a(f"v_mov_b32 v{12+i}, 0")
        if st == 3:
            a(f"v_mfma_f32_32x32x16_bf16 {vr(O[0],16)}, v[12:15], v[12:15], 0", "clear the O accumulators")
            a(f"v_mfma_f32_32x32x16_bf16 {vr(O[1],16)}, v[12:15], v[12:15], 0")
    a(f"s_mov_b32 s53, {hex(f2u(CSCALE))}", "log2(e)/4 goes into Q")
    a(f"s_xor_b32 s54, {sSLOT}, 16384")
    a(f"v_add_u32 v10, s54, v{vL16}")
    a("s_mov_b64 s[76:77], s[20:21]")
    a("s_mov_b32 s78, s22")
    a("s_mov_b32 s79, 0x00020000")
    a("s_mov_b32 s67, 8")
    a("s_nop 0")
    for i in range(8): a(f"v_mul_f32 v{AQ+i}, s53, v{AQ+i}")
    for i in range(4): a(f"v_cvt_pk_bf16_f32 v{QA+i}, v{AQ+2*i}, v{AQ+2*i+1}")
    a("s_nop 1")
    a(f"v_permlane16_swap_b32 v{QA}, v{QA+2}")
    a(f"v_permlane16_swap_b32 v{QA+1}, v{QA+3}")
    a(f"ds_write_b128 v10, {vr(QA,4)} offset:3072", "the partner wave needs this Q tile too")
    def qk(j, q, c="0.15915494"): a(f"v_mfma_f32_32x32x16_bf16 {vr(S[q],16)}, {vr(KV[j],4)}, {vr(QA if q == 0 else QB,4)}, {c}")
    def pv0(j, q): a(f"v_smfmac_f32_32x32x32_bf16 {vr(O[q],16)}, {vr(KV[j]+4,4)}, {vr(S[q],8)}, v{vIDX}")
    def pv1(j, q): a(f"v_smfmac_f32_32x32x32_bf16 {vr(O[q],16)}, {vr(KV[j]+8,4)}, {vr(S[q]+8,8)}, v{vIDX}")
    def ex(q, i): a(f"v_exp_f32 v{S[q]+i}, v{S[q]+i}")
    def poll_kv(): a(f"buffer_load_dwordx2 {vr(vT,2)}, v{vPOLL}, {WS}, {sPOLL} offen sc1")
    a(f"s_mov_b32 s53, {SPIN_MAX}")
    a.c("the constant added to every score (1/2pi) cancels in the normalisation; it keeps exp2(0) off a bf16 step")
    qk(0, 0)
    stamp(a, 16)
    a("s_waitcnt lgkmcnt(0)")
    a("s_barrier")
    a(f"ds_read_b128 {vr(QB,4)}, v11 offset:3072")
    poll_kv()
    stamp(a, 5)
    a("s_nop 7")
    a.c("---- attention on the own key tile while the other workgroups' flags arrive")
    ex(0, 0); ex(0, 1); ex(0, 2); ex(0, 3)
    a("s_waitcnt lgkmcnt(0)")
    qk(0, 1)
    for i in range(4, 11): ex(0, i)
    pv0(0, 0)
    for i in range(11, 16): ex(0, i)
    def unit01():
        ex(1, 0); ex(1, 1)
        pv1(0, 0)
        for i in range(2, 11): ex(1, i)
        pv0(0, 1)
        for i in range(11, 16): ex(1, i)
    def ldK(j):
        a("s_add_u32 s64, s64, 4096"); a("s_and_b32 s64, s64, 0x1ffff")
        a(f"buffer_load_dwordx4 {vr(KV[j],4)}, v{vKG}, {KS}, s64 offen sc1")
    def ldV(j):
        a(f"s_mov_b64 exec, {VMASK}")
        a(f"buffer_load_dwordx4 {vr(KV[j]+4,4)}, v{vVG}, {KS}, s64 offen sc1")
        a(f"buffer_load_dwordx4 {vr(KV[j]+8,4)}, v{vVG}, {KS}, s64 offen offset:512 sc1")
        a("s_mov_b64 exec, -1")
    def first_loads():
        for j in (1, 2, 3): ldK(j); ldV(j)
    a("s_waitcnt vmcnt(0)")
    a(f"v_cmp_eq_u64 vcc, {NONCE}, {vr(vT,2)}")
    a("s_nop 1")
    a("s_cmp_eq_u64 vcc, -1")
    a("s_cbranch_scc0 L_late")
    stamp(a, 22); stamp(a, 23)
    first_loads()
    unit01()
    a("s_branch L_go")
    a.label("L_late")
    stamp(a, 22)
    poll_kv()
    unit01()
    a.label("L_kvspin")
    a("s_waitcnt vmcnt(0)")
    a(f"v_cmp_eq_u64 vcc, {NONCE}, {vr(vT,2)}")
    a("s_sub_u32 s53, s53, 1")
    a("s_cbranch_scc1 L_kvgo")
    a("s_cmp_eq_u64 vcc, -1")
    a("s_cbranch_scc1 L_kvgo")
    a("s_sleep 1")
    poll_kv()
    a("s_branch L_kvspin")
    a.label("L_kvgo")
    stamp(a, 23)
    first_loads()
    a.label("L_go")
    a.c("phase-3 addresses: wave = (32-column pair w&3, 16-token half w>>2)")
    a("v_lshrrev_b32 v12, 5, v0")
    a("v_bfe_u32 v13, v0, 2, 3")
    a("v_lshl_add_u32 v14, v12, 4, v13")
    a("v_lshlrev_b32 v14, 8, v14")
    a(f"s_lshl_b32 s54, {sHD}, 1")
    a("v_xor_b32 v13, s54, v13")
    a("v_lshl_add_u32 v14, v13, 5, v14")
    a("v_and_b32 v13, 3, v0")
    a(f"v_lshl_add_u32 v{vA[0][0]}, v13, 3, v14")
    a(f"v_add_u32 v{vA[0][1]}, 65536, v{vA[0][0]}")
    a(f"v_xor_b32 v{vA[1][0]}, 32, v{vA[0][0]}")
    a(f"v_xor_b32 v{vA[1][1]}, 32, v{vA[0][1]}")
    a("v_and_b32 v10, 15, v0")
    a("v_lshrrev_b32 v13, 4, v0")
    a("v_lshlrev_b32 v14, 9, v13")
    a("v_lshl_add_u32 v14, v10, 4, v14")
    a(f"s_lshl_b32 s54, {sTT}, 8")
    a(f"s_add_u32 s54, s54, {R3}")
    a(f"v_add_u32 v{vBO}, s54, v14")
    a("v_lshlrev_b32 v14, 10, v10")
    a("v_lshl_add_u32 v14, v12, 4, v14")
    a("v_and_b32 v13, 1, v13")
    a(f"v_lshl_add_u32 v{vSTO}, v13, 5, v14")
    a(f"s_lshl_b32 s53, {sQUAD}, 12")
    a(f"s_lshl_b32 s54, {sHD}, 10")
    a("s_add_u32 s53, s53, s54")
    a(f"s_add_u32 s53, s53, {R3}")
    a(f"v_add_u32 v{vOWN}, s53, v{vL16}")
    a(f"v_lshlrev_b32 v{vFL}, 7, v0")
    stamp(a, 6)
    a.c("the two waves of a SIMD take turns leading so that both stay runnable to the end")
    a(f"s_cmp_lg_u32 {sTT}, 1")
    a("s_cbranch_scc1 L_noprio")
    a("s_setprio 1")
    a.label("L_noprio")
    a("s_waitcnt vmcnt(6)")
    qk(1, 0)
    a("s_nop 7")
    a("s_nop 2")
    stamp(a, 19)
    a("s_branch L_loop1")
    a.raw(".p2align 6")
    a.c("---- 31 remote key tiles (entered at the second quarter), three tiles in flight")
    a.label("L_loop")
    for u in range(4):
        if u == 1:
            a.label("L_loop1")
            a(f"s_cmp_lg_u32 s67, {8 - OPT['drop']}")
            a("s_cbranch_scc1 L_nodrop")
            a("s_setprio 0")
            a(f"buffer_load_dwordx2 {vr(vT,2)}, off, {WS}, s75 sc1", "first touch of the O flag line")
            if OPT["opre2"] == 1: a(f"buffer_load_dword v{vT}, v{vL16}, {WS}, {sOOWN} offen sc1")
            if OPT["opre2"] == 2: a(f"buffer_store_dwordx4 {vr(QA,4)}, v{vL16}, {WS}, {sOOWN} offen sc1")
            a.label("L_nodrop")
            a("s_cmp_eq_u32 s67, 1")
            a("s_cselect_b32 s78, 0, s78", "the last three prefetches have no consumer: out of range")
        pj = (u - 1) % 4; nj = (u + 1) % 4
        for i in range(16):
            if i == 2: pv1(pj, 1)
            if i == 3: ldK(pj)
            if i == 5: qk(u, 1)
            if i == 7: ldV(pj)
            if i == 11: pv0(u, 0)
            ex(0, i)
        for i in range(16):
            if i == 2: pv1(u, 0)
            if i == 5:
                a("s_waitcnt vmcnt(6)"); qk(nj, 0)
            if i == 11: pv0(u, 1)
            ex(1, i)
    a("s_cmp_le_u32 s67, 4")
    a("s_cbranch_scc1 L_nowo")
    for i in range(4):
        a(f"s_add_u32 m0, s65, {sW1K}", "a quarter of this workgroup's Wo slice per pass" if i == 0 else None)
        a("s_add_u32 s65, s65, 8192")
        a(f"buffer_load_dwordx4 v{vWO}, {WO}, s66 offen lds")
        a("s_and_b32 s65, s65, 0x1ffff")
        a("s_lshl_b32 s66, s65, 2")
    a.label("L_nowo")
    a("s_sub_u32 s67, s67, 1")
    a("s_cmp_lg_u32 s67, 0")
    a("s_cbranch_scc1 L_loop")
    pv1(3, 1)
    stamp(a, 7)
    a.c("---- merge the two key halves: each wave keeps its own q-tile")
    a(f"s_xor_b32 s54, {sSLOT}, 16384")
    a("s_nop 2")
    a(f"v_add_u32 v10, s54, v{vL16}")
    a("v_lshlrev_b32 v14, 2, v0")
    a("v_add_u32 v13, s54, v14")
    a(f"v_add_u32 v14, {sSLOT}, v14")
    a(f"s_lshl_b32 s54, {sOQ}, 15")
    a(f"s_lshl_b32 s55, {sWAVE}, 12")
    a("s_add_u32 s54, s54, s55")
    a(f"s_add_u32 s64, s54, {hex(O_OFF)}")
    a(f"ds_write_b128 v10, {vr(O[1],4)}")
    a(f"ds_write_b128 v10, {vr(O[1]+4,4)} offset:1024")
    a(f"ds_write_b32 v13, v{O[1]+8} offset:2048")
    a("s_waitcnt vmcnt(0) lgkmcnt(0)")
    a("s_barrier", "(also: all of Wo is in LDS)")
    stamp(a, 15)
    a(f"ds_read_b32 v{S[0]+8}, v14 offset:2048")
    a(f"ds_read_b128 {vr(S[0],4)}, v11")
    a(f"ds_read_b128 {vr(S[0]+4,4)}, v11 offset:1024")
    a(f"v_mov_b32 v13, {hex(f2u(2.0**-20))}")
    a(f"v_mov_b32 v1, {hex(f2u(2.0**60))}")
    a("s_waitcnt lgkmcnt(2)")
    a(f"v_add_f32 v{O[0]+8}, v{O[0]+8}, v{S[0]+8}")
    a(f"v_rcp_f32 v14, v{O[0]+8}")
    a("s_waitcnt lgkmcnt(0)")
    PK = 40
    def finish(add):
        if add:
            for i in range(8): a(f"v_add_f32 v{O[0]+i}, v{O[0]+i}, v{S[0]+i}")
        for i in range(8): a(f"v_mul_f32 v{S[0]+i}, v14, v{O[0]+i}")
        for i in range(4): a(f"v_cvt_pk_bf16_f32 v{PK+i}, v{S[0]+2*i}, v{S[0]+2*i+1}")
        a(f"buffer_store_dwordx4 {vr(PK,4)}, v{vL16}, {WS}, {sOOWN} offen " + ["sc1", "sc0 sc1", "sc1 nt"][OPT["osc"]])
    finish(True)
    a.c("unshifted exponentials are exact enough iff 2^-20 <= row sum <= 2^60 and every accumulator is finite;\n"
        "otherwise redo with the true row max (nothing is flagged before the next barrier)")
    a(f"v_cmp_ge_f32 s[68:69], v{O[0]+8}, v13")
    a(f"v_cmp_le_f32 s[70:71], v{O[0]+8}, v1")
    a(f"v_mul_f32 v14, 0, v{O[0]}")
    for i in range(1, 8): a(f"v_fma_f32 v14, v{O[0]+i}, 0, v14")
    a("v_cmp_o_f32 vcc, v14, v14")
    a("s_and_b64 s[68:69], s[68:69], s[70:71]")
    a("s_nop 1")
    a("s_and_b64 s[68:69], s[68:69], vcc")
    a("s_cmp_eq_u64 s[68:69], -1")
    a("s_cbranch_scc0 L_fallback")
    a.label("L_fin")
    def poll_f(): a(f"buffer_load_dwordx2 {vr(vT,2)}, off, {WS}, s75 sc1")
    WF = 112
    wo_list = [(i, s_) for s_ in range(15, -1, -1) for i in range(2)]
    def rdWo(n):
        for _ in range(n):
            i, s_ = wo_list.pop(0)
            b = vA[i][s_ // 8]; o = (s_ % 8) * 8192; r = WF + 64*i + 4*s_
            a(f"ds_read_b64_tr_b16 {vr(r,2)}, v{b} offset:{o}")
            a(f"ds_read_b64_tr_b16 {vr(r+2,2)}, v{b} offset:{o+2048}")
    a.c("---- hand O over; the Wo fragments move to registers meanwhile")
    rdWo(7)
    a("s_waitcnt lgkmcnt(2)")
    rdWo(6)
    a("s_waitcnt vmcnt(0)")
    a("s_barrier", "every wave's O fragment is written through")
    a(f"s_cmp_lg_u32 {sWAVE}, {sQUAD}")
    a("s_cbranch_scc1 L_noflag")
    a("s_mov_b64 exec, 0xff")
    a(f"buffer_store_dwordx2 {vr(vPD,2)}, v{vFL}, {WS}, s74 offen sc1", "wave == quad has nothing to fetch: it flags")
    a("s_mov_b64 exec, -1")
    a("s_branch L_flagged")
    a.label("L_noflag")
    poll_f()
    a.label("L_flagged")
    stamp(a, 8)
    a(f"s_lshr_b32 s53, {sQUAD}, 2")
    a(f"s_cmp_lg_u32 s53, {sTT}")
    a("s_waitcnt lgkmcnt(0)")
    a("s_cbranch_scc1 L_noown")
    a(f"ds_write_b128 v{vOWN}, {vr(PK,4)}", "this workgroup's own heads go straight to their staging slot")
    a.label("L_noown")
    rdWo(7)
    a("s_waitcnt lgkmcnt(2)")
    rdWo(6)
    a(f"s_mov_b32 m0, {sSLOT}")
    a("s_waitcnt lgkmcnt(2)")
    rdWo(6)
    a(f"s_mov_b32 s53, {SPIN_MAX}")
    a(f"s_cmp_eq_u32 {sWAVE}, {sQUAD}")
    a("s_cbranch_scc1 L_oskip")
    a("s_branch L_ochk")
    a.label("L_ospin")
    poll_f()
    a.label("L_ochk")
    a("s_waitcnt vmcnt(0)")
    a(f"v_cmp_eq_u64 vcc, {NONCE}, {vr(vT,2)}")
    a("s_sub_u32 s53, s53, 1")
    a("s_cbranch_scc1 L_ogo")
    a("s_cmp_eq_u64 vcc, -1")
    a("s_cbranch_scc0 L_ospin")
    a.label("L_ogo")
    stamp(a, 9)
    for i in range(4):
        a(f"buffer_load_dwordx4 v{vL16}, {WS}, s64 offen offset:{i*1024} sc1 lds")
    a("s_waitcnt vmcnt(0)")
    stamp(a, 21)
    a.label("L_oskip")
    a("s_waitcnt lgkmcnt(0)")
    a("s_barrier")
    stamp(a, 10)
    a.c("---- output projection: 16 tokens x 32 columns per wave, two heads per step")
    ACC = 32; NB = 7
    def rd3(s_): a(f"ds_read_b128 {vr(44 + 4*(s_ % (NB+1)),4)}, v{vBO} offset:{s_*2048}")
    for s_ in range(NB): rd3(s_)
    for s_ in range(16):
        if s_ + NB < 16:
            rd3(s_ + NB); a(f"s_waitcnt lgkmcnt({NB})")
        else:
            a(f"s_waitcnt lgkmcnt({15 - s_})")
        f = 44 + 4*(s_ % (NB+1))
        for i in range(2):
            a(f"v_mfma_f32_16x16x32_bf16 {vr(ACC+4*i,4)}, {vr(WF+64*i+4*s_,4)}, {vr(f,4)}, " + ("0" if s_ == 0 else vr(ACC+4*i,4)))
    a("s_nop 7")
    for i in range(4): a(f"v_cvt_pk_bf16_f32 v{PK+i}, v{ACC+2*i}, v{ACC+2*i+1}")
    a("s_nop 1")
    a(f"v_permlane16_swap_b32 v{PK}, v{PK+2}")
    a(f"v_permlane16_swap_b32 v{PK+1}, v{PK+3}")
    a(f"buffer_store_dwordx4 {vr(PK,4)}, v{vSTO}, {OUT}, {sOST} offen nt")
    if OPT["stamp"]:
        stamp(a, 17)
        a("s_waitcnt vmcnt(0)")
        stamp(a, 11); stamp_out(a)
    a.label("L_end")
    a("s_endpgm")
    a.c("---- fallback (rare): exact row max over all keys, then this q-tile again with it subtracted")
    a.label("L_fallback")
    a(f"s_mul_i32 s53, {sHEAD}, {131072 + OPT['hpad']}")
    a("s_mov_b32 s54, 0")
    a("v_mov_b32 v14, 0xff800000")
    a.label("L_fb1")
    a(f"buffer_load_dwordx4 {vr(KV[0],4)}, v{vL16}, {WS}, s53 offen sc1")
    a("s_waitcnt vmcnt(0)")
    qk(0, 0, "0")
    a("s_add_u32 s53, s53, 2048")
    a("s_add_u32 s54, s54, 1")
    a("s_nop 7"); a("s_nop 3")
    for i in range(8): a(f"v_max3_f32 v14, v{S[0]+2*i}, v{S[0]+2*i+1}, v14")
    a("s_cmp_lt_u32 s54, 64")
    a("s_cbranch_scc1 L_fb1")
    a("v_mov_b32 v1, v14")
    a("s_nop 1")
    a("v_permlane32_swap_b32 v14, v1")
    a("s_nop 1")
    a("v_max_f32 v14, v14, v1")
    for i in range(16): a(f"v_sub_f32 v{S[1]+i}, 0, v14")
    for i in range(16): a(f"v_mov_b32 v{O[0]+i}, 0")
    a(f"s_mul_i32 s53, {sHEAD}, {131072 + OPT['hpad']}")
    a("s_mov_b32 s54, 0")
    a.label("L_fb2")
    a(f"buffer_load_dwordx4 {vr(KV[0],4)}, v{vL16}, {WS}, s53 offen sc1")
    a(f"s_mov_b64 exec, {VMASK}")
    a(f"buffer_load_dwordx4 {vr(KV[0]+4,4)}, v{vVO}, {WS}, s53 offen sc1")
    a(f"buffer_load_dwordx4 {vr(KV[0]+8,4)}, v{vVO}, {WS}, s53 offen offset:512 sc1")
    a("s_mov_b64 exec, -1")
    a("s_waitcnt vmcnt(0)")
    qk(0, 0, vr(S[1], 16))
    a("s_add_u32 s53, s53, 2048")
    a("s_add_u32 s54, s54, 1")
    a("s_nop 7"); a("s_nop 3")
    for i in range(16): ex(0, i)
    a("s_nop 1")
    pv0(0, 0); pv1(0, 0)
    a("s_cmp_lt_u32 s54, 64")
    a("s_cbranch_scc1 L_fb2")
    a("s_nop 7"); a("s_nop 7")
    a(f"v_rcp_f32 v14, v{O[0]+8}")
    a("s_nop 0")
    finish(False)
    a("s_branch L_fin")
    a.label("L_codeend")
    return f""".section .rodata,"a"
.p2align 6
.amdhsa_kernel {name}
  .amdhsa_next_free_vgpr 256
  .amdhsa_next_free_sgpr 100
  .amdhsa_accum_offset 256
  .amdhsa_group_segment_fixed_size 0
  .amdhsa_kernarg_size 48
  .amdhsa_user_sgpr_count 2
  .amdhsa_user_sgpr_kernarg_segment_ptr 1
  .amdhsa_system_sgpr_workgroup_id_x 1
.end_amdhsa_kernel
"""

if __name__ == "__main__":
    for kv in sys.argv[2:]:
        k, v = kv.split("="); assert k in OPT, k; OPT[k] = int(v)
    a = Asm()
    a.raw(HEADER.rstrip("\n"))
    a.raw('.amdgcn_target "amdgcn-amd-amdhsa--gfx950"')
    a.raw(".text")
    d = gen(a)
    open(sys.argv[1], "w").write(a.text() + d)
```

```python
import math, struct, sys

def f2u(x): return struct.unpack("<I", struct.pack("<f", x))[0]
CSCALE = 0.25 * math.log2(math.e)
O_OFF = 5 << 20
FKV_OFF = 7 << 20
FO_OFF = (7 << 20) + (256 << 10)
WB = 65536
R3 = 131072
SPIN_MAX = 1 << 16
OPT = dict(hpad=0, wrot=1, rotm=2, qmap=0, opre2=0, osc=0, one=0, sched=0, ipf=1, qpf=1, stamp=0, drop=6, fstep=5, order=0)

class Asm:
    def __init__(self): self.l = []
    def __call__(self, s, c=None): self.l.append("    " + s + (" " * max(1, 74 - len(s)) + "; " + c if c else ""))
    def label(self, s): self.l.append(s + ":")
    def raw(self, s): self.l.append(s)
    def c(self, s):
        for t in s.split("\n"): self.l.append("    ; " + t)
    def text(self): return "\n".join(self.l) + "\n"
def vr(a, n): return f"v[{a}:{a+n-1}]"

vST_RT, vST_CY = 252, 253
STAMPS = {1: None, 3: (7, 11), 4: (7, 15, 8, 9, 21, 10, 17, 11), 5: (3, 24, 5, 22, 23, 19, 7, 11), 7: (2, 3, 5, 7, 11), 8: (12, 13, 20, 1, 2, 3, 11), 6: (12, 2, 25, 26, 27, 28, 29, 30, 31, 3, 11)}
def stamp(a, i):
    m = OPT["stamp"]
    if not m or (STAMPS[m] is not None and i not in STAMPS[m] and i != OPT['one']): return False
    a("s_memrealtime s[80:81]"); a("s_memtime s[82:83]"); a("s_waitcnt lgkmcnt(0)")
    a(f"v_writelane_b32 v{vST_RT}, s80, {i}"); a(f"v_writelane_b32 v{vST_CY}, s82, {i}")
    return True
def stamp_out(a):
    a(f"s_add_u32 s76, s20, {hex(16<<20)}"); a("s_addc_u32 s77, s21, 0"); a("s_mov_b32 s78, 0x100000"); a("s_mov_b32 s79, 0x00020000")
    a("s_lshl_b32 s80, s2, 3"); a("s_add_u32 s80, s80, s42"); a("s_lshl_b32 s80, s80, 8")
    a("v_lshlrev_b32 v1, 2, v0"); a("s_mov_b32 exec_hi, 0")
    a(f"buffer_store_dword v{vST_RT}, v1, s[76:79], s80 offen"); a(f"buffer_store_dword v{vST_CY}, v1, s[76:79], s80 offen offset:128")

X, W, WS, WO, OUT, DBG, KS = "s[12:15]", "s[16:19]", "s[20:23]", "s[24:27]", "s[28:31]", "s[32:35]", "s[76:79]"
sQUAD, sRB, sWAVE, sHD, sTT, sSLOT = "s40", "s41", "s42", "s43", "s44", "s45"
NONCE, VMASK = "s[46:47]", "s[48:49]"
sKVOWN, sKVH, sW1K, sHEAD, sQT, sOOWN, sOQ, sCB, sOST, sPOLL = "s50", "s51", "s52", "s56", "s57", "s58", "s60", "s61", "s62", "s63"
def sXT(p): return f"s{84+p}"
def sWT(p): return f"s{92+p}"
vL16, vIDX, vXD, vWD, vXR0, vXR1, vWR, vVO = 2, 3, 4, 5, 6, 7, 8, 9
AK, AV, AQ = 16, 24, 32
FW = [[40, 44, 48, 52], [32, 36, 104, 108]]
KV = [56, 68, 80, 92]
QA, QB = 104, 108
XF = 112
O = [112, 128]; S = [144, 160]
vWO, vPOLL, vPD, vKPOS, vKG, vVG, vWQ, vT, vWR4 = 240, 242, 244, 246, 247, 248, 249, 250, 254
vA = [[16, 17], [18, 19]]; vBO, vSTO, vOWN, vFL = 20, 21, 22, 23

HEADER = """; Multi-head attention block (B=1, S=2048, D=512, H=32, Dh=16) in ONE launch:
;   qkv = x @ wqkv ; o = softmax(q k^T / 4) v ; out = o @ wo
; Kernarg: x(0) wqkv(8) wo(16) out(24) debug(32) ws(40).  Generated by gen/gen_final.py.
; @launch grid=(256,1,1) block=(512,1,1) lds=163840
;
; Workgroup (quad, rb) = 4 heads x 64 tokens, one per CU; wave = (head hd of the quad, half tt).
;           K/V tiles go to the workspace in MFMA-fragment order (write-through), then a flag.
;           pick the high (bf16) half of the raw fp32 P registers, with two all-ones rows appended to V^T.
"""

def gen(a):
    name = "standalone__mha_block__prompt_kernel"
    a.raw(f".globl {name}"); a.raw(".p2align 8"); a.raw(f".type {name},@function"); a.label(name)
    a("s_cmp_ge_u32 s2, 256")
    a("s_cbranch_scc1 L_end", "workgroups past the grid leave at once")
    for d, off in ((12, 0), (16, 8), (32, 32), (20, 40), (24, 16), (28, 24)):
        a(f"s_load_dwordx2 s[{d}:{d+1}], s[0:1], {off}")
    a(f"s_memrealtime {NONCE}")
    if OPT["stamp"]: a("s_memtime s[82:83]")
    a.c("pull the rest of this kernel's code towards the L2 while the arguments are on their way")
    a("s_getpc_b64 s[76:77]")
    a.label("L_pc")
    a(f"v_lshlrev_b32 v1, {6 if OPT['ipf'] > 1 else 7}, v0")
    a(f"v_cmp_gt_u32 vcc, (L_codeend-L_pc)/{64 if OPT['ipf'] > 1 else 128}, v0")
    a("s_and_saveexec_b64 s[78:79], vcc")
    a("s_cbranch_execz L_noipf")
    if OPT["ipf"]: a(f"global_load_dword v{vT+1}, v1, s[76:77]")
    a.label("L_noipf")
    a("s_mov_b64 exec, -1")
    a("v_lshrrev_b32 v1, 6, v0")
    a("v_and_b32 v0, 63, v0", "v0 = lane")
    a(f"v_readfirstlane_b32 {sWAVE}, v1")
    a.c("quad = (wg&3)*2 + ((wg>>3)&1), rb = ((wg>>2)&1)*16 + (wg>>4): two quads per XCD under round-robin placement (speed only)")
    if OPT["qmap"] == 0:
        a("s_and_b32 s54, s2, 3")
        a("s_lshl_b32 s54, s54, 1")
        a("s_bfe_u32 s55, s2, 0x10003")
    elif OPT["qmap"] == 1:
        a("s_and_b32 s54, s2, 3")
        a("s_bfe_u32 s55, s2, 0x10003")
        a("s_lshl_b32 s55, s55, 2")
    else:
        a("s_and_b32 s54, s2, 3")
        a("s_mul_i32 s54, s54, 5")
        a("s_and_b32 s54, s54, 5")
        a("s_and_b32 s54, s2, 1")
        a("s_bfe_u32 s55, s2, 0x10001")
        a("s_lshl_b32 s55, s55, 2")
        a("s_add_u32 s54, s54, s55")
        a("s_bfe_u32 s55, s2, 0x10003")
        a("s_lshl_b32 s55, s55, 1")
    a(f"s_add_u32 {sQUAD}, s54, s55")
    a("s_bfe_u32 s54, s2, 0x10002")
    a("s_lshl_b32 s54, s54, 4")
    a("s_lshr_b32 s55, s2, 4")
    a(f"s_add_u32 {sRB}, s54, s55")
    a(f"s_and_b32 {sHD}, {sWAVE}, 3")
    a(f"s_lshr_b32 {sTT}, {sWAVE}, 2")
    a(f"s_lshl_b32 {sW1K}, {sWAVE}, 10")
    a(f"v_lshlrev_b32 v{vL16}, 4, v0")
    a.c("x DMA source: row 8w + l/8 of the block, 16-byte piece (l%8) ^ ((row>>1)&7)  (bank swizzle)")
    a("v_lshrrev_b32 v10, 3, v0")
    a("v_and_b32 v11, 7, v0")
    a("v_lshrrev_b32 v12, 4, v0")
    a(f"s_and_b32 s53, {sWAVE}, 1")
    a("s_lshl_b32 s54, s53, 2")
    a("v_xor_b32 v13, v11, v12")
    a("v_xor_b32 v13, s54, v13")
    a(f"s_lshl_b32 s55, {sWAVE}, 3")
    a("v_add_u32 v10, s55, v10")
    a(f"s_lshl_b32 s55, {sRB}, 16")
    a("v_lshlrev_b32 v14, 10, v10")
    a("v_lshl_add_u32 v14, v13, 4, v14")
    a(f"v_add_u32 v{vXD}, s55, v14")
    a.c("W DMA source: k row 8w + l/8, the quad's 128-byte line, 32-byte slot ^ (((row>>1)&1) | ((row>>3)&1)<<1)")
    a("v_and_b32 v12, 1, v12")
    a("v_lshlrev_b32 v12, 1, v12")
    a("v_xor_b32 v13, v11, v12")
    a("v_xor_b32 v13, s54, v13")
    a("v_mul_u32_u24 v14, 3072, v10")
    a("v_lshl_add_u32 v14, v13, 4, v14")
    a(f"s_lshl_b32 s55, {sQUAD}, 7")
    a(f"v_add_u32 v{vWD}, s55, v14")
    a.c("the 64-deep k chunks are walked in an order rotated per workgroup, so every line is requested early by someone")
    if OPT["rotm"] == 2: a(f"s_add_u32 s53, {sQUAD}, {sRB}")
    elif OPT["rotm"] == 1:
        a(f"s_lshl_b32 s53, {sQUAD}, 2"); a(f"s_add_u32 s53, s53, {sRB}"); a(f"s_lshr_b32 s54, {sQUAD}, 1"); a("s_add_u32 s53, s53, s54")
    elif OPT["rotm"] == 3:
        a(f"s_mul_i32 s53, {sQUAD}, 3"); a(f"s_add_u32 s53, s53, {sRB}")
    elif OPT["rotm"] == 4:
        a(f"s_lshl_b32 s53, {sQUAD}, 1"); a(f"s_add_u32 s53, s53, {sRB}"); a(f"s_lshr_b32 s54, {sQUAD}, 2"); a("s_add_u32 s53, s53, s54")
    for p in range(8):
        a("s_and_b32 s53, s53, 7")
        a(f"s_lshl_b32 {sXT(p)}, s53, 7")
        a(f"s_mul_i32 {sWT(p)}, s53, 196608")
        if p < 7: a("s_add_u32 s53, s53, 1")
    a("v_and_b32 v12, 31, v0")
    a(f"s_lshl_b32 s53, {sRB}, 5")
    a("s_and_b32 s53, s53, 511")
    a("v_add_u32 v12, s53, v12")
    a("v_mul_u32_u24 v15, 3072, v12", "this workgroup's share of the Wq lines (L2 prefetch)")
    if OPT["qpf"] > 1:
        a("v_lshrrev_b32 v12, 5, v0")
        a("v_lshl_add_u32 v15, v12, 6, v15", "this workgroup's share of the Wq lines, both halves (L2 prefetch)")
    for d, size in ((12, 2048*1024), (16, 512*3072), (32, 256), (20, 8 << 20), (24, 512*1024), (28, 2048*1024)):
        a(f"s_mov_b32 s{d+2}, {hex(size)}")
        a(f"s_mov_b32 s{d+3}, 0x00020000")
    a(f"s_mov_b32 m0, {sW1K}")
    a("s_waitcnt lgkmcnt(0)")
    if OPT["stamp"]:
        a(f"v_writelane_b32 v{vST_RT}, s46, 0"); a(f"v_writelane_b32 v{vST_CY}, s82, 0")
    stamp(a, 12)
    issued = []
    def dma_x(p, m0=True):
        if m0:
            a(f"s_add_u32 m0, {sW1K}, {p*8192}"); a("s_nop 0")
        a(f"buffer_load_dwordx4 v{vXD}, {X}, {sXT(p)} offen lds"); issued.append(("x", p))
    def dma_w(t, p, dest, tag):
        a(f"s_add_u32 m0, {sW1K}, {dest - t*1024}")
        a("s_nop 0")
        a(f"buffer_load_dwordx4 v{vWD}, {W}, {sWT(p)} offen offset:{t*1024} lds"); issued.append(tag)
    def dma_kv(p):
        dma_w(1, p, WB + (p%5)*16384, ("kv", p)); dma_w(2, p, WB + (p%5)*16384 + 8192, ("kv", p))
    QDEST = [0, 8192, 16384, 24576, 32768, WB + 3*16384, WB + 3*16384 + 8192, 40960]
    dma_x(0, False); dma_kv(0)
    a.c("launch nonce: workgroup 0, wave 0 publishes its clock reading")
    a("s_or_b32 s46, s46, 1")
    a(f"s_or_b32 s53, s2, {sWAVE}")
    a("s_cbranch_scc1 L_nonon")
    a("v_mov_b32 v10, s46"); a("v_mov_b32 v11, s47")
    a("s_mov_b64 exec, 1")
    a(f"buffer_store_dwordx2 v[10:11], off, {DBG}, 0 sc1")
    a("s_mov_b64 exec, -1")
    a.label("L_nonon")
    a(f"s_cmp_lg_u32 {sWAVE}, 7")
    a("s_cbranch_scc1 L_noqpf")
    if OPT["qpf"]: a(f"buffer_load_dword v{vT}, v15, {W}, s55 offen")
    a.label("L_noqpf")
    if OPT["order"] == 0:
        for p in range(1, 4): dma_x(p)
    elif OPT["order"] == 3:
        dma_x(1)
    stamp(a, 13)
    a.c("scalar offsets")
    a(f"s_lshl_b32 {sSLOT}, {sWAVE}, 12")
    a(f"s_add_u32 {sSLOT}, {sSLOT}, {R3}")
    a(f"s_lshl_b32 s53, {sQUAD}, 2")
    a(f"s_add_u32 {sHEAD}, s53, {sHD}")
    a(f"s_mul_i32 s53, {sHEAD}, {131072 + OPT['hpad']}")
    a(f"s_lshl_b32 s54, {sTT}, 11")
    a(f"s_add_u32 {sKVH}, s53, s54", "K/V stream of this wave: head*128K + tt*2K (+ 4K per 64 tokens)")
    a(f"s_lshl_b32 s64, {sRB}, 12")
    a(f"s_add_u32 {sKVOWN}, {sKVH}, s64")
    a(f"s_lshl_b32 s53, {sRB}, 1")
    a(f"s_add_u32 {sQT}, s53, {sTT}")
    a(f"s_lshl_b32 s53, {sQT}, 15")
    a(f"s_lshl_b32 s54, {sHEAD}, 10")
    a(f"s_add_u32 {sOOWN}, s53, s54")
    a(f"s_add_u32 {sOOWN}, {sOOWN}, {hex(O_OFF)}", "own O fragment")
    a(f"s_lshl_b32 {sPOLL}, {sQUAD}, 10")
    a(f"s_add_u32 {sPOLL}, {sPOLL}, {hex(FKV_OFF)}", "this quad's K/V flags: 32 entries, 32 bytes apart")
    a("v_and_b32 v12, 31, v0")
    a(f"v_lshlrev_b32 v{vPOLL}, 5, v12")
    a(f"s_lshr_b32 s53, {sQUAD}, 2")
    a(f"s_lshl_b32 s54, {sRB}, 1")
    a(f"s_add_u32 {sOQ}, s53, s54", "output tile: tokens of q-tile 2rb + quad/4, columns 128*((quad+rb)%4)")
    if OPT["wrot"]:
        a(f"s_add_u32 {sCB}, {sQUAD}, {sRB}")
        a(f"s_and_b32 {sCB}, {sCB}, 3")
    else:
        a(f"s_and_b32 {sCB}, {sQUAD}, 3")
    a(f"s_lshl_b32 {sCB}, {sCB}, 8")
    a(f"s_lshl_b32 s53, {sOQ}, 15")
    a(f"s_add_u32 {sOST}, s53, {sCB}")
    a(f"s_lshl_b32 s53, {sHD}, 6")
    a(f"s_add_u32 {sOST}, {sOST}, s53")
    a(f"s_lshl_b32 s53, {sTT}, 14")
    a(f"s_add_u32 {sOST}, {sOST}, s53")
    a.c("O flags: one 128-byte line per (writer, reader) pair of the eight workgroups of a row block")
    a(f"s_lshl_b32 s53, {sRB}, 3")
    a(f"s_add_u32 s54, s53, {sQUAD}")
    a("s_lshl_b32 s54, s54, 10")
    a(f"s_add_u32 s74, s54, {hex(FO_OFF)}")
    a(f"s_add_u32 s75, s53, {sWAVE}")
    a("s_lshl_b32 s75, s75, 10")
    a(f"s_lshl_b32 s54, {sQUAD}, 7")
    a("s_add_u32 s75, s75, s54")
    a(f"s_add_u32 s75, s75, {hex(FO_OFF)}")
    a(f"s_lshl_b32 s65, {sRB}, 13")
    a("s_and_b32 s65, s65, 0x1ffff")
    a("s_lshl_b32 s66, s65, 2")
    if OPT["order"] == 2:
        for p in range(1, 4): dma_x(p)
    if OPT["order"] == 3:
        dma_kv(1); dma_x(2); dma_x(3)
    a.c("LDS read addresses: x fragments (two k steps), W fragments (transposing reads)")
    a("v_and_b32 v10, 15, v0")
    a("v_lshrrev_b32 v11, 4, v0")
    a("v_bfe_u32 v12, v0, 1, 3")
    a("v_xor_b32 v12, v11, v12")
    a(f"s_lshl_b32 s53, {sTT}, 12")
    a("v_lshlrev_b32 v13, 7, v10")
    a("v_add_u32 v13, s53, v13")
    a(f"v_lshl_add_u32 v{vXR0}, v12, 4, v13")
    a(f"v_xor_b32 v{vXR1}, 64, v{vXR0}")
    a("v_bfe_u32 v12, v0, 2, 2")
    a("v_lshl_add_u32 v13, v11, 3, v12")
    a("v_lshlrev_b32 v13, 7, v13")
    a("v_bfe_u32 v14, v0, 3, 2")
    a(f"v_xor_b32 v14, {sHD}, v14")
    a("v_lshl_add_u32 v13, v14, 5, v13")
    a("v_and_b32 v14, 3, v0")
    a(f"v_lshl_add_u32 v{vWQ}, v14, 3, v13")
    a(f"v_add_u32 v{vWR}, {WB}, v{vWQ}")
    a(f"v_add_u32 v{vWR4}, {R3}, v{vWQ}")
    a.c("K/V tile = 1 KB K fragment (lane-linear) + 1 KB V^T fragments (4 x 16 lanes x 16 B)")
    a("v_lshrrev_b32 v12, 5, v0")
    a("v_lshlrev_b32 v12, 8, v12")
    a("v_lshl_add_u32 v12, v10, 4, v12")
    a(f"v_add_u32 v{vVO}, 1024, v12")
    a(f"v_add_u32 v{vKG}, {sKVH}, v{vL16}")
    a(f"v_add_u32 v{vVG}, {sKVH}, v{vVO}")
    a("v_and_b32 v12, 0x23, v0")
    a("v_bfe_u32 v13, v0, 2, 2")
    a("v_lshl_add_u32 v12, v13, 3, v12")
    a("v_bfe_u32 v13, v0, 4, 1")
    a("v_lshl_add_u32 v12, v13, 2, v12")
    a(f"v_lshlrev_b32 v{vKPOS}, 4, v12", "K rows are stored in the key order of the V^T fragments")
    a.c("Wo DMA source: row 4w + l/16, 32-byte slot ^ (row&7)")
    a(f"s_lshl_b32 s53, {sWAVE}, 2")
    a("v_add_u32 v12, s53, v11")
    a("v_and_b32 v13, 7, v12")
    a("v_lshlrev_b32 v13, 1, v13")
    a("v_xor_b32 v13, v10, v13")
    a("v_lshlrev_b32 v14, 10, v12")
    a("v_lshl_add_u32 v14, v13, 4, v14")
    a(f"v_add_u32 v{vWO}, {sCB}, v14")
    a(f"v_mov_b32 v{vIDX}, 0xdddddddd", "sparse index: elements 1 and 3 of every 4 = high halves of two fp32")
    a("s_mov_b32 s48, 0xffff"); a("s_mov_b32 s49, 0xffff", "lanes that carry V^T rows 0..15")
    a("v_and_b32 v12, 27, v0")
    a("v_cmp_eq_u32 vcc, 16, v12")
    a("v_mov_b32 v15, 0x3f803f80")
    a("s_nop 0")
    a.c("rows 16 and 20 of the V^T operand are ones (row sums), the other spare rows zero")
    for j in range(4):
        for i in range(8): a(f"v_cndmask_b32 v{KV[j]+4+i}, 0, v15, vcc")
    stamp(a, 20)
    if OPT["order"] == 1:
        dma_x(1); dma_kv(1); dma_x(2); dma_x(3); dma_kv(2)
    elif OPT["order"] == 3:
        dma_kv(2)
    else:
        dma_kv(1); dma_kv(2)
    stamp(a, 1)

    def waitvm(pred):
        last = max(i for i, t in enumerate(issued) if pred(t))
        a(f"s_waitcnt vmcnt({len(issued) - 1 - last})")
    def xf(p, s): return XF + 8*(2*p + s)
    def rd_w(base, off, r):
        a(f"ds_read_b64_tr_b16 {vr(r,2)}, v{base} offset:{off}")
        a(f"ds_read_b64_tr_b16 {vr(r+2,2)}, v{base} offset:{off + 512}")
    def readsA(p):
        fw = FW[p % 2]
        for s in range(2):
            b = vXR0 if s == 0 else vXR1; f = xf(p, s)
            a(f"ds_read_b128 {vr(f,4)}, v{b} offset:{p*8192}")
            a(f"ds_read_b128 {vr(f+4,4)}, v{b} offset:{p*8192+2048}")
            wb, wo = (vWR, (p%5)*16384) if p % 5 < 4 else (vWR4, 0)
            rd_w(wb, wo + s*4096, fw[2*s]); rd_w(wb, wo + 8192 + s*4096, fw[2*s+1])
    def mfmaA(p, s):
        f = xf(p, s); wk, wv = FW[p % 2][2*s], FW[p % 2][2*s+1]
        def c(r): return "0" if p == 0 and s == 0 else vr(r, 4)
        a(f"v_mfma_f32_16x16x32_bf16 {vr(AK,4)}, {vr(wk,4)}, {vr(f,4)}, {c(AK)}")
        a(f"v_mfma_f32_16x16x32_bf16 {vr(AK+4,4)}, {vr(wk,4)}, {vr(f+4,4)}, {c(AK+4)}")
        a(f"v_mfma_f32_16x16x32_bf16 {vr(AV,4)}, {vr(f,4)}, {vr(wv,4)}, {c(AV)}")
        a(f"v_mfma_f32_16x16x32_bf16 {vr(AV+4,4)}, {vr(f+4,4)}, {vr(wv,4)}, {c(AV+4)}")
    def grab(fn):
        n0 = len(a.l); fn(); out = a.l[n0:]; del a.l[n0:]; return out
    a.c("---- K, V.  Step p: chunk p has landed -> read its fragments, request later chunks, multiply chunk p-1.\n"
        "     A ring slot / x slot is refilled two barriers after its last reader issued (covered by lgkmcnt(0) in between).")
    QSCHED = {5: [0, 1, 2], 6: [3, 4, 5], 7: [6, 7]}
    for p in range(8):
        waitvm(lambda t: t[1] == p and t[0] in ("x", "kv"))
        a("s_barrier")
        if p == 0: stamp(a, 2)
        elif OPT["stamp"] == 6: stamp(a, 24 + p)
        if p >= 1: a("s_waitcnt lgkmcnt(0)")
        rd = grab(lambda: readsA(p))
        mf = grab(lambda: (mfmaA(p-1, 0), mfmaA(p-1, 1))) if p >= 1 else []
        dm = []
        if p + 3 < 8:
            kvl = grab(lambda: dma_kv(p + 3)); dm += [kvl[:3], kvl[3:]]
        if p + 4 < 8: dm.append(grab(lambda: dma_x(p + 4)))
        for j in QSCHED.get(p, []): dm.append(grab(lambda: dma_w(0, j, QDEST[j], ("q", j))))
        k = 0
        sc = OPT["sched"]
        if sc == 0:
            for i in range(12):
                a.l.append(rd[i])
                while k < len(mf) and k < (i + 1) * 8 // 12:
                    a.l.append(mf[k]); k += 1
                if i % 4 == 3 and i // 4 < len(dm): a.l += dm[i // 4]
        elif sc == 1:
            for i in range(12):
                if k < len(mf) and k <= i * 8 // 12:
                    a.l.append(mf[k]); k += 1
                d = dm[i // 4] if i % 4 == 2 and i // 4 < len(dm) else None
                if d: a.l.append(d[0])
                a.l.append(rd[i])
                if d: a.l.append(d[2])
            a.l += mf[k:]
        elif sc == 2:
            for d in dm: a.l += d
            for i in range(12):
                if k < len(mf) and k <= i * 8 // 12:
                    a.l.append(mf[k]); k += 1
                a.l.append(rd[i])
            a.l += mf[k:]
        elif sc == 3:
            a.l += mf[:1] + rd[:6] + mf[1:2] + rd[6:]
            rest = mf[2:]
            for i, d in enumerate(dm):
                a.l.append(d[0]); a.l += rest[2*i:2*i+1] or ["    s_nop 0"]; a.l.append(d[2]); a.l += rest[2*i+1:2*i+2]
            a.l += rest[2*len(dm):]
        assert len(dm) <= 3
        if p == 2:
            a(f"s_cmp_lg_u32 {sWAVE}, 0")
            a("s_cbranch_scc1 L_nf1")
            a(f"buffer_load_dwordx2 {vr(vPD,2)}, off, {DBG}, 0 sc1", "fetch the nonce")
            a.label("L_nf1")
    a("s_waitcnt lgkmcnt(6)")
    mfmaA(7, 0)
    a("s_waitcnt lgkmcnt(0)")
    mfmaA(7, 1)
    stamp(a, 3)
    a.c("---- publish K/V (write-through) and keep a copy of the own tile through this wave's LDS slot")
    F = 40
    a(f"v_add_u32 v10, {sSLOT}, v{vKPOS}")
    a(f"v_add_u32 v11, {sSLOT}, v{vL16}")
    a(f"v_add_u32 v12, {sSLOT}, v{vVO}")
    a("s_nop 4")
    for i in range(4): a(f"v_cvt_pk_bf16_f32 v{F+i}, v{AK+2*i}, v{AK+2*i+1}")
    for i in range(4): a(f"v_cvt_pk_bf16_f32 v{F+4+i}, v{AV+2*i}, v{AV+2*i+1}")
    a(f"v_permlane16_swap_b32 v{F}, v{F+2}")
    a(f"v_permlane16_swap_b32 v{F+1}, v{F+3}")
    a(f"buffer_store_dwordx4 {vr(F+4,4)}, v{vL16}, {WS}, {sKVOWN} offen offset:1024 sc1")
    a(f"buffer_store_dwordx4 {vr(F,4)}, v{vKPOS}, {WS}, {sKVOWN} offen sc1")
    a(f"ds_write_b128 v11, {vr(F+4,4)} offset:1024")
    a(f"ds_write_b128 v10, {vr(F,4)}")
    a("s_waitcnt lgkmcnt(0)")
    a(f"ds_read_b128 {vr(KV[0],4)}, v11")
    a(f"s_mov_b64 exec, {VMASK}")
    a(f"ds_read_b128 {vr(KV[0]+4,4)}, v12")
    a(f"ds_read_b128 {vr(KV[0]+8,4)}, v12 offset:512")
    a("s_mov_b64 exec, -1")
    a("s_waitcnt vmcnt(7)", "Wq chunks 0..2 (and the nonce)")
    a(f"s_cmp_lg_u32 {sWAVE}, 0")
    a("s_cbranch_scc1 L_nf2")
    a(f"s_mov_b32 s53, {SPIN_MAX}")
    a.label("L_nspin")
    a(f"v_readfirstlane_b32 s54, v{vPD}")
    a("s_sub_u32 s53, s53, 1")
    a("s_cbranch_scc1 L_ngot")
    a("s_cmp_lg_u32 s54, 0")
    a("s_cbranch_scc1 L_ngot")
    a("s_sleep 2")
    a(f"buffer_load_dwordx2 {vr(vPD,2)}, off, {DBG}, 0 sc1")
    a("s_waitcnt vmcnt(0)")
    a("s_branch L_nspin")
    a.label("L_ngot")
    a(f"v_mov_b32 v10, {R3 + 2816}")
    a(f"ds_write_b64 v10, {vr(vPD,2)}")
    a.label("L_nf2")
    a("s_waitcnt lgkmcnt(0)")
    a("s_barrier")
    stamp(a, 14)
    a(f"v_mov_b32 v10, {R3 + 2816}")
    a(f"ds_read_b64 {vr(vPD,2)}, v10")
    a.c("---- Q (the x fragments are still in registers)")
    BS = [48, 52, 16, 20, 24, 28, 40, 44]
    lgq = ["n"]
    def readsB(st):
        p, s = divmod(st, 2); d = QDEST[p]
        if d < WB: rd_w(vWQ, d + s*4096, BS[st % 8])
        else: rd_w(vWR, d - WB + s*4096, BS[st % 8])
        lgq.extend([st, st])
    FS = OPT["fstep"]; nxt = 0
    a(f"s_lshl_b32 s54, {sRB}, 5")
    a(f"s_add_u32 s53, {sPOLL}, s54")
    for st in range(16):
        if st == FS:
            a("s_waitcnt vmcnt(0)")
            if stamp(a, 18): del lgq[:]
            a("s_barrier", "every wave's K/V is written through, all of Wq has landed")
            a(f"s_cmp_lg_u32 {sWAVE}, 0")
            a("s_cbranch_scc1 L_nflag")
            a("s_mov_b64 exec, 1")
            a(f"buffer_store_dwordx2 {vr(vPD,2)}, off, {WS}, s53 sc1", "K/V flag of this workgroup")
            a("s_mov_b64 exec, -1")
            a.label("L_nflag")
            if stamp(a, 24): del lgq[:]
        while nxt < min(6 if st < FS else 16, st + 6):
            readsB(nxt); nxt += 1
        if st in lgq:
            last = max(i for i, t in enumerate(lgq) if t == st)
            a(f"s_waitcnt lgkmcnt({len(lgq) - 1 - last})"); del lgq[:last + 1]
        if st == 0:
            a(f"v_readfirstlane_b32 s46, v{vPD}")
            a(f"v_readfirstlane_b32 s47, v{vPD+1}")
        f = XF + 8*st; w = BS[st % 8]
        c0, c1 = ("0", "0") if st == 0 else (vr(AQ,4), vr(AQ+4,4))
        a(f"v_mfma_f32_16x16x32_bf16 {vr(AQ,4)}, {vr(w,4)}, {vr(f,4)}, {c0}")
        a(f"v_mfma_f32_16x16x32_bf16 {vr(AQ+4,4)}, {vr(w,4)}, {vr(f+4,4)}, {c1}")
        if st == 2:
            for i in range(4): a(f"v_mov_b32 v{12+i}, 0")
        if st == 3:
            a(f"v_mfma_f32_32x32x16_bf16 {vr(O[0],16)}, v[12:15], v[12:15], 0", "clear the O accumulators")
            a(f"v_mfma_f32_32x32x16_bf16 {vr(O[1],16)}, v[12:15], v[12:15], 0")
    a(f"s_xor_b32 s53, {sSLOT}, 16384")
    a(f"s_mov_b32 s54, {hex(f2u(CSCALE))}", "log2(e)/4 goes into Q")
    a(f"v_add_u32 v10, s53, v{vL16}")
    a("s_mov_b64 s[76:77], s[20:21]")
    a("s_mov_b32 s78, s22")
    a("s_mov_b32 s79, 0x00020000")
    a("s_mov_b32 s67, 8")
    a("s_nop 0")
    for i in range(0, 8, 2): a(f"v_pk_mul_f32 {vr(AQ+i,2)}, s[54:55], {vr(AQ+i,2)} op_sel_hi:[0,1]")
    for i in range(4): a(f"v_cvt_pk_bf16_f32 v{QA+i}, v{AQ+2*i}, v{AQ+2*i+1}")
    a("s_nop 1")
    a(f"v_permlane16_swap_b32 v{QA}, v{QA+2}")
    a(f"v_permlane16_swap_b32 v{QA+1}, v{QA+3}")
    a(f"ds_write_b128 v10, {vr(QA,4)} offset:3072", "the partner wave needs this Q tile too")
    def qk(j, q, c="0.15915494"): a(f"v_mfma_f32_32x32x16_bf16 {vr(S[q],16)}, {vr(KV[j],4)}, {vr(QA if q == 0 else QB,4)}, {c}")
    def pv0(j, q): a(f"v_smfmac_f32_32x32x32_bf16 {vr(O[q],16)}, {vr(KV[j]+4,4)}, {vr(S[q],8)}, v{vIDX}")
    def pv1(j, q): a(f"v_smfmac_f32_32x32x32_bf16 {vr(O[q],16)}, {vr(KV[j]+8,4)}, {vr(S[q]+8,8)}, v{vIDX}")
    def ex(q, i): a(f"v_exp_f32 v{S[q]+i}, v{S[q]+i}")
    def poll_kv(): a(f"buffer_load_dwordx2 {vr(vT,2)}, v{vPOLL}, {WS}, {sPOLL} offen sc1")
    a(f"s_mov_b32 s53, {SPIN_MAX}")
    a.c("the constant added to every score (1/2pi) cancels in the normalisation; it keeps exp2(0) off a bf16 step")
    qk(0, 0)
    stamp(a, 16)
    a("s_waitcnt lgkmcnt(0)")
    a("s_barrier")
    a(f"ds_read_b128 {vr(QB,4)}, v11 offset:3072")
    poll_kv()
    stamp(a, 5)
    a("s_nop 7")
    a.c("---- attention on the own key tile while the other workgroups' flags arrive")
    ex(0, 0); ex(0, 1); ex(0, 2); ex(0, 3)
    a("s_waitcnt lgkmcnt(0)")
    qk(0, 1)
    for i in range(4, 11): ex(0, i)
    pv0(0, 0)
    for i in range(11, 16): ex(0, i)
    def unit01():
        ex(1, 0); ex(1, 1)
        pv1(0, 0)
        for i in range(2, 11): ex(1, i)
        pv0(0, 1)
        for i in range(11, 16): ex(1, i)
    def ldK(j):
        a("s_add_u32 s64, s64, 4096"); a("s_and_b32 s64, s64, 0x1ffff")
        a(f"buffer_load_dwordx4 {vr(KV[j],4)}, v{vKG}, {KS}, s64 offen sc1")
    def ldV(j):
        a(f"s_mov_b64 exec, {VMASK}")
        a(f"buffer_load_dwordx4 {vr(KV[j]+4,4)}, v{vVG}, {KS}, s64 offen sc1")
        a(f"buffer_load_dwordx4 {vr(KV[j]+8,4)}, v{vVG}, {KS}, s64 offen offset:512 sc1")
        a("s_mov_b64 exec, -1")
    def first_loads():
        for j in (1, 2, 3): ldK(j); ldV(j)
    a("s_waitcnt vmcnt(0)")
    a(f"v_cmp_eq_u64 vcc, {NONCE}, {vr(vT,2)}")
    a("s_nop 1")
    a("s_cmp_eq_u64 vcc, -1")
    a("s_cbranch_scc0 L_late")
    stamp(a, 22); stamp(a, 23)
    first_loads()
    unit01()
    a("s_branch L_go")
    a.label("L_late")
    stamp(a, 22)
    poll_kv()
    unit01()
    a.label("L_kvspin")
    a("s_waitcnt vmcnt(0)")
    a(f"v_cmp_eq_u64 vcc, {NONCE}, {vr(vT,2)}")
    a("s_sub_u32 s53, s53, 1")
    a("s_cbranch_scc1 L_kvgo")
    a("s_cmp_eq_u64 vcc, -1")
    a("s_cbranch_scc1 L_kvgo")
    a("s_sleep 1")
    poll_kv()
    a("s_branch L_kvspin")
    a.label("L_kvgo")
    stamp(a, 23)
    first_loads()
    a.label("L_go")
    a.c("phase-3 addresses: wave = (32-column pair w&3, 16-token half w>>2)")
    a("v_lshrrev_b32 v12, 5, v0")
    a("v_bfe_u32 v13, v0, 2, 3")
    a("v_lshl_add_u32 v14, v12, 4, v13")
    a("v_lshlrev_b32 v14, 8, v14")
    a(f"s_lshl_b32 s54, {sHD}, 1")
    a("v_xor_b32 v13, s54, v13")
    a("v_lshl_add_u32 v14, v13, 5, v14")
    a("v_and_b32 v13, 3, v0")
    a(f"v_lshl_add_u32 v{vA[0][0]}, v13, 3, v14")
    a(f"v_add_u32 v{vA[0][1]}, 65536, v{vA[0][0]}")
    a(f"v_xor_b32 v{vA[1][0]}, 32, v{vA[0][0]}")
    a(f"v_xor_b32 v{vA[1][1]}, 32, v{vA[0][1]}")
    a("v_and_b32 v10, 15, v0")
    a("v_lshrrev_b32 v13, 4, v0")
    a("v_lshlrev_b32 v14, 9, v13")
    a("v_lshl_add_u32 v14, v10, 4, v14")
    a(f"s_lshl_b32 s54, {sTT}, 8")
    a(f"s_add_u32 s54, s54, {R3}")
    a(f"v_add_u32 v{vBO}, s54, v14")
    a("v_lshlrev_b32 v14, 10, v10")
    a("v_lshl_add_u32 v14, v12, 4, v14")
    a("v_and_b32 v13, 1, v13")
    a(f"v_lshl_add_u32 v{vSTO}, v13, 5, v14")
    a(f"s_lshl_b32 s53, {sQUAD}, 12")
    a(f"s_lshl_b32 s54, {sHD}, 10")
    a("s_add_u32 s53, s53, s54")
    a(f"s_add_u32 s53, s53, {R3}")
    a(f"v_add_u32 v{vOWN}, s53, v{vL16}")
    a(f"v_lshlrev_b32 v{vFL}, 7, v0")
    stamp(a, 6)
    a.c("the two waves of a SIMD take turns leading so that both stay runnable to the end")
    a(f"s_cmp_lg_u32 {sTT}, 1")
    a("s_cbranch_scc1 L_noprio")
    a("s_setprio 1")
    a.label("L_noprio")
    a("s_waitcnt vmcnt(6)")
    qk(1, 0)
    a("s_nop 7")
    a("s_nop 2")
    stamp(a, 19)
    a("s_branch L_loop1")
    a.raw(".p2align 6")
    a.c("---- 31 remote key tiles (entered at the second quarter), three tiles in flight")
    a.label("L_loop")
    for u in range(4):
        if u == 1:
            a.label("L_loop1")
            a(f"s_cmp_lg_u32 s67, {8 - OPT['drop']}")
            a("s_cbranch_scc1 L_nodrop")
            a("s_setprio 0")
            a(f"buffer_load_dwordx2 {vr(vT,2)}, off, {WS}, s75 sc1", "first touch of the O flag line")
            if OPT["opre2"] == 1: a(f"buffer_load_dword v{vT}, v{vL16}, {WS}, {sOOWN} offen sc1")
            if OPT["opre2"] == 2: a(f"buffer_store_dwordx4 {vr(QA,4)}, v{vL16}, {WS}, {sOOWN} offen sc1")
            a.label("L_nodrop")
            a("s_cmp_eq_u32 s67, 1")
            a("s_cselect_b32 s78, 0, s78", "the last three prefetches have no consumer: out of range")
        pj = (u - 1) % 4; nj = (u + 1) % 4
        for i in range(16):
            if i == 2: pv1(pj, 1)
            if i == 3: ldK(pj)
            if i == 5: qk(u, 1)
            if i == 7: ldV(pj)
            if i == 11: pv0(u, 0)
            ex(0, i)
        for i in range(16):
            if i == 2: pv1(u, 0)
            if i == 5:
                a("s_waitcnt vmcnt(6)"); qk(nj, 0)
            if i == 11: pv0(u, 1)
            ex(1, i)
    a("s_cmp_le_u32 s67, 4")
    a("s_cbranch_scc1 L_nowo")
    for i in range(4):
        a(f"s_add_u32 m0, s65, {sW1K}", "a quarter of this workgroup's Wo slice per pass" if i == 0 else None)
        a("s_add_u32 s65, s65, 8192")
        a(f"buffer_load_dwordx4 v{vWO}, {WO}, s66 offen lds")
        a("s_and_b32 s65, s65, 0x1ffff")
        a("s_lshl_b32 s66, s65, 2")
    a.label("L_nowo")
    a("s_sub_u32 s67, s67, 1")
    a("s_cmp_lg_u32 s67, 0")
    a("s_cbranch_scc1 L_loop")
    pv1(3, 1)
    stamp(a, 7)
    a.c("---- merge the two key halves: each wave keeps its own q-tile")
    a(f"s_xor_b32 s54, {sSLOT}, 16384")
    a("s_nop 2")
    a(f"v_add_u32 v10, s54, v{vL16}")
    a("v_lshlrev_b32 v14, 2, v0")
    a("v_add_u32 v13, s54, v14")
    a(f"v_add_u32 v14, {sSLOT}, v14")
    a(f"s_lshl_b32 s54, {sOQ}, 15")
    a(f"s_lshl_b32 s55, {sWAVE}, 12")
    a("s_add_u32 s54, s54, s55")
    a(f"s_add_u32 s64, s54, {hex(O_OFF)}")
    a(f"ds_write_b128 v10, {vr(O[1],4)}")
    a(f"ds_write_b128 v10, {vr(O[1]+4,4)} offset:1024")
    a(f"ds_write_b32 v13, v{O[1]+8} offset:2048")
    a("s_waitcnt vmcnt(0) lgkmcnt(0)")
    a("s_barrier", "(also: all of Wo is in LDS)")
    stamp(a, 15)
    a(f"ds_read_b32 v{S[0]+8}, v14 offset:2048")
    a(f"ds_read_b128 {vr(S[0],4)}, v11")
    a(f"ds_read_b128 {vr(S[0]+4,4)}, v11 offset:1024")
    a(f"v_mov_b32 v13, {hex(f2u(2.0**-20))}")
    a(f"v_mov_b32 v1, {hex(f2u(2.0**60))}")
    a("s_waitcnt lgkmcnt(2)")
    a(f"v_add_f32 v{O[0]+8}, v{O[0]+8}, v{S[0]+8}")
    a(f"v_rcp_f32 v14, v{O[0]+8}")
    a("s_waitcnt lgkmcnt(0)")
    PK = 40
    def finish(add):
        if add:
            for i in range(0, 8, 2): a(f"v_pk_add_f32 {vr(O[0]+i,2)}, {vr(O[0]+i,2)}, {vr(S[0]+i,2)}")
        for i in range(0, 8, 2): a(f"v_pk_mul_f32 {vr(S[0]+i,2)}, v[14:15], {vr(O[0]+i,2)} op_sel_hi:[0,1]")
        for i in range(4): a(f"v_cvt_pk_bf16_f32 v{PK+i}, v{S[0]+2*i}, v{S[0]+2*i+1}")
        a(f"buffer_store_dwordx4 {vr(PK,4)}, v{vL16}, {WS}, {sOOWN} offen " + ["sc1", "sc0 sc1", "sc1 nt"][OPT["osc"]])
    finish(True)
    a.c("unshifted exponentials are exact enough iff 2^-20 <= row sum <= 2^60 and every accumulator is finite;\n"
        "otherwise redo with the true row max (nothing is flagged before the next barrier)")
    a(f"v_cmp_ge_f32 s[68:69], v{O[0]+8}, v13")
    a(f"v_cmp_le_f32 s[70:71], v{O[0]+8}, v1")
    a(f"v_mul_f32 v14, 0, v{O[0]}")
    for i in range(1, 8): a(f"v_fma_f32 v14, v{O[0]+i}, 0, v14")
    a("v_cmp_o_f32 vcc, v14, v14")
    a("s_and_b64 s[68:69], s[68:69], s[70:71]")
    a("s_nop 1")
    a("s_and_b64 s[68:69], s[68:69], vcc")
    a("s_cmp_eq_u64 s[68:69], -1")
    a("s_cbranch_scc0 L_fallback")
    a.label("L_fin")
    def poll_f(): a(f"buffer_load_dwordx2 {vr(vT,2)}, off, {WS}, s75 sc1")
    WF = 112
    wo_list = [(i, s_) for s_ in range(15, -1, -1) for i in range(2)]
    def rdWo(n):
        for _ in range(n):
            i, s_ = wo_list.pop(0)
            b = vA[i][s_ // 8]; o = (s_ % 8) * 8192; r = WF + 64*i + 4*s_
            a(f"ds_read_b64_tr_b16 {vr(r,2)}, v{b} offset:{o}")
            a(f"ds_read_b64_tr_b16 {vr(r+2,2)}, v{b} offset:{o+2048}")
    a.c("---- hand O over; the Wo fragments move to registers meanwhile")
    rdWo(7)
    a("s_waitcnt lgkmcnt(2)")
    rdWo(6)
    a("s_waitcnt vmcnt(0)")
    a("s_barrier", "every wave's O fragment is written through")
    a(f"s_cmp_lg_u32 {sWAVE}, {sQUAD}")
    a("s_cbranch_scc1 L_noflag")
    a("s_mov_b64 exec, 0xff")
    a(f"buffer_store_dwordx2 {vr(vPD,2)}, v{vFL}, {WS}, s74 offen sc1", "wave == quad has nothing to fetch: it flags")
    a("s_mov_b64 exec, -1")
    a("s_branch L_flagged")
    a.label("L_noflag")
    poll_f()
    a.label("L_flagged")
    stamp(a, 8)
    a(f"s_lshr_b32 s53, {sQUAD}, 2")
    a(f"s_cmp_lg_u32 s53, {sTT}")
    a("s_waitcnt lgkmcnt(0)")
    a("s_cbranch_scc1 L_noown")
    a(f"ds_write_b128 v{vOWN}, {vr(PK,4)}", "this workgroup's own heads go straight to their staging slot")
    a.label("L_noown")
    rdWo(7)
    a("s_waitcnt lgkmcnt(2)")
    rdWo(6)
    a(f"s_mov_b32 m0, {sSLOT}")
    a("s_waitcnt lgkmcnt(2)")
    rdWo(6)
    a(f"s_mov_b32 s53, {SPIN_MAX}")
    a(f"s_cmp_eq_u32 {sWAVE}, {sQUAD}")
    a("s_cbranch_scc1 L_oskip")
    a("s_branch L_ochk")
    a.label("L_ospin")
    poll_f()
    a.label("L_ochk")
    a("s_waitcnt vmcnt(0)")
    a(f"v_cmp_eq_u64 vcc, {NONCE}, {vr(vT,2)}")
    a("s_sub_u32 s53, s53, 1")
    a("s_cbranch_scc1 L_ogo")
    a("s_cmp_eq_u64 vcc, -1")
    a("s_cbranch_scc0 L_ospin")
    a.label("L_ogo")
    stamp(a, 9)
    for i in range(4):
        a(f"buffer_load_dwordx4 v{vL16}, {WS}, s64 offen offset:{i*1024} sc1 lds")
    a("s_waitcnt vmcnt(0)")
    stamp(a, 21)
    a.label("L_oskip")
    a("s_waitcnt lgkmcnt(0)")
    a("s_barrier")
    stamp(a, 10)
    a.c("---- output projection: 16 tokens x 32 columns per wave, two heads per step")
    ACC = 32; NB = 7
    def rd3(s_): a(f"ds_read_b128 {vr(44 + 4*(s_ % (NB+1)),4)}, v{vBO} offset:{s_*2048}")
    for s_ in range(NB): rd3(s_)
    for s_ in range(16):
        if s_ + NB < 16:
            rd3(s_ + NB); a(f"s_waitcnt lgkmcnt({NB})")
        else:
            a(f"s_waitcnt lgkmcnt({15 - s_})")
        f = 44 + 4*(s_ % (NB+1))
        for i in range(2):
            a(f"v_mfma_f32_16x16x32_bf16 {vr(ACC+4*i,4)}, {vr(WF+64*i+4*s_,4)}, {vr(f,4)}, " + ("0" if s_ == 0 else vr(ACC+4*i,4)))
    a("s_nop 7")
    for i in range(4): a(f"v_cvt_pk_bf16_f32 v{PK+i}, v{ACC+2*i}, v{ACC+2*i+1}")
    a("s_nop 1")
    a(f"v_permlane16_swap_b32 v{PK}, v{PK+2}")
    a(f"v_permlane16_swap_b32 v{PK+1}, v{PK+3}")
    a(f"buffer_store_dwordx4 {vr(PK,4)}, v{vSTO}, {OUT}, {sOST} offen nt")
    if OPT["stamp"]:
        stamp(a, 17)
        a("s_waitcnt vmcnt(0)")
        stamp(a, 11); stamp_out(a)
    a.label("L_end")
    a("s_endpgm")
    a.c("---- fallback (rare): exact row max over all keys, then this q-tile again with it subtracted")
    a.label("L_fallback")
    a(f"s_mul_i32 s53, {sHEAD}, {131072 + OPT['hpad']}")
    a("s_mov_b32 s54, 0")
    a("v_mov_b32 v14, 0xff800000")
    a.label("L_fb1")
    a(f"buffer_load_dwordx4 {vr(KV[0],4)}, v{vL16}, {WS}, s53 offen sc1")
    a("s_waitcnt vmcnt(0)")
    qk(0, 0, "0")
    a("s_add_u32 s53, s53, 2048")
    a("s_add_u32 s54, s54, 1")
    a("s_nop 7"); a("s_nop 3")
    for i in range(8): a(f"v_max3_f32 v14, v{S[0]+2*i}, v{S[0]+2*i+1}, v14")
    a("s_cmp_lt_u32 s54, 64")
    a("s_cbranch_scc1 L_fb1")
    a("v_mov_b32 v1, v14")
    a("s_nop 1")
    a("v_permlane32_swap_b32 v14, v1")
    a("s_nop 1")
    a("v_max_f32 v14, v14, v1")
    for i in range(16): a(f"v_sub_f32 v{S[1]+i}, 0, v14")
    for i in range(16): a(f"v_mov_b32 v{O[0]+i}, 0")
    a(f"s_mul_i32 s53, {sHEAD}, {131072 + OPT['hpad']}")
    a("s_mov_b32 s54, 0")
    a.label("L_fb2")
    a(f"buffer_load_dwordx4 {vr(KV[0],4)}, v{vL16}, {WS}, s53 offen sc1")
    a(f"s_mov_b64 exec, {VMASK}")
    a(f"buffer_load_dwordx4 {vr(KV[0]+4,4)}, v{vVO}, {WS}, s53 offen sc1")
    a(f"buffer_load_dwordx4 {vr(KV[0]+8,4)}, v{vVO}, {WS}, s53 offen offset:512 sc1")
    a("s_mov_b64 exec, -1")
    a("s_waitcnt vmcnt(0)")
    qk(0, 0, vr(S[1], 16))
    a("s_add_u32 s53, s53, 2048")
    a("s_add_u32 s54, s54, 1")
    a("s_nop 7"); a("s_nop 3")
    for i in range(16): ex(0, i)
    a("s_nop 1")
    pv0(0, 0); pv1(0, 0)
    a("s_cmp_lt_u32 s54, 64")
    a("s_cbranch_scc1 L_fb2")
    a("s_nop 7"); a("s_nop 7")
    a(f"v_rcp_f32 v14, v{O[0]+8}")
    a("s_nop 0")
    finish(False)
    a("s_branch L_fin")
    a.label("L_codeend")
    return f""".section .rodata,"a"
.p2align 6
.amdhsa_kernel {name}
  .amdhsa_next_free_vgpr 256
  .amdhsa_next_free_sgpr 100
  .amdhsa_accum_offset 256
  .amdhsa_group_segment_fixed_size 0
  .amdhsa_kernarg_size 48
  .amdhsa_user_sgpr_count 2
  .amdhsa_user_sgpr_kernarg_segment_ptr 1
  .amdhsa_system_sgpr_workgroup_id_x 1
.end_amdhsa_kernel
"""

if __name__ == "__main__":
    for kv in sys.argv[2:]:
        k, v = kv.split("="); assert k in OPT, k; OPT[k] = int(v)
    a = Asm()
    a.raw(HEADER.rstrip("\n"))
    a.raw('.amdgcn_target "amdgcn-amd-amdhsa--gfx950"')
    a.raw(".text")
    d = gen(a)
    open(sys.argv[1], "w").write(a.text() + d)
```

```python
import math, struct, sys

def f2u(x): return struct.unpack("<I", struct.pack("<f", x))[0]
CSCALE = 0.25 * math.log2(math.e)
O_OFF = 5 << 20
FKV_OFF = 7 << 20
FO_OFF = (7 << 20) + (256 << 10)
WB = 65536
R3 = 131072
SPIN_MAX = 1 << 16
OPT = dict(ppos=0, cpos=16, ksc=0, fsc=0, psc=0, hpad=0, wrot=1, rotm=2, qmap=0, opre2=0, osc=0, one=0, sched=0, ipf=1, qpf=1, stamp=0, drop=6, fstep=5, order=0)

class Asm:
    def __init__(self): self.l = []
    def __call__(self, s, c=None): self.l.append("    " + s + (" " * max(1, 74 - len(s)) + "; " + c if c else ""))
    def label(self, s): self.l.append(s + ":")
    def raw(self, s): self.l.append(s)
    def c(self, s):
        for t in s.split("\n"): self.l.append("    ; " + t)
    def text(self): return "\n".join(self.l) + "\n"
def vr(a, n): return f"v[{a}:{a+n-1}]"

vST_RT, vST_CY = 252, 253
STAMPS = {1: None, 3: (7, 11), 4: (7, 15, 8, 9, 21, 10, 17, 11), 5: (3, 24, 5, 22, 23, 19, 7, 11), 7: (2, 3, 5, 7, 11), 8: (12, 13, 20, 1, 2, 3, 11), 6: (12, 2, 25, 26, 27, 28, 29, 30, 31, 3, 11)}
def stamp(a, i):
    m = OPT["stamp"]
    if not m or (STAMPS[m] is not None and i not in STAMPS[m] and i != OPT['one']): return False
    a("s_memrealtime s[80:81]"); a("s_memtime s[82:83]"); a("s_waitcnt lgkmcnt(0)")
    a(f"v_writelane_b32 v{vST_RT}, s80, {i}"); a(f"v_writelane_b32 v{vST_CY}, s82, {i}")
    return True
def stamp_out(a):
    a(f"s_add_u32 s76, s20, {hex(16<<20)}"); a("s_addc_u32 s77, s21, 0"); a("s_mov_b32 s78, 0x100000"); a("s_mov_b32 s79, 0x00020000")
    a("s_lshl_b32 s80, s2, 3"); a("s_add_u32 s80, s80, s42"); a("s_lshl_b32 s80, s80, 8")
    a("v_lshlrev_b32 v1, 2, v0"); a("s_mov_b32 exec_hi, 0")
    a(f"buffer_store_dword v{vST_RT}, v1, s[76:79], s80 offen"); a(f"buffer_store_dword v{vST_CY}, v1, s[76:79], s80 offen offset:128")

X, W, WS, WO, OUT, DBG, KS = "s[12:15]", "s[16:19]", "s[20:23]", "s[24:27]", "s[28:31]", "s[32:35]", "s[76:79]"
sQUAD, sRB, sWAVE, sHD, sTT, sSLOT = "s40", "s41", "s42", "s43", "s44", "s45"
NONCE, VMASK = "s[46:47]", "s[48:49]"
sKVOWN, sKVH, sW1K, sHEAD, sQT, sOOWN, sOQ, sCB, sOST, sPOLL = "s50", "s51", "s52", "s56", "s57", "s58", "s60", "s61", "s62", "s63"
def sXT(p): return f"s{84+p}"
def sWT(p): return f"s{92+p}"
vL16, vIDX, vXD, vWD, vXR0, vXR1, vWR, vVO = 2, 3, 4, 5, 6, 7, 8, 9
AK, AV, AQ = 16, 24, 32
FW = [[40, 44, 48, 52], [32, 36, 104, 108]]
KV = [56, 68, 80, 92]
QA, QB = 104, 108
XF = 112
O = [112, 128]; S = [144, 160]
vWO, vPOLL, vPD, vKPOS, vKG, vVG, vWQ, vT, vWR4 = 240, 242, 244, 246, 247, 248, 249, 250, 254
vA = [[16, 17], [18, 19]]; vBO, vSTO, vOWN, vFL = 20, 21, 22, 23

HEADER = """; Multi-head attention block (B=1, S=2048, D=512, H=32, Dh=16) in ONE launch:
;   qkv = x @ wqkv ; o = softmax(q k^T / 4) v ; out = o @ wo
; Kernarg: x(0) wqkv(8) wo(16) out(24) debug(32) ws(40).  Generated by gen/gen_final.py.
; @launch grid=(256,1,1) block=(512,1,1) lds=163840
;
; Workgroup (quad, rb) = 4 heads x 64 tokens, one per CU; wave = (head hd of the quad, half tt).
;           K/V tiles go to the workspace in MFMA-fragment order (write-through), then a flag.
;           pick the high (bf16) half of the raw fp32 P registers, with two all-ones rows appended to V^T.
"""

SC = ['sc1', 'sc0 sc1', 'sc1 nt']
def gen(a):
    name = "standalone__mha_block__prompt_kernel"
    a.raw(f".globl {name}"); a.raw(".p2align 8"); a.raw(f".type {name},@function"); a.label(name)
    a("s_cmp_ge_u32 s2, 256")
    a("s_cbranch_scc1 L_end", "workgroups past the grid leave at once")
    for d, off in ((12, 0), (16, 8), (32, 32), (20, 40), (24, 16), (28, 24)):
        a(f"s_load_dwordx2 s[{d}:{d+1}], s[0:1], {off}")
    a(f"s_memrealtime {NONCE}")
    if OPT["stamp"]: a("s_memtime s[82:83]")
    a.c("pull the rest of this kernel's code towards the L2 while the arguments are on their way")
    a("s_getpc_b64 s[76:77]")
    a.label("L_pc")
    a(f"v_lshlrev_b32 v1, {6 if OPT['ipf'] > 1 else 7}, v0")
    a(f"v_cmp_gt_u32 vcc, (L_codeend-L_pc)/{64 if OPT['ipf'] > 1 else 128}, v0")
    a("s_and_saveexec_b64 s[78:79], vcc")
    a("s_cbranch_execz L_noipf")
    if OPT["ipf"]: a(f"global_load_dword v{vT+1}, v1, s[76:77]")
    a.label("L_noipf")
    a("s_mov_b64 exec, -1")
    a("v_lshrrev_b32 v1, 6, v0")
    a("v_and_b32 v0, 63, v0", "v0 = lane")
    a(f"v_readfirstlane_b32 {sWAVE}, v1")
    a.c("quad = (wg&3)*2 + ((wg>>3)&1), rb = ((wg>>2)&1)*16 + (wg>>4): two quads per XCD under round-robin placement (speed only)")
    if OPT["qmap"] == 0:
        a("s_and_b32 s54, s2, 3")
        a("s_lshl_b32 s54, s54, 1")
        a("s_bfe_u32 s55, s2, 0x10003")
    elif OPT["qmap"] == 1:
        a("s_and_b32 s54, s2, 3")
        a("s_bfe_u32 s55, s2, 0x10003")
        a("s_lshl_b32 s55, s55, 2")
    else:
        a("s_and_b32 s54, s2, 3")
        a("s_mul_i32 s54, s54, 5")
        a("s_and_b32 s54, s54, 5")
        a("s_and_b32 s54, s2, 1")
        a("s_bfe_u32 s55, s2, 0x10001")
        a("s_lshl_b32 s55, s55, 2")
        a("s_add_u32 s54, s54, s55")
        a("s_bfe_u32 s55, s2, 0x10003")
        a("s_lshl_b32 s55, s55, 1")
    a(f"s_add_u32 {sQUAD}, s54, s55")
    a("s_bfe_u32 s54, s2, 0x10002")
    a("s_lshl_b32 s54, s54, 4")
    a("s_lshr_b32 s55, s2, 4")
    a(f"s_add_u32 {sRB}, s54, s55")
    a(f"s_and_b32 {sHD}, {sWAVE}, 3")
    a(f"s_lshr_b32 {sTT}, {sWAVE}, 2")
    a(f"s_lshl_b32 {sW1K}, {sWAVE}, 10")
    a(f"v_lshlrev_b32 v{vL16}, 4, v0")
    a.c("x DMA source: row 8w + l/8 of the block, 16-byte piece (l%8) ^ ((row>>1)&7)  (bank swizzle)")
    a("v_lshrrev_b32 v10, 3, v0")
    a("v_and_b32 v11, 7, v0")
    a("v_lshrrev_b32 v12, 4, v0")
    a(f"s_and_b32 s53, {sWAVE}, 1")
    a("s_lshl_b32 s54, s53, 2")
    a("v_xor_b32 v13, v11, v12")
    a("v_xor_b32 v13, s54, v13")
    a(f"s_lshl_b32 s55, {sWAVE}, 3")
    a("v_add_u32 v10, s55, v10")
    a(f"s_lshl_b32 s55, {sRB}, 16")
    a("v_lshlrev_b32 v14, 10, v10")
    a("v_lshl_add_u32 v14, v13, 4, v14")
    a(f"v_add_u32 v{vXD}, s55, v14")
    a.c("W DMA source: k row 8w + l/8, the quad's 128-byte line, 32-byte slot ^ (((row>>1)&1) | ((row>>3)&1)<<1)")
    a("v_and_b32 v12, 1, v12")
    a("v_lshlrev_b32 v12, 1, v12")
    a("v_xor_b32 v13, v11, v12")
    a("v_xor_b32 v13, s54, v13")
    a("v_mul_u32_u24 v14, 3072, v10")
    a("v_lshl_add_u32 v14, v13, 4, v14")
    a(f"s_lshl_b32 s55, {sQUAD}, 7")
    a(f"v_add_u32 v{vWD}, s55, v14")
    a.c("the 64-deep k chunks are walked in an order rotated per workgroup, so every line is requested early by someone")
    if OPT["rotm"] == 2: a(f"s_add_u32 s53, {sQUAD}, {sRB}")
    elif OPT["rotm"] == 1:
        a(f"s_lshl_b32 s53, {sQUAD}, 2"); a(f"s_add_u32 s53, s53, {sRB}"); a(f"s_lshr_b32 s54, {sQUAD}, 1"); a("s_add_u32 s53, s53, s54")
    elif OPT["rotm"] == 3:
        a(f"s_mul_i32 s53, {sQUAD}, 3"); a(f"s_add_u32 s53, s53, {sRB}")
    elif OPT["rotm"] == 4:
        a(f"s_lshl_b32 s53, {sQUAD}, 1"); a(f"s_add_u32 s53, s53, {sRB}"); a(f"s_lshr_b32 s54, {sQUAD}, 2"); a("s_add_u32 s53, s53, s54")
    for p in range(8):
        a("s_and_b32 s53, s53, 7")
        a(f"s_lshl_b32 {sXT(p)}, s53, 7")
        a(f"s_mul_i32 {sWT(p)}, s53, 196608")
        if p < 7: a("s_add_u32 s53, s53, 1")
    a("v_and_b32 v12, 31, v0")
    a(f"s_lshl_b32 s53, {sRB}, 5")
    a("s_and_b32 s53, s53, 511")
    a("v_add_u32 v12, s53, v12")
    a("v_mul_u32_u24 v15, 3072, v12", "this workgroup's share of the Wq lines (L2 prefetch)")
    if OPT["qpf"] > 1:
        a("v_lshrrev_b32 v12, 5, v0")
        a("v_lshl_add_u32 v15, v12, 6, v15", "this workgroup's share of the Wq lines, both halves (L2 prefetch)")
    for d, size in ((12, 2048*1024), (16, 512*3072), (32, 256), (20, 8 << 20), (24, 512*1024), (28, 2048*1024)):
        a(f"s_mov_b32 s{d+2}, {hex(size)}")
        a(f"s_mov_b32 s{d+3}, 0x00020000")
    a(f"s_mov_b32 m0, {sW1K}")
    a("s_waitcnt lgkmcnt(0)")
    if OPT["stamp"]:
        a(f"v_writelane_b32 v{vST_RT}, s46, 0"); a(f"v_writelane_b32 v{vST_CY}, s82, 0")
    stamp(a, 12)
    issued = []
    def dma_x(p, m0=True):
        if m0:
            a(f"s_add_u32 m0, {sW1K}, {p*8192}"); a("s_nop 0")
        a(f"buffer_load_dwordx4 v{vXD}, {X}, {sXT(p)} offen lds"); issued.append(("x", p))
    def dma_w(t, p, dest, tag):
        a(f"s_add_u32 m0, {sW1K}, {dest - t*1024}")
        a("s_nop 0")
        a(f"buffer_load_dwordx4 v{vWD}, {W}, {sWT(p)} offen offset:{t*1024} lds"); issued.append(tag)
    def dma_kv(p):
        dma_w(1, p, WB + (p%5)*16384, ("kv", p)); dma_w(2, p, WB + (p%5)*16384 + 8192, ("kv", p))
    QDEST = [0, 8192, 16384, 24576, 32768, WB + 3*16384, WB + 3*16384 + 8192, 40960]
    dma_x(0, False); dma_kv(0)
    a.c("launch nonce: workgroup 0, wave 0 publishes its clock reading")
    a("s_or_b32 s46, s46, 1")
    a(f"s_or_b32 s53, s2, {sWAVE}")
    a("s_cbranch_scc1 L_nonon")
    a("v_mov_b32 v10, s46"); a("v_mov_b32 v11, s47")
    a("s_mov_b64 exec, 1")
    a(f"buffer_store_dwordx2 v[10:11], off, {DBG}, 0 sc1")
    a("s_mov_b64 exec, -1")
    a.label("L_nonon")
    a(f"s_cmp_lg_u32 {sWAVE}, 7")
    a("s_cbranch_scc1 L_noqpf")
    if OPT["qpf"]: a(f"buffer_load_dword v{vT}, v15, {W}, s55 offen")
    a.label("L_noqpf")
    if OPT["order"] == 0:
        for p in range(1, 4): dma_x(p)
    elif OPT["order"] == 3:
        dma_x(1)
    stamp(a, 13)
    a.c("scalar offsets")
    a(f"s_lshl_b32 {sSLOT}, {sWAVE}, 12")
    a(f"s_add_u32 {sSLOT}, {sSLOT}, {R3}")
    a(f"s_lshl_b32 s53, {sQUAD}, 2")
    a(f"s_add_u32 {sHEAD}, s53, {sHD}")
    a(f"s_mul_i32 s53, {sHEAD}, {131072 + OPT['hpad']}")
    a(f"s_lshl_b32 s54, {sTT}, 11")
    a(f"s_add_u32 {sKVH}, s53, s54", "K/V stream of this wave: head*128K + tt*2K (+ 4K per 64 tokens)")
    a(f"s_lshl_b32 s64, {sRB}, 12")
    a(f"s_add_u32 {sKVOWN}, {sKVH}, s64")
    a(f"s_lshl_b32 s53, {sRB}, 1")
    a(f"s_add_u32 {sQT}, s53, {sTT}")
    a(f"s_lshl_b32 s53, {sQT}, 15")
    a(f"s_lshl_b32 s54, {sHEAD}, 10")
    a(f"s_add_u32 {sOOWN}, s53, s54")
    a(f"s_add_u32 {sOOWN}, {sOOWN}, {hex(O_OFF)}", "own O fragment")
    a(f"s_lshl_b32 {sPOLL}, {sQUAD}, 10")
    a(f"s_add_u32 {sPOLL}, {sPOLL}, {hex(FKV_OFF)}", "this quad's K/V flags: 32 entries, 32 bytes apart")
    a("v_and_b32 v12, 31, v0")
    a(f"v_lshlrev_b32 v{vPOLL}, 5, v12")
    a(f"s_lshr_b32 s53, {sQUAD}, 2")
    a(f"s_lshl_b32 s54, {sRB}, 1")
    a(f"s_add_u32 {sOQ}, s53, s54", "output tile: tokens of q-tile 2rb + quad/4, columns 128*((quad+rb)%4)")
    if OPT["wrot"]:
        a(f"s_add_u32 {sCB}, {sQUAD}, {sRB}")
        a(f"s_and_b32 {sCB}, {sCB}, 3")
    else:
        a(f"s_and_b32 {sCB}, {sQUAD}, 3")
    a(f"s_lshl_b32 {sCB}, {sCB}, 8")
    a(f"s_lshl_b32 s53, {sOQ}, 15")
    a(f"s_add_u32 {sOST}, s53, {sCB}")
    a(f"s_lshl_b32 s53, {sHD}, 6")
    a(f"s_add_u32 {sOST}, {sOST}, s53")
    a(f"s_lshl_b32 s53, {sTT}, 14")
    a(f"s_add_u32 {sOST}, {sOST}, s53")
    a.c("O flags: one 128-byte line per (writer, reader) pair of the eight workgroups of a row block")
    a(f"s_lshl_b32 s53, {sRB}, 3")
    a(f"s_add_u32 s54, s53, {sQUAD}")
    a("s_lshl_b32 s54, s54, 10")
    a(f"s_add_u32 s74, s54, {hex(FO_OFF)}")
    a(f"s_add_u32 s75, s53, {sWAVE}")
    a("s_lshl_b32 s75, s75, 10")
    a(f"s_lshl_b32 s54, {sQUAD}, 7")
    a("s_add_u32 s75, s75, s54")
    a(f"s_add_u32 s75, s75, {hex(FO_OFF)}")
    a(f"s_lshl_b32 s65, {sRB}, 13")
    a("s_and_b32 s65, s65, 0x1ffff")
    a("s_lshl_b32 s66, s65, 2")
    if OPT["order"] == 2:
        for p in range(1, 4): dma_x(p)
    if OPT["order"] == 3:
        dma_kv(1); dma_x(2); dma_x(3)
    a.c("LDS read addresses: x fragments (two k steps), W fragments (transposing reads)")
    a("v_and_b32 v10, 15, v0")
    a("v_lshrrev_b32 v11, 4, v0")
    a("v_bfe_u32 v12, v0, 1, 3")
    a("v_xor_b32 v12, v11, v12")
    a(f"s_lshl_b32 s53, {sTT}, 12")
    a("v_lshlrev_b32 v13, 7, v10")
    a("v_add_u32 v13, s53, v13")
    a(f"v_lshl_add_u32 v{vXR0}, v12, 4, v13")
    a(f"v_xor_b32 v{vXR1}, 64, v{vXR0}")
    a("v_bfe_u32 v12, v0, 2, 2")
    a("v_lshl_add_u32 v13, v11, 3, v12")
    a("v_lshlrev_b32 v13, 7, v13")
    a("v_bfe_u32 v14, v0, 3, 2")
    a(f"v_xor_b32 v14, {sHD}, v14")
    a("v_lshl_add_u32 v13, v14, 5, v13")
    a("v_and_b32 v14, 3, v0")
    a(f"v_lshl_add_u32 v{vWQ}, v14, 3, v13")
    a(f"v_add_u32 v{vWR}, {WB}, v{vWQ}")
    a(f"v_add_u32 v{vWR4}, {R3}, v{vWQ}")
    a.c("K/V tile = 1 KB K fragment (lane-linear) + 1 KB V^T fragments (4 x 16 lanes x 16 B)")
    a("v_lshrrev_b32 v12, 5, v0")
    a("v_lshlrev_b32 v12, 8, v12")
    a("v_lshl_add_u32 v12, v10, 4, v12")
    a(f"v_add_u32 v{vVO}, 1024, v12")
    a(f"v_add_u32 v{vKG}, {sKVH}, v{vL16}")
    a(f"v_add_u32 v{vVG}, {sKVH}, v{vVO}")
    a("v_and_b32 v12, 0x23, v0")
    a("v_bfe_u32 v13, v0, 2, 2")
    a("v_lshl_add_u32 v12, v13, 3, v12")
    a("v_bfe_u32 v13, v0, 4, 1")
    a("v_lshl_add_u32 v12, v13, 2, v12")
    a(f"v_lshlrev_b32 v{vKPOS}, 4, v12", "K rows are stored in the key order of the V^T fragments")
    a.c("Wo DMA source: row 4w + l/16, 32-byte slot ^ (row&7)")
    a(f"s_lshl_b32 s53, {sWAVE}, 2")
    a("v_add_u32 v12, s53, v11")
    a("v_and_b32 v13, 7, v12")
    a("v_lshlrev_b32 v13, 1, v13")
    a("v_xor_b32 v13, v10, v13")
    a("v_lshlrev_b32 v14, 10, v12")
    a("v_lshl_add_u32 v14, v13, 4, v14")
    a(f"v_add_u32 v{vWO}, {sCB}, v14")
    a(f"v_mov_b32 v{vIDX}, 0xdddddddd", "sparse index: elements 1 and 3 of every 4 = high halves of two fp32")
    a("s_mov_b32 s48, 0xffff"); a("s_mov_b32 s49, 0xffff", "lanes that carry V^T rows 0..15")
    a("v_and_b32 v12, 27, v0")
    a("v_cmp_eq_u32 vcc, 16, v12")
    a("v_mov_b32 v15, 0x3f803f80")
    a("s_nop 0")
    a.c("rows 16 and 20 of the V^T operand are ones (row sums), the other spare rows zero")
    for j in range(4):
        for i in range(8): a(f"v_cndmask_b32 v{KV[j]+4+i}, 0, v15, vcc")
    stamp(a, 20)
    if OPT["order"] == 1:
        dma_x(1); dma_kv(1); dma_x(2); dma_x(3); dma_kv(2)
    elif OPT["order"] == 3:
        dma_kv(2)
    else:
        dma_kv(1); dma_kv(2)
    stamp(a, 1)

    def waitvm(pred):
        last = max(i for i, t in enumerate(issued) if pred(t))
        a(f"s_waitcnt vmcnt({len(issued) - 1 - last})")
    def xf(p, s): return XF + 8*(2*p + s)
    def rd_w(base, off, r):
        a(f"ds_read_b64_tr_b16 {vr(r,2)}, v{base} offset:{off}")
        a(f"ds_read_b64_tr_b16 {vr(r+2,2)}, v{base} offset:{off + 512}")
    def readsA(p):
        fw = FW[p % 2]
        for s in range(2):
            b = vXR0 if s == 0 else vXR1; f = xf(p, s)
            a(f"ds_read_b128 {vr(f,4)}, v{b} offset:{p*8192}")
            a(f"ds_read_b128 {vr(f+4,4)}, v{b} offset:{p*8192+2048}")
            wb, wo = (vWR, (p%5)*16384) if p % 5 < 4 else (vWR4, 0)
            rd_w(wb, wo + s*4096, fw[2*s]); rd_w(wb, wo + 8192 + s*4096, fw[2*s+1])
    def mfmaA(p, s):
        f = xf(p, s); wk, wv = FW[p % 2][2*s], FW[p % 2][2*s+1]
        def c(r): return "0" if p == 0 and s == 0 else vr(r, 4)
        a(f"v_mfma_f32_16x16x32_bf16 {vr(AK,4)}, {vr(wk,4)}, {vr(f,4)}, {c(AK)}")
        a(f"v_mfma_f32_16x16x32_bf16 {vr(AK+4,4)}, {vr(wk,4)}, {vr(f+4,4)}, {c(AK+4)}")
        a(f"v_mfma_f32_16x16x32_bf16 {vr(AV,4)}, {vr(f,4)}, {vr(wv,4)}, {c(AV)}")
        a(f"v_mfma_f32_16x16x32_bf16 {vr(AV+4,4)}, {vr(f+4,4)}, {vr(wv,4)}, {c(AV+4)}")
    def grab(fn):
        n0 = len(a.l); fn(); out = a.l[n0:]; del a.l[n0:]; return out
    a.c("---- K, V.  Step p: chunk p has landed -> read its fragments, request later chunks, multiply chunk p-1.\n"
        "     A ring slot / x slot is refilled two barriers after its last reader issued (covered by lgkmcnt(0) in between).")
    QSCHED = {5: [0, 1, 2], 6: [3, 4, 5], 7: [6, 7]}
    for p in range(8):
        waitvm(lambda t: t[1] == p and t[0] in ("x", "kv"))
        a("s_barrier")
        if p == 0: stamp(a, 2)
        elif OPT["stamp"] == 6: stamp(a, 24 + p)
        if p >= 1: a("s_waitcnt lgkmcnt(0)")
        rd = grab(lambda: readsA(p))
        mf = grab(lambda: (mfmaA(p-1, 0), mfmaA(p-1, 1))) if p >= 1 else []
        dm = []
        if p + 3 < 8:
            kvl = grab(lambda: dma_kv(p + 3)); dm += [kvl[:3], kvl[3:]]
        if p + 4 < 8: dm.append(grab(lambda: dma_x(p + 4)))
        for j in QSCHED.get(p, []): dm.append(grab(lambda: dma_w(0, j, QDEST[j], ("q", j))))
        k = 0
        sc = OPT["sched"]
        if sc == 0:
            for i in range(12):
                a.l.append(rd[i])
                while k < len(mf) and k < (i + 1) * 8 // 12:
                    a.l.append(mf[k]); k += 1
                if i % 4 == 3 and i // 4 < len(dm): a.l += dm[i // 4]
        elif sc == 1:
            for i in range(12):
                if k < len(mf) and k <= i * 8 // 12:
                    a.l.append(mf[k]); k += 1
                d = dm[i // 4] if i % 4 == 2 and i // 4 < len(dm) else None
                if d: a.l.append(d[0])
                a.l.append(rd[i])
                if d: a.l.append(d[2])
            a.l += mf[k:]
        elif sc == 2:
            for d in dm: a.l += d
            for i in range(12):
                if k < len(mf) and k <= i * 8 // 12:
                    a.l.append(mf[k]); k += 1
                a.l.append(rd[i])
            a.l += mf[k:]
        elif sc == 3:
            a.l += mf[:1] + rd[:6] + mf[1:2] + rd[6:]
            rest = mf[2:]
            for i, d in enumerate(dm):
                a.l.append(d[0]); a.l += rest[2*i:2*i+1] or ["    s_nop 0"]; a.l.append(d[2]); a.l += rest[2*i+1:2*i+2]
            a.l += rest[2*len(dm):]
        assert len(dm) <= 3
        if p == 2:
            a(f"s_cmp_lg_u32 {sWAVE}, 0")
            a("s_cbranch_scc1 L_nf1")
            a(f"buffer_load_dwordx2 {vr(vPD,2)}, off, {DBG}, 0 sc1", "fetch the nonce")
            a.label("L_nf1")
    a("s_waitcnt lgkmcnt(6)")
    mfmaA(7, 0)
    a("s_waitcnt lgkmcnt(0)")
    mfmaA(7, 1)
    stamp(a, 3)
    a.c("---- publish K/V (write-through) and keep a copy of the own tile through this wave's LDS slot")
    F = 40
    a(f"v_add_u32 v10, {sSLOT}, v{vKPOS}")
    a(f"v_add_u32 v11, {sSLOT}, v{vL16}")
    a(f"v_add_u32 v12, {sSLOT}, v{vVO}")
    a("s_nop 4")
    for i in range(4): a(f"v_cvt_pk_bf16_f32 v{F+i}, v{AK+2*i}, v{AK+2*i+1}")
    for i in range(4): a(f"v_cvt_pk_bf16_f32 v{F+4+i}, v{AV+2*i}, v{AV+2*i+1}")
    a(f"v_permlane16_swap_b32 v{F}, v{F+2}")
    a(f"v_permlane16_swap_b32 v{F+1}, v{F+3}")
    a(f"buffer_store_dwordx4 {vr(F+4,4)}, v{vL16}, {WS}, {sKVOWN} offen offset:1024 " + SC[OPT["ksc"]])
    a(f"buffer_store_dwordx4 {vr(F,4)}, v{vKPOS}, {WS}, {sKVOWN} offen " + SC[OPT["ksc"]])
    a(f"ds_write_b128 v11, {vr(F+4,4)} offset:1024")
    a(f"ds_write_b128 v10, {vr(F,4)}")
    a("s_waitcnt lgkmcnt(0)")
    a(f"ds_read_b128 {vr(KV[0],4)}, v11")
    a(f"s_mov_b64 exec, {VMASK}")
    a(f"ds_read_b128 {vr(KV[0]+4,4)}, v12")
    a(f"ds_read_b128 {vr(KV[0]+8,4)}, v12 offset:512")
    a("s_mov_b64 exec, -1")
    a("s_waitcnt vmcnt(7)", "Wq chunks 0..2 (and the nonce)")
    a(f"s_cmp_lg_u32 {sWAVE}, 0")
    a("s_cbranch_scc1 L_nf2")
    a(f"s_mov_b32 s53, {SPIN_MAX}")
    a.label("L_nspin")
    a(f"v_readfirstlane_b32 s54, v{vPD}")
    a("s_sub_u32 s53, s53, 1")
    a("s_cbranch_scc1 L_ngot")
    a("s_cmp_lg_u32 s54, 0")
    a("s_cbranch_scc1 L_ngot")
    a("s_sleep 2")
    a(f"buffer_load_dwordx2 {vr(vPD,2)}, off, {DBG}, 0 sc1")
    a("s_waitcnt vmcnt(0)")
    a("s_branch L_nspin")
    a.label("L_ngot")
    a(f"v_mov_b32 v10, {R3 + 2816}")
    a(f"ds_write_b64 v10, {vr(vPD,2)}")
    a.label("L_nf2")
    a("s_waitcnt lgkmcnt(0)")
    a("s_barrier")
    stamp(a, 14)
    a(f"v_mov_b32 v10, {R3 + 2816}")
    a(f"ds_read_b64 {vr(vPD,2)}, v10")
    a.c("---- Q (the x fragments are still in registers)")
    BS = [48, 52, 16, 20, 24, 28, 40, 44]
    lgq = ["n"]
    def readsB(st):
        p, s = divmod(st, 2); d = QDEST[p]
        if d < WB: rd_w(vWQ, d + s*4096, BS[st % 8])
        else: rd_w(vWR, d - WB + s*4096, BS[st % 8])
        lgq.extend([st, st])
    FS = OPT["fstep"]; nxt = 0
    a(f"s_lshl_b32 s54, {sRB}, 5")
    a(f"s_add_u32 s53, {sPOLL}, s54")
    for st in range(16):
        if st == FS:
            a("s_waitcnt vmcnt(0)")
            if stamp(a, 18): del lgq[:]
            a("s_barrier", "every wave's K/V is written through, all of Wq has landed")
            a(f"s_cmp_lg_u32 {sWAVE}, 0")
            a("s_cbranch_scc1 L_nflag")
            a("s_mov_b64 exec, 1")
            a(f"buffer_store_dwordx2 {vr(vPD,2)}, off, {WS}, s53 " + SC[OPT["fsc"]], "K/V flag of this workgroup")
            a("s_mov_b64 exec, -1")
            a.label("L_nflag")
            if stamp(a, 24): del lgq[:]
        while nxt < min(6 if st < FS else 16, st + 6):
            readsB(nxt); nxt += 1
        if st in lgq:
            last = max(i for i, t in enumerate(lgq) if t == st)
            a(f"s_waitcnt lgkmcnt({len(lgq) - 1 - last})"); del lgq[:last + 1]
        if st == 0:
            a(f"v_readfirstlane_b32 s46, v{vPD}")
            a(f"v_readfirstlane_b32 s47, v{vPD+1}")
        f = XF + 8*st; w = BS[st % 8]
        c0, c1 = ("0", "0") if st == 0 else (vr(AQ,4), vr(AQ+4,4))
        a(f"v_mfma_f32_16x16x32_bf16 {vr(AQ,4)}, {vr(w,4)}, {vr(f,4)}, {c0}")
        a(f"v_mfma_f32_16x16x32_bf16 {vr(AQ+4,4)}, {vr(w,4)}, {vr(f+4,4)}, {c1}")
        if st == 2:
            for i in range(4): a(f"v_mov_b32 v{12+i}, 0")
        if st == 3:
            a(f"v_mfma_f32_32x32x16_bf16 {vr(O[0],16)}, v[12:15], v[12:15], 0", "clear the O accumulators")
            a(f"v_mfma_f32_32x32x16_bf16 {vr(O[1],16)}, v[12:15], v[12:15], 0")
    if OPT["ppos"] == 1: a(f"buffer_load_dwordx2 {vr(vT,2)}, v{vPOLL}, {WS}, {sPOLL} offen sc1")
    a(f"s_xor_b32 s53, {sSLOT}, 16384")
    a(f"s_mov_b32 s54, {hex(f2u(CSCALE))}", "log2(e)/4 goes into Q")
    a(f"v_add_u32 v10, s53, v{vL16}")
    a("s_mov_b64 s[76:77], s[20:21]")
    a("s_mov_b32 s78, s22")
    a("s_mov_b32 s79, 0x00020000")
    a("s_mov_b32 s67, 8")
    a("s_nop 0")
    for i in range(0, 8, 2): a(f"v_pk_mul_f32 {vr(AQ+i,2)}, s[54:55], {vr(AQ+i,2)} op_sel_hi:[0,1]")
    for i in range(4): a(f"v_cvt_pk_bf16_f32 v{QA+i}, v{AQ+2*i}, v{AQ+2*i+1}")
    a("s_nop 1")
    a(f"v_permlane16_swap_b32 v{QA}, v{QA+2}")
    a(f"v_permlane16_swap_b32 v{QA+1}, v{QA+3}")
    a(f"ds_write_b128 v10, {vr(QA,4)} offset:3072", "the partner wave needs this Q tile too")
    def qk(j, q, c="0.15915494"): a(f"v_mfma_f32_32x32x16_bf16 {vr(S[q],16)}, {vr(KV[j],4)}, {vr(QA if q == 0 else QB,4)}, {c}")
    def pv0(j, q): a(f"v_smfmac_f32_32x32x32_bf16 {vr(O[q],16)}, {vr(KV[j]+4,4)}, {vr(S[q],8)}, v{vIDX}")
    def pv1(j, q): a(f"v_smfmac_f32_32x32x32_bf16 {vr(O[q],16)}, {vr(KV[j]+8,4)}, {vr(S[q]+8,8)}, v{vIDX}")
    def ex(q, i): a(f"v_exp_f32 v{S[q]+i}, v{S[q]+i}")
    def poll_kv(): a(f"buffer_load_dwordx2 {vr(vT,2)}, v{vPOLL}, {WS}, {sPOLL} offen sc1")
    a(f"s_mov_b32 s53, {SPIN_MAX}")
    a.c("the constant added to every score (1/2pi) cancels in the normalisation; it keeps exp2(0) off a bf16 step")
    qk(0, 0)
    stamp(a, 16)
    a("s_waitcnt lgkmcnt(0)")
    a("s_barrier")
    a(f"ds_read_b128 {vr(QB,4)}, v11 offset:3072")
    if OPT["ppos"] == 0: poll_kv()
    else: a("s_nop 0")
    stamp(a, 5)
    a("s_nop 7")
    a.c("---- attention on the own key tile while the other workgroups' flags arrive")
    ex(0, 0); ex(0, 1); ex(0, 2); ex(0, 3)
    a("s_waitcnt lgkmcnt(0)")
    qk(0, 1)
    CP = OPT["cpos"]
    def own(lo, hi):
        for i in range(lo, hi):
            if OPT["ppos"] >= 4 and i == OPT["ppos"]: poll_kv()
            if i == 11: pv0(0, 0)
            if i == 18: pv1(0, 0)
            if i == 27: pv0(0, 1)
            ex(i // 16, i % 16)
    own(4, CP)
    def unit01(): own(CP, 32)
    def ldK(j):
        a("s_add_u32 s64, s64, 4096"); a("s_and_b32 s64, s64, 0x1ffff")
        a(f"buffer_load_dwordx4 {vr(KV[j],4)}, v{vKG}, {KS}, s64 offen sc1")
    def ldV(j):
        a(f"s_mov_b64 exec, {VMASK}")
        a(f"buffer_load_dwordx4 {vr(KV[j]+4,4)}, v{vVG}, {KS}, s64 offen sc1")
        a(f"buffer_load_dwordx4 {vr(KV[j]+8,4)}, v{vVG}, {KS}, s64 offen offset:512 sc1")
        a("s_mov_b64 exec, -1")
    def first_loads():
        for j in (1, 2, 3): ldK(j); ldV(j)
    a("s_waitcnt vmcnt(0)")
    a(f"v_cmp_eq_u64 vcc, {NONCE}, {vr(vT,2)}")
    a("s_nop 1")
    a("s_cmp_eq_u64 vcc, -1")
    a("s_cbranch_scc0 L_late")
    stamp(a, 22); stamp(a, 23)
    first_loads()
    unit01()
    a("s_branch L_go")
    a.label("L_late")
    stamp(a, 22)
    poll_kv()
    unit01()
    a.label("L_kvspin")
    a("s_waitcnt vmcnt(0)")
    a(f"v_cmp_eq_u64 vcc, {NONCE}, {vr(vT,2)}")
    a("s_sub_u32 s53, s53, 1")
    a("s_cbranch_scc1 L_kvgo")
    a("s_cmp_eq_u64 vcc, -1")
    a("s_cbranch_scc1 L_kvgo")
    a("s_sleep 1")
    poll_kv()
    a("s_branch L_kvspin")
    a.label("L_kvgo")
    stamp(a, 23)
    first_loads()
    a.label("L_go")
    a.c("phase-3 addresses: wave = (32-column pair w&3, 16-token half w>>2)")
    a("v_lshrrev_b32 v12, 5, v0")
    a("v_bfe_u32 v13, v0, 2, 3")
    a("v_lshl_add_u32 v14, v12, 4, v13")
    a("v_lshlrev_b32 v14, 8, v14")
    a(f"s_lshl_b32 s54, {sHD}, 1")
    a("v_xor_b32 v13, s54, v13")
    a("v_lshl_add_u32 v14, v13, 5, v14")
    a("v_and_b32 v13, 3, v0")
    a(f"v_lshl_add_u32 v{vA[0][0]}, v13, 3, v14")
    a(f"v_add_u32 v{vA[0][1]}, 65536, v{vA[0][0]}")
    a(f"v_xor_b32 v{vA[1][0]}, 32, v{vA[0][0]}")
    a(f"v_xor_b32 v{vA[1][1]}, 32, v{vA[0][1]}")
    a("v_and_b32 v10, 15, v0")
    a("v_lshrrev_b32 v13, 4, v0")
    a("v_lshlrev_b32 v14, 9, v13")
    a("v_lshl_add_u32 v14, v10, 4, v14")
    a(f"s_lshl_b32 s54, {sTT}, 8")
    a(f"s_add_u32 s54, s54, {R3}")
    a(f"v_add_u32 v{vBO}, s54, v14")
    a("v_lshlrev_b32 v14, 10, v10")
    a("v_lshl_add_u32 v14, v12, 4, v14")
    a("v_and_b32 v13, 1, v13")
    a(f"v_lshl_add_u32 v{vSTO}, v13, 5, v14")
    a(f"s_lshl_b32 s53, {sQUAD}, 12")
    a(f"s_lshl_b32 s54, {sHD}, 10")
    a("s_add_u32 s53, s53, s54")
    a(f"s_add_u32 s53, s53, {R3}")
    a(f"v_add_u32 v{vOWN}, s53, v{vL16}")
    a(f"v_lshlrev_b32 v{vFL}, 7, v0")
    stamp(a, 6)
    a.c("the two waves of a SIMD take turns leading so that both stay runnable to the end")
    a(f"s_cmp_lg_u32 {sTT}, 1")
    a("s_cbranch_scc1 L_noprio")
    a("s_setprio 1")
    a.label("L_noprio")
    a("s_waitcnt vmcnt(6)")
    qk(1, 0)
    a("s_nop 7")
    a("s_nop 2")
    stamp(a, 19)
    a("s_branch L_loop1")
    a.raw(".p2align 6")
    a.c("---- 31 remote key tiles (entered at the second quarter), three tiles in flight")
    a.label("L_loop")
    for u in range(4):
        if u == 1:
            a.label("L_loop1")
            a(f"s_cmp_lg_u32 s67, {8 - OPT['drop']}")
            a("s_cbranch_scc1 L_nodrop")
            a("s_setprio 0")
            a(f"buffer_load_dwordx2 {vr(vT,2)}, off, {WS}, s75 sc1", "first touch of the O flag line")
            if OPT["opre2"] == 1: a(f"buffer_load_dword v{vT}, v{vL16}, {WS}, {sOOWN} offen sc1")
            if OPT["opre2"] == 2: a(f"buffer_store_dwordx4 {vr(QA,4)}, v{vL16}, {WS}, {sOOWN} offen sc1")
            a.label("L_nodrop")
            a("s_cmp_eq_u32 s67, 1")
            a("s_cselect_b32 s78, 0, s78", "the last three prefetches have no consumer: out of range")
        pj = (u - 1) % 4; nj = (u + 1) % 4
        for i in range(16):
            if i == 2: pv1(pj, 1)
            if i == 3: ldK(pj)
            if i == 5: qk(u, 1)
            if i == 7: ldV(pj)
            if i == 11: pv0(u, 0)
            ex(0, i)
        for i in range(16):
            if i == 2: pv1(u, 0)
            if i == 5:
                a("s_waitcnt vmcnt(6)"); qk(nj, 0)
            if i == 11: pv0(u, 1)
            ex(1, i)
    a("s_cmp_le_u32 s67, 4")
    a("s_cbranch_scc1 L_nowo")
    for i in range(4):
        a(f"s_add_u32 m0, s65, {sW1K}", "a quarter of this workgroup's Wo slice per pass" if i == 0 else None)
        a("s_add_u32 s65, s65, 8192")
        a(f"buffer_load_dwordx4 v{vWO}, {WO}, s66 offen lds")
        a("s_and_b32 s65, s65, 0x1ffff")
        a("s_lshl_b32 s66, s65, 2")
    a.label("L_nowo")
    a("s_sub_u32 s67, s67, 1")
    a("s_cmp_lg_u32 s67, 0")
    a("s_cbranch_scc1 L_loop")
    pv1(3, 1)
    stamp(a, 7)
    a.c("---- merge the two key halves: each wave keeps its own q-tile")
    a(f"s_xor_b32 s54, {sSLOT}, 16384")
    a("s_nop 2")
    a(f"v_add_u32 v10, s54, v{vL16}")
    a("v_lshlrev_b32 v14, 2, v0")
    a("v_add_u32 v13, s54, v14")
    a(f"v_add_u32 v14, {sSLOT}, v14")
    a(f"s_lshl_b32 s54, {sOQ}, 15")
    a(f"s_lshl_b32 s55, {sWAVE}, 12")
    a("s_add_u32 s54, s54, s55")
    a(f"s_add_u32 s64, s54, {hex(O_OFF)}")
    a(f"ds_write_b128 v10, {vr(O[1],4)}")
    a(f"ds_write_b128 v10, {vr(O[1]+4,4)} offset:1024")
    a(f"ds_write_b32 v13, v{O[1]+8} offset:2048")
    a("s_waitcnt vmcnt(0) lgkmcnt(0)")
    a("s_barrier", "(also: all of Wo is in LDS)")
    stamp(a, 15)
    a(f"ds_read_b32 v{S[0]+8}, v14 offset:2048")
    a(f"ds_read_b128 {vr(S[0],4)}, v11")
    a(f"ds_read_b128 {vr(S[0]+4,4)}, v11 offset:1024")
    a(f"v_mov_b32 v13, {hex(f2u(2.0**-20))}")
    a(f"v_mov_b32 v1, {hex(f2u(2.0**60))}")
    a("s_waitcnt lgkmcnt(2)")
    a(f"v_add_f32 v{O[0]+8}, v{O[0]+8}, v{S[0]+8}")
    a(f"v_rcp_f32 v14, v{O[0]+8}")
    a("s_waitcnt lgkmcnt(0)")
    PK = 40
    def finish(add):
        if add:
            for i in range(0, 8, 2): a(f"v_pk_add_f32 {vr(O[0]+i,2)}, {vr(O[0]+i,2)}, {vr(S[0]+i,2)}")
        for i in range(0, 8, 2): a(f"v_pk_mul_f32 {vr(S[0]+i,2)}, v[14:15], {vr(O[0]+i,2)} op_sel_hi:[0,1]")
        for i in range(4): a(f"v_cvt_pk_bf16_f32 v{PK+i}, v{S[0]+2*i}, v{S[0]+2*i+1}")
        a(f"buffer_store_dwordx4 {vr(PK,4)}, v{vL16}, {WS}, {sOOWN} offen " + ["sc1", "sc0 sc1", "sc1 nt"][OPT["osc"]])
    finish(True)
    a.c("unshifted exponentials are exact enough iff 2^-20 <= row sum <= 2^60 and every accumulator is finite;\n"
        "otherwise redo with the true row max (nothing is flagged before the next barrier)")
    a(f"v_cmp_ge_f32 s[68:69], v{O[0]+8}, v13")
    a(f"v_cmp_le_f32 s[70:71], v{O[0]+8}, v1")
    a(f"v_mul_f32 v14, 0, v{O[0]}")
    for i in range(1, 8): a(f"v_fma_f32 v14, v{O[0]+i}, 0, v14")
    a("v_cmp_o_f32 vcc, v14, v14")
    a("s_and_b64 s[68:69], s[68:69], s[70:71]")
    a("s_nop 1")
    a("s_and_b64 s[68:69], s[68:69], vcc")
    a("s_cmp_eq_u64 s[68:69], -1")
    a("s_cbranch_scc0 L_fallback")
    a.label("L_fin")
    def poll_f(): a(f"buffer_load_dwordx2 {vr(vT,2)}, off, {WS}, s75 sc1")
    WF = 112
    wo_list = [(i, s_) for s_ in range(15, -1, -1) for i in range(2)]
    def rdWo(n):
        for _ in range(n):
            i, s_ = wo_list.pop(0)
            b = vA[i][s_ // 8]; o = (s_ % 8) * 8192; r = WF + 64*i + 4*s_
            a(f"ds_read_b64_tr_b16 {vr(r,2)}, v{b} offset:{o}")
            a(f"ds_read_b64_tr_b16 {vr(r+2,2)}, v{b} offset:{o+2048}")
    a.c("---- hand O over; the Wo fragments move to registers meanwhile")
    rdWo(7)
    a("s_waitcnt lgkmcnt(2)")
    rdWo(6)
    a("s_waitcnt vmcnt(0)")
    a("s_barrier", "every wave's O fragment is written through")
    a(f"s_cmp_lg_u32 {sWAVE}, {sQUAD}")
    a("s_cbranch_scc1 L_noflag")
    a("s_mov_b64 exec, 0xff")
    a(f"buffer_store_dwordx2 {vr(vPD,2)}, v{vFL}, {WS}, s74 offen " + SC[OPT["fsc"]], "wave == quad has nothing to fetch: it flags")
    a("s_mov_b64 exec, -1")
    a("s_branch L_flagged")
    a.label("L_noflag")
    poll_f()
    a.label("L_flagged")
    stamp(a, 8)
    a(f"s_lshr_b32 s53, {sQUAD}, 2")
    a(f"s_cmp_lg_u32 s53, {sTT}")
    a("s_waitcnt lgkmcnt(0)")
    a("s_cbranch_scc1 L_noown")
    a(f"ds_write_b128 v{vOWN}, {vr(PK,4)}", "this workgroup's own heads go straight to their staging slot")
    a.label("L_noown")
    rdWo(7)
    a("s_waitcnt lgkmcnt(2)")
    rdWo(6)
    a(f"s_mov_b32 m0, {sSLOT}")
    a("s_waitcnt lgkmcnt(2)")
    rdWo(6)
    a(f"s_mov_b32 s53, {SPIN_MAX}")
    a(f"s_cmp_eq_u32 {sWAVE}, {sQUAD}")
    a("s_cbranch_scc1 L_oskip")
    a("s_branch L_ochk")
    a.label("L_ospin")
    poll_f()
    a.label("L_ochk")
    a("s_waitcnt vmcnt(0)")
    a(f"v_cmp_eq_u64 vcc, {NONCE}, {vr(vT,2)}")
    a("s_sub_u32 s53, s53, 1")
    a("s_cbranch_scc1 L_ogo")
    a("s_cmp_eq_u64 vcc, -1")
    a("s_cbranch_scc0 L_ospin")
    a.label("L_ogo")
    stamp(a, 9)
    for i in range(4):
        a(f"buffer_load_dwordx4 v{vL16}, {WS}, s64 offen offset:{i*1024} sc1 lds")
    a("s_waitcnt vmcnt(0)")
    stamp(a, 21)
    a.label("L_oskip")
    a("s_waitcnt lgkmcnt(0)")
    a("s_barrier")
    stamp(a, 10)
    a.c("---- output projection: 16 tokens x 32 columns per wave, two heads per step")
    ACC = 32; NB = 7
    def rd3(s_): a(f"ds_read_b128 {vr(44 + 4*(s_ % (NB+1)),4)}, v{vBO} offset:{s_*2048}")
    for s_ in range(NB): rd3(s_)
    for s_ in range(16):
        if s_ + NB < 16:
            rd3(s_ + NB); a(f"s_waitcnt lgkmcnt({NB})")
        else:
            a(f"s_waitcnt lgkmcnt({15 - s_})")
        f = 44 + 4*(s_ % (NB+1))
        for i in range(2):
            a(f"v_mfma_f32_16x16x32_bf16 {vr(ACC+4*i,4)}, {vr(WF+64*i+4*s_,4)}, {vr(f,4)}, " + ("0" if s_ == 0 else vr(ACC+4*i,4)))
    a("s_nop 7")
    for i in range(4): a(f"v_cvt_pk_bf16_f32 v{PK+i}, v{ACC+2*i}, v{ACC+2*i+1}")
    a("s_nop 1")
    a(f"v_permlane16_swap_b32 v{PK}, v{PK+2}")
    a(f"v_permlane16_swap_b32 v{PK+1}, v{PK+3}")
    a(f"buffer_store_dwordx4 {vr(PK,4)}, v{vSTO}, {OUT}, {sOST} offen nt")
    if OPT["stamp"]:
        stamp(a, 17)
        a("s_waitcnt vmcnt(0)")
        stamp(a, 11); stamp_out(a)
    a.label("L_end")
    a("s_endpgm")
    a.c("---- fallback (rare): exact row max over all keys, then this q-tile again with it subtracted")
    a.label("L_fallback")
    a(f"s_mul_i32 s53, {sHEAD}, {131072 + OPT['hpad']}")
    a("s_mov_b32 s54, 0")
    a("v_mov_b32 v14, 0xff800000")
    a.label("L_fb1")
    a(f"buffer_load_dwordx4 {vr(KV[0],4)}, v{vL16}, {WS}, s53 offen sc1")
    a("s_waitcnt vmcnt(0)")
    qk(0, 0, "0")
    a("s_add_u32 s53, s53, 2048")
    a("s_add_u32 s54, s54, 1")
    a("s_nop 7"); a("s_nop 3")
    for i in range(8): a(f"v_max3_f32 v14, v{S[0]+2*i}, v{S[0]+2*i+1}, v14")
    a("s_cmp_lt_u32 s54, 64")
    a("s_cbranch_scc1 L_fb1")
    a("v_mov_b32 v1, v14")
    a("s_nop 1")
    a("v_permlane32_swap_b32 v14, v1")
    a("s_nop 1")
    a("v_max_f32 v14, v14, v1")
    for i in range(16): a(f"v_sub_f32 v{S[1]+i}, 0, v14")
    for i in range(16): a(f"v_mov_b32 v{O[0]+i}, 0")
    a(f"s_mul_i32 s53, {sHEAD}, {131072 + OPT['hpad']}")
    a("s_mov_b32 s54, 0")
    a.label("L_fb2")
    a(f"buffer_load_dwordx4 {vr(KV[0],4)}, v{vL16}, {WS}, s53 offen sc1")
    a(f"s_mov_b64 exec, {VMASK}")
    a(f"buffer_load_dwordx4 {vr(KV[0]+4,4)}, v{vVO}, {WS}, s53 offen sc1")
    a(f"buffer_load_dwordx4 {vr(KV[0]+8,4)}, v{vVO}, {WS}, s53 offen offset:512 sc1")
    a("s_mov_b64 exec, -1")
    a("s_waitcnt vmcnt(0)")
    qk(0, 0, vr(S[1], 16))
    a("s_add_u32 s53, s53, 2048")
    a("s_add_u32 s54, s54, 1")
    a("s_nop 7"); a("s_nop 3")
    for i in range(16): ex(0, i)
    a("s_nop 1")
    pv0(0, 0); pv1(0, 0)
    a("s_cmp_lt_u32 s54, 64")
    a("s_cbranch_scc1 L_fb2")
    a("s_nop 7"); a("s_nop 7")
    a(f"v_rcp_f32 v14, v{O[0]+8}")
    a("s_nop 0")
    finish(False)
    a("s_branch L_fin")
    a.label("L_codeend")
    return f""".section .rodata,"a"
.p2align 6
.amdhsa_kernel {name}
  .amdhsa_next_free_vgpr 256
  .amdhsa_next_free_sgpr 100
  .amdhsa_accum_offset 256
  .amdhsa_group_segment_fixed_size 0
  .amdhsa_kernarg_size 48
  .amdhsa_user_sgpr_count 2
  .amdhsa_user_sgpr_kernarg_segment_ptr 1
  .amdhsa_system_sgpr_workgroup_id_x 1
.end_amdhsa_kernel
"""

def annotate(lines):
    def op(t): return t.split(";")[0].strip()
    out = list(lines)
    for i, t in enumerate(lines):
        o = op(t)
        if ";" in t or not o.startswith(("s_nop", "s_sleep")): continue
        prev = op(lines[i-1]); j = i + 1
        while op(lines[j]).startswith("s_nop") or not op(lines[j]) or op(lines[j]).endswith(":"): j += 1
        nxt = op(lines[j])
        if o.startswith("s_sleep"): c = "back off between polls"
        elif " m0," in prev: c = "wait state: M0 write -> LDS-DMA"
        elif nxt.startswith("v_permlane") or prev.startswith("v_permlane"): c = "wait states: VALU write <-> v_permlane"
        elif nxt.startswith(("s_cmp_eq_u64", "s_and_b64", "v_cndmask")): c = "wait states: VALU-written mask"
        elif prev.startswith("v_rcp"): c = "wait state: transcendental result"
        elif nxt.startswith("v_smfmac"): c = "wait states: VALU write -> MFMA operand"
        else: c = "wait states: MFMA result -> VALU / LDS read"
        out[i] = t + " " * max(1, 78 - len(t)) + "; " + c
    return out

if __name__ == "__main__":
    for kv in sys.argv[2:]:
        k, v = kv.split("="); assert k in OPT, k; OPT[k] = int(v)
    a = Asm()
    a.raw(HEADER.rstrip("\n"))
    a.raw('.amdgcn_target "amdgcn-amd-amdhsa--gfx950"')
    a.raw(".text")
    d = gen(a)
    a.l = annotate(a.l)
    open(sys.argv[1], "w").write(a.text() + d)
```

```python
import math, struct, sys

def f2u(x): return struct.unpack("<I", struct.pack("<f", x))[0]
CSCALE = 0.25 * math.log2(math.e)
O_OFF = 5 << 20
FKV_OFF = 7 << 20
FO_OFF = (7 << 20) + (256 << 10)
WB = 65536
R3 = 131072
SPIN_MAX = 1 << 16
OPT = dict(ppos=0, cpos=16, ksc=0, fsc=0, psc=0, hpad=0, wrot=1, rotm=2, qmap=0, opre2=0, osc=0, one=0, sched=0, ipf=1, qpf=1, stamp=0, drop=6, fstep=5, order=0)

class Asm:
    def __init__(self): self.l = []
    def __call__(self, s, c=None): self.l.append("    " + s + (" " * max(1, 74 - len(s)) + "; " + c if c else ""))
    def label(self, s): self.l.append(s + ":")
    def raw(self, s): self.l.append(s)
    def c(self, s):
        for t in s.split("\n"): self.l.append("    ; " + t)
    def text(self): return "\n".join(self.l) + "\n"
def vr(a, n): return f"v[{a}:{a+n-1}]"

vST_RT, vST_CY = 252, 253
STAMPS = {1: None, 3: (7, 11), 4: (7, 15, 8, 9, 21, 10, 17, 11), 5: (3, 24, 5, 22, 23, 19, 7, 11), 7: (2, 3, 5, 7, 11), 8: (12, 13, 20, 1, 2, 3, 11), 6: (12, 2, 25, 26, 27, 28, 29, 30, 31, 3, 11)}
def stamp(a, i):
    m = OPT["stamp"]
    if not m or (STAMPS[m] is not None and i not in STAMPS[m] and i != OPT['one']): return False
    a("s_memrealtime s[80:81]"); a("s_memtime s[82:83]"); a("s_waitcnt lgkmcnt(0)")
    a(f"v_writelane_b32 v{vST_RT}, s80, {i}"); a(f"v_writelane_b32 v{vST_CY}, s82, {i}")
    return True
def stamp_out(a):
    a(f"s_add_u32 s76, s20, {hex(16<<20)}"); a("s_addc_u32 s77, s21, 0"); a("s_mov_b32 s78, 0x100000"); a("s_mov_b32 s79, 0x00020000")
    a("s_lshl_b32 s80, s2, 3"); a("s_add_u32 s80, s80, s42"); a("s_lshl_b32 s80, s80, 8")
    a("v_lshlrev_b32 v1, 2, v0"); a("s_mov_b32 exec_hi, 0")
    a(f"buffer_store_dword v{vST_RT}, v1, s[76:79], s80 offen"); a(f"buffer_store_dword v{vST_CY}, v1, s[76:79], s80 offen offset:128")

X, W, WS, WO, OUT, DBG, KS = "s[12:15]", "s[16:19]", "s[20:23]", "s[24:27]", "s[28:31]", "s[32:35]", "s[76:79]"
sQUAD, sRB, sWAVE, sHD, sTT, sSLOT = "s40", "s41", "s42", "s43", "s44", "s45"
NONCE, VMASK = "s[46:47]", "s[48:49]"
sKVOWN, sKVH, sW1K, sHEAD, sQT, sOOWN, sOQ, sCB, sOST, sPOLL = "s50", "s51", "s52", "s56", "s57", "s58", "s60", "s61", "s62", "s63"
def sXT(p): return f"s{84+p}"
def sWT(p): return f"s{92+p}"
vL16, vIDX, vXD, vWD, vXR0, vXR1, vWR, vVO = 2, 3, 4, 5, 6, 7, 8, 9
AK, AV, AQ = 16, 24, 32
FW = [[40, 44, 48, 52], [32, 36, 104, 108]]
KV = [56, 68, 80, 92]
QA, QB = 104, 108
XF = 112
O = [112, 128]; S = [144, 160]
vWO, vPOLL, vPD, vKPOS, vKG, vVG, vWQ, vT, vWR4 = 240, 242, 244, 246, 247, 248, 249, 250, 254
vA = [[16, 17], [18, 19]]; vBO, vSTO, vOWN, vFL = 20, 21, 22, 23

HEADER = """; Multi-head attention block (B=1, S=2048, D=512, H=32, Dh=16) in ONE launch:
;   qkv = x @ wqkv ; o = softmax(q k^T / 4) v ; out = o @ wo
; Kernarg: x(0) wqkv(8) wo(16) out(24) debug(32) ws(40).  Generated by gen/gen_final.py.
; @launch grid=(256,1,1) block=(512,1,1) lds=163840
;
; Workgroup (quad, rb) = 4 heads x 64 tokens, one per CU; wave = (head hd of the quad, half tt).
;           K/V tiles go to the workspace in MFMA-fragment order (write-through), then a flag.
;           pick the high (bf16) half of the raw fp32 P registers, with two all-ones rows appended to V^T.
"""

SC = ['sc1', 'sc0 sc1', 'sc1 nt']
def gen(a):
    name = "standalone__mha_block__prompt_kernel"
    a.raw(f".globl {name}"); a.raw(".p2align 8"); a.raw(f".type {name},@function"); a.label(name)
    a("s_cmp_ge_u32 s2, 256")
    a("s_cbranch_scc1 L_end", "workgroups past the grid leave at once")
    for d, off in ((12, 0), (16, 8), (32, 32), (20, 40), (24, 16), (28, 24)):
        a(f"s_load_dwordx2 s[{d}:{d+1}], s[0:1], {off}")
    a(f"s_memrealtime {NONCE}")
    if OPT["stamp"]: a("s_memtime s[82:83]")
    a.c("pull the rest of this kernel's code towards the L2 while the arguments are on their way")
    a("s_getpc_b64 s[76:77]")
    a.label("L_pc")
    a(f"v_lshlrev_b32 v1, {6 if OPT['ipf'] > 1 else 7}, v0")
    a(f"v_cmp_gt_u32 vcc, (L_codeend-L_pc)/{64 if OPT['ipf'] > 1 else 128}, v0")
    a("s_and_saveexec_b64 s[78:79], vcc")
    a("s_cbranch_execz L_noipf")
    if OPT["ipf"]: a(f"global_load_dword v{vT+1}, v1, s[76:77]")
    a.label("L_noipf")
    a("s_mov_b64 exec, -1")
    a("v_lshrrev_b32 v1, 6, v0")
    a("v_and_b32 v0, 63, v0", "v0 = lane")
    a(f"v_readfirstlane_b32 {sWAVE}, v1")
    a.c("quad = (wg&3)*2 + ((wg>>3)&1), rb = ((wg>>2)&1)*16 + (wg>>4): two quads per XCD under round-robin placement (speed only)")
    if OPT["qmap"] == 0:
        a("s_and_b32 s54, s2, 3")
        a("s_lshl_b32 s54, s54, 1")
        a("s_bfe_u32 s55, s2, 0x10003")
    elif OPT["qmap"] == 1:
        a("s_and_b32 s54, s2, 3")
        a("s_bfe_u32 s55, s2, 0x10003")
        a("s_lshl_b32 s55, s55, 2")
    else:
        a("s_and_b32 s54, s2, 3")
        a("s_mul_i32 s54, s54, 5")
        a("s_and_b32 s54, s54, 5")
        a("s_and_b32 s54, s2, 1")
        a("s_bfe_u32 s55, s2, 0x10001")
        a("s_lshl_b32 s55, s55, 2")
        a("s_add_u32 s54, s54, s55")
        a("s_bfe_u32 s55, s2, 0x10003")
        a("s_lshl_b32 s55, s55, 1")
    a(f"s_add_u32 {sQUAD}, s54, s55")
    a("s_bfe_u32 s54, s2, 0x10002")
    a("s_lshl_b32 s54, s54, 4")
    a("s_lshr_b32 s55, s2, 4")
    a(f"s_add_u32 {sRB}, s54, s55")
    a(f"s_and_b32 {sHD}, {sWAVE}, 3")
    a(f"s_lshr_b32 {sTT}, {sWAVE}, 2")
    a(f"s_lshl_b32 {sW1K}, {sWAVE}, 10")
    a(f"v_lshlrev_b32 v{vL16}, 4, v0")
    a.c("x DMA source: row 8w + l/8 of the block, 16-byte piece (l%8) ^ ((row>>1)&7)  (bank swizzle)")
    a("v_lshrrev_b32 v10, 3, v0")
    a("v_and_b32 v11, 7, v0")
    a("v_lshrrev_b32 v12, 4, v0")
    a(f"s_and_b32 s53, {sWAVE}, 1")
    a("s_lshl_b32 s54, s53, 2")
    a("v_xor_b32 v13, v11, v12")
    a("v_xor_b32 v13, s54, v13")
    a(f"s_lshl_b32 s55, {sWAVE}, 3")
    a("v_add_u32 v10, s55, v10")
    a(f"s_lshl_b32 s55, {sRB}, 16")
    a("v_lshlrev_b32 v14, 10, v10")
    a("v_lshl_add_u32 v14, v13, 4, v14")
    a(f"v_add_u32 v{vXD}, s55, v14")
    a.c("W DMA source: k row 8w + l/8, the quad's 128-byte line, 32-byte slot ^ (((row>>1)&1) | ((row>>3)&1)<<1)")
    a("v_and_b32 v12, 1, v12")
    a("v_lshlrev_b32 v12, 1, v12")
    a("v_xor_b32 v13, v11, v12")
    a("v_xor_b32 v13, s54, v13")
    a("v_mul_u32_u24 v14, 3072, v10")
    a("v_lshl_add_u32 v14, v13, 4, v14")
    a(f"s_lshl_b32 s55, {sQUAD}, 7")
    a(f"v_add_u32 v{vWD}, s55, v14")
    a.c("the 64-deep k chunks are walked in an order rotated per workgroup, so every line is requested early by someone")
    if OPT["rotm"] == 2: a(f"s_add_u32 s53, {sQUAD}, {sRB}")
    elif OPT["rotm"] == 1:
        a(f"s_lshl_b32 s53, {sQUAD}, 2"); a(f"s_add_u32 s53, s53, {sRB}"); a(f"s_lshr_b32 s54, {sQUAD}, 1"); a("s_add_u32 s53, s53, s54")
    elif OPT["rotm"] == 3:
        a(f"s_mul_i32 s53, {sQUAD}, 3"); a(f"s_add_u32 s53, s53, {sRB}")
    elif OPT["rotm"] == 4:
        a(f"s_lshl_b32 s53, {sQUAD}, 1"); a(f"s_add_u32 s53, s53, {sRB}"); a(f"s_lshr_b32 s54, {sQUAD}, 2"); a("s_add_u32 s53, s53, s54")
    for p in range(8):
        a("s_and_b32 s53, s53, 7")
        a(f"s_lshl_b32 {sXT(p)}, s53, 7")
        a(f"s_mul_i32 {sWT(p)}, s53, 196608")
        if p < 7: a("s_add_u32 s53, s53, 1")
    a("v_and_b32 v12, 31, v0")
    a(f"s_lshl_b32 s53, {sRB}, 5")
    a("s_and_b32 s53, s53, 511")
    a("v_add_u32 v12, s53, v12")
    a("v_mul_u32_u24 v15, 3072, v12", "this workgroup's share of the Wq lines (L2 prefetch)")
    if OPT["qpf"] > 1:
        a("v_lshrrev_b32 v12, 5, v0")
        a("v_lshl_add_u32 v15, v12, 6, v15", "this workgroup's share of the Wq lines, both halves (L2 prefetch)")
    for d, size in ((12, 2048*1024), (16, 512*3072), (32, 256), (20, 8 << 20), (24, 512*1024), (28, 2048*1024)):
        a(f"s_mov_b32 s{d+2}, {hex(size)}")
        a(f"s_mov_b32 s{d+3}, 0x00020000")
    a(f"s_mov_b32 m0, {sW1K}")
    a("s_waitcnt lgkmcnt(0)")
    if OPT["stamp"]:
        a(f"v_writelane_b32 v{vST_RT}, s46, 0"); a(f"v_writelane_b32 v{vST_CY}, s82, 0")
    stamp(a, 12)
    issued = []
    def dma_x(p, m0=True):
        if m0:
            a(f"s_add_u32 m0, {sW1K}, {p*8192}"); a("s_nop 0")
        a(f"buffer_load_dwordx4 v{vXD}, {X}, {sXT(p)} offen lds"); issued.append(("x", p))
    def dma_w(t, p, dest, tag):
        a(f"s_add_u32 m0, {sW1K}, {dest - t*1024}")
        a("s_nop 0")
        a(f"buffer_load_dwordx4 v{vWD}, {W}, {sWT(p)} offen offset:{t*1024} lds"); issued.append(tag)
    def dma_kv(p):
        dma_w(1, p, WB + (p%5)*16384, ("kv", p)); dma_w(2, p, WB + (p%5)*16384 + 8192, ("kv", p))
    QDEST = [0, 8192, 16384, 24576, 32768, WB + 3*16384, WB + 3*16384 + 8192, 40960]
    dma_x(0, False); dma_kv(0)
    a.c("launch nonce: workgroup 0, wave 0 publishes its clock reading")
    a("s_or_b32 s46, s46, 1")
    a(f"s_or_b32 s53, s2, {sWAVE}")
    a("s_cbranch_scc1 L_nonon")
    a("v_mov_b32 v10, s46"); a("v_mov_b32 v11, s47")
    a("s_mov_b64 exec, 1")
    a(f"buffer_store_dwordx2 v[10:11], off, {DBG}, 0 sc1")
    a("s_mov_b64 exec, -1")
    a.label("L_nonon")
    a(f"s_cmp_lg_u32 {sWAVE}, 7")
    a("s_cbranch_scc1 L_noqpf")
    if OPT["qpf"]: a(f"buffer_load_dword v{vT}, v15, {W}, s55 offen")
    a.label("L_noqpf")
    if OPT["order"] == 0:
        for p in range(1, 4): dma_x(p)
    elif OPT["order"] == 3:
        dma_x(1)
    stamp(a, 13)
    a.c("scalar offsets")
    a(f"s_lshl_b32 {sSLOT}, {sWAVE}, 12")
    a(f"s_add_u32 {sSLOT}, {sSLOT}, {R3}")
    a(f"s_lshl_b32 s53, {sQUAD}, 2")
    a(f"s_add_u32 {sHEAD}, s53, {sHD}")
    a(f"s_mul_i32 s53, {sHEAD}, {131072 + OPT['hpad']}")
    a(f"s_lshl_b32 s54, {sTT}, 11")
    a(f"s_add_u32 {sKVH}, s53, s54", "K/V stream of this wave: head*128K + tt*2K (+ 4K per 64 tokens)")
    a(f"s_lshl_b32 s64, {sRB}, 12")
    a(f"s_add_u32 {sKVOWN}, {sKVH}, s64")
    a(f"s_lshl_b32 s53, {sRB}, 1")
    a(f"s_add_u32 {sQT}, s53, {sTT}")
    a(f"s_lshl_b32 s53, {sQT}, 15")
    a(f"s_lshl_b32 s54, {sHEAD}, 10")
    a(f"s_add_u32 {sOOWN}, s53, s54")
    a(f"s_add_u32 {sOOWN}, {sOOWN}, {hex(O_OFF)}", "own O fragment")
    a(f"s_lshl_b32 {sPOLL}, {sQUAD}, 10")
    a(f"s_add_u32 {sPOLL}, {sPOLL}, {hex(FKV_OFF)}", "this quad's K/V flags: 32 entries, 32 bytes apart")
    a("v_and_b32 v12, 31, v0")
    a(f"v_lshlrev_b32 v{vPOLL}, 5, v12")
    a(f"s_lshr_b32 s53, {sQUAD}, 2")
    a(f"s_lshl_b32 s54, {sRB}, 1")
    a(f"s_add_u32 {sOQ}, s53, s54", "output tile: tokens of q-tile 2rb + quad/4, columns 128*((quad+rb)%4)")
    if OPT["wrot"]:
        a(f"s_add_u32 {sCB}, {sQUAD}, {sRB}")
        a(f"s_and_b32 {sCB}, {sCB}, 3")
    else:
        a(f"s_and_b32 {sCB}, {sQUAD}, 3")
    a(f"s_lshl_b32 {sCB}, {sCB}, 8")
    a(f"s_lshl_b32 s53, {sOQ}, 15")
    a(f"s_add_u32 {sOST}, s53, {sCB}")
    a(f"s_lshl_b32 s53, {sHD}, 6")
    a(f"s_add_u32 {sOST}, {sOST}, s53")
    a(f"s_lshl_b32 s53, {sTT}, 14")
    a(f"s_add_u32 {sOST}, {sOST}, s53")
    a.c("O flags: one 128-byte line per (writer, reader) pair of the eight workgroups of a row block")
    a(f"s_lshl_b32 s53, {sRB}, 3")
    a(f"s_add_u32 s54, s53, {sQUAD}")
    a("s_lshl_b32 s54, s54, 10")
    a(f"s_add_u32 s74, s54, {hex(FO_OFF)}")
    a(f"s_add_u32 s75, s53, {sWAVE}")
    a("s_lshl_b32 s75, s75, 10")
    a(f"s_lshl_b32 s54, {sQUAD}, 7")
    a("s_add_u32 s75, s75, s54")
    a(f"s_add_u32 s75, s75, {hex(FO_OFF)}")
    a(f"s_lshl_b32 s65, {sRB}, 13")
    a("s_and_b32 s65, s65, 0x1ffff")
    a("s_lshl_b32 s66, s65, 2")
    if OPT["order"] == 2:
        for p in range(1, 4): dma_x(p)
    if OPT["order"] == 3:
        dma_kv(1); dma_x(2); dma_x(3)
    a.c("LDS read addresses: x fragments (two k steps), W fragments (transposing reads)")
    a("v_and_b32 v10, 15, v0")
    a("v_lshrrev_b32 v11, 4, v0")
    a("v_bfe_u32 v12, v0, 1, 3")
    a("v_xor_b32 v12, v11, v12")
    a(f"s_lshl_b32 s53, {sTT}, 12")
    a("v_lshlrev_b32 v13, 7, v10")
    a("v_add_u32 v13, s53, v13")
    a(f"v_lshl_add_u32 v{vXR0}, v12, 4, v13")
    a(f"v_xor_b32 v{vXR1}, 64, v{vXR0}")
    a("v_bfe_u32 v12, v0, 2, 2")
    a("v_lshl_add_u32 v13, v11, 3, v12")
    a("v_lshlrev_b32 v13, 7, v13")
    a("v_bfe_u32 v14, v0, 3, 2")
    a(f"v_xor_b32 v14, {sHD}, v14")
    a("v_lshl_add_u32 v13, v14, 5, v13")
    a("v_and_b32 v14, 3, v0")
    a(f"v_lshl_add_u32 v{vWQ}, v14, 3, v13")
    a(f"v_add_u32 v{vWR}, {WB}, v{vWQ}")
    a(f"v_add_u32 v{vWR4}, {R3}, v{vWQ}")
    a.c("K/V tile = 1 KB K fragment (lane-linear) + 1 KB V^T fragments (4 x 16 lanes x 16 B)")
    a("v_lshrrev_b32 v12, 5, v0")
    a("v_lshlrev_b32 v12, 8, v12")
    a("v_lshl_add_u32 v12, v10, 4, v12")
    a(f"v_add_u32 v{vVO}, 1024, v12")
    a(f"v_add_u32 v{vKG}, {sKVH}, v{vL16}")
    a(f"v_add_u32 v{vVG}, {sKVH}, v{vVO}")
    a("v_and_b32 v12, 0x23, v0")
    a("v_bfe_u32 v13, v0, 2, 2")
    a("v_lshl_add_u32 v12, v13, 3, v12")
    a("v_bfe_u32 v13, v0, 4, 1")
    a("v_lshl_add_u32 v12, v13, 2, v12")
    a(f"v_lshlrev_b32 v{vKPOS}, 4, v12", "K rows are stored in the key order of the V^T fragments")
    a.c("Wo DMA source: row 4w + l/16, 32-byte slot ^ (row&7)")
    a(f"s_lshl_b32 s53, {sWAVE}, 2")
    a("v_add_u32 v12, s53, v11")
    a("v_and_b32 v13, 7, v12")
    a("v_lshlrev_b32 v13, 1, v13")
    a("v_xor_b32 v13, v10, v13")
    a("v_lshlrev_b32 v14, 10, v12")
    a("v_lshl_add_u32 v14, v13, 4, v14")
    a(f"v_add_u32 v{vWO}, {sCB}, v14")
    a(f"v_mov_b32 v{vIDX}, 0xdddddddd", "sparse index: elements 1 and 3 of every 4 = high halves of two fp32")
    a("s_mov_b32 s48, 0xffff"); a("s_mov_b32 s49, 0xffff", "lanes that carry V^T rows 0..15")
    a("v_and_b32 v12, 27, v0")
    a("v_cmp_eq_u32 vcc, 16, v12")
    a("v_mov_b32 v15, 0x3f803f80")
    a("s_nop 0")
    a.c("rows 16 and 20 of the V^T operand are ones (row sums), the other spare rows zero")
    for j in range(4):
        for i in range(8): a(f"v_cndmask_b32 v{KV[j]+4+i}, 0, v15, vcc")
    stamp(a, 20)
    if OPT["order"] == 1:
        dma_x(1); dma_kv(1); dma_x(2); dma_x(3); dma_kv(2)
    elif OPT["order"] == 3:
        dma_kv(2)
    else:
        dma_kv(1); dma_kv(2)
    stamp(a, 1)

    def waitvm(pred):
        last = max(i for i, t in enumerate(issued) if pred(t))
        a(f"s_waitcnt vmcnt({len(issued) - 1 - last})")
    def xf(p, s): return XF + 8*(2*p + s)
    def rd_w(base, off, r):
        a(f"ds_read_b64_tr_b16 {vr(r,2)}, v{base} offset:{off}")
        a(f"ds_read_b64_tr_b16 {vr(r+2,2)}, v{base} offset:{off + 512}")
    def readsA(p):
        fw = FW[p % 2]
        for s in range(2):
            b = vXR0 if s == 0 else vXR1; f = xf(p, s)
            a(f"ds_read_b128 {vr(f,4)}, v{b} offset:{p*8192}")
            a(f"ds_read_b128 {vr(f+4,4)}, v{b} offset:{p*8192+2048}")
            wb, wo = (vWR, (p%5)*16384) if p % 5 < 4 else (vWR4, 0)
            rd_w(wb, wo + s*4096, fw[2*s]); rd_w(wb, wo + 8192 + s*4096, fw[2*s+1])
    def mfmaA(p, s):
        f = xf(p, s); wk, wv = FW[p % 2][2*s], FW[p % 2][2*s+1]
        def c(r): return "0" if p == 0 and s == 0 else vr(r, 4)
        a(f"v_mfma_f32_16x16x32_bf16 {vr(AK,4)}, {vr(wk,4)}, {vr(f,4)}, {c(AK)}")
        a(f"v_mfma_f32_16x16x32_bf16 {vr(AK+4,4)}, {vr(wk,4)}, {vr(f+4,4)}, {c(AK+4)}")
        a(f"v_mfma_f32_16x16x32_bf16 {vr(AV,4)}, {vr(f,4)}, {vr(wv,4)}, {c(AV)}")
        a(f"v_mfma_f32_16x16x32_bf16 {vr(AV+4,4)}, {vr(f+4,4)}, {vr(wv,4)}, {c(AV+4)}")
    def grab(fn):
        n0 = len(a.l); fn(); out = a.l[n0:]; del a.l[n0:]; return out
    a.c("---- K, V.  Step p: chunk p has landed -> read its fragments, request later chunks, multiply chunk p-1.\n"
        "     A ring slot / x slot is refilled two barriers after its last reader issued (covered by lgkmcnt(0) in between).")
    QSCHED = {5: [0, 1, 2], 6: [3, 4, 5], 7: [6, 7]}
    for p in range(8):
        waitvm(lambda t: t[1] == p and t[0] in ("x", "kv"))
        a("s_barrier")
        if p == 0: stamp(a, 2)
        elif OPT["stamp"] == 6: stamp(a, 24 + p)
        if p >= 1: a("s_waitcnt lgkmcnt(0)")
        rd = grab(lambda: readsA(p))
        mf = grab(lambda: (mfmaA(p-1, 0), mfmaA(p-1, 1))) if p >= 1 else []
        dm = []
        if p + 3 < 8:
            kvl = grab(lambda: dma_kv(p + 3)); dm += [kvl[:3], kvl[3:]]
        if p + 4 < 8: dm.append(grab(lambda: dma_x(p + 4)))
        for j in QSCHED.get(p, []): dm.append(grab(lambda: dma_w(0, j, QDEST[j], ("q", j))))
        k = 0
        sc = OPT["sched"]
        if sc == 0:
            for i in range(12):
                a.l.append(rd[i])
                while k < len(mf) and k < (i + 1) * 8 // 12:
                    a.l.append(mf[k]); k += 1
                if i % 4 == 3 and i // 4 < len(dm): a.l += dm[i // 4]
        elif sc == 1:
            for i in range(12):
                if k < len(mf) and k <= i * 8 // 12:
                    a.l.append(mf[k]); k += 1
                d = dm[i // 4] if i % 4 == 2 and i // 4 < len(dm) else None
                if d: a.l.append(d[0])
                a.l.append(rd[i])
                if d: a.l.append(d[2])
            a.l += mf[k:]
        elif sc == 2:
            for d in dm: a.l += d
            for i in range(12):
                if k < len(mf) and k <= i * 8 // 12:
                    a.l.append(mf[k]); k += 1
                a.l.append(rd[i])
            a.l += mf[k:]
        elif sc == 3:
            a.l += mf[:1] + rd[:6] + mf[1:2] + rd[6:]
            rest = mf[2:]
            for i, d in enumerate(dm):
                a.l.append(d[0]); a.l += rest[2*i:2*i+1] or ["    s_nop 0"]; a.l.append(d[2]); a.l += rest[2*i+1:2*i+2]
            a.l += rest[2*len(dm):]
        assert len(dm) <= 3
        if p == 2:
            a(f"s_cmp_lg_u32 {sWAVE}, 0")
            a("s_cbranch_scc1 L_nf1")
            a(f"buffer_load_dwordx2 {vr(vPD,2)}, off, {DBG}, 0 sc1", "fetch the nonce")
            a.label("L_nf1")
    a("s_waitcnt lgkmcnt(6)")
    mfmaA(7, 0)
    a("s_waitcnt lgkmcnt(0)")
    mfmaA(7, 1)
    stamp(a, 3)
    a.c("---- publish K/V (write-through) and keep a copy of the own tile through this wave's LDS slot")
    F = 40
    a(f"v_add_u32 v10, {sSLOT}, v{vKPOS}")
    a(f"v_add_u32 v11, {sSLOT}, v{vL16}")
    a(f"v_add_u32 v12, {sSLOT}, v{vVO}")
    a("s_nop 4")
    for i in range(4): a(f"v_cvt_pk_bf16_f32 v{F+i}, v{AK+2*i}, v{AK+2*i+1}")
    for i in range(4): a(f"v_cvt_pk_bf16_f32 v{F+4+i}, v{AV+2*i}, v{AV+2*i+1}")
    a(f"v_permlane16_swap_b32 v{F}, v{F+2}")
    a(f"v_permlane16_swap_b32 v{F+1}, v{F+3}")
    a(f"buffer_store_dwordx4 {vr(F+4,4)}, v{vL16}, {WS}, {sKVOWN} offen offset:1024 " + SC[OPT["ksc"]])
    a(f"buffer_store_dwordx4 {vr(F,4)}, v{vKPOS}, {WS}, {sKVOWN} offen " + SC[OPT["ksc"]])
    a(f"ds_write_b128 v11, {vr(F+4,4)} offset:1024")
    a(f"ds_write_b128 v10, {vr(F,4)}")
    a("s_waitcnt lgkmcnt(0)")
    a(f"ds_read_b128 {vr(KV[0],4)}, v11")
    a(f"s_mov_b64 exec, {VMASK}")
    a(f"ds_read_b128 {vr(KV[0]+4,4)}, v12")
    a(f"ds_read_b128 {vr(KV[0]+8,4)}, v12 offset:512")
    a("s_mov_b64 exec, -1")
    a("s_waitcnt vmcnt(7)", "Wq chunks 0..2 (and the nonce)")
    a(f"s_cmp_lg_u32 {sWAVE}, 0")
    a("s_cbranch_scc1 L_nf2")
    a(f"s_mov_b32 s53, {SPIN_MAX}")
    a.label("L_nspin")
    a(f"v_readfirstlane_b32 s54, v{vPD}")
    a("s_sub_u32 s53, s53, 1")
    a("s_cbranch_scc1 L_ngot")
    a("s_cmp_lg_u32 s54, 0")
    a("s_cbranch_scc1 L_ngot")
    a("s_sleep 2")
    a(f"buffer_load_dwordx2 {vr(vPD,2)}, off, {DBG}, 0 sc1")
    a("s_waitcnt vmcnt(0)")
    a("s_branch L_nspin")
    a.label("L_ngot")
    a(f"v_mov_b32 v10, {R3 + 2816}")
    a(f"ds_write_b64 v10, {vr(vPD,2)}")
    a.label("L_nf2")
    a("s_waitcnt lgkmcnt(0)")
    a("s_barrier")
    stamp(a, 14)
    a(f"v_mov_b32 v10, {R3 + 2816}")
    a(f"ds_read_b64 {vr(vPD,2)}, v10")
    a.c("---- Q (the x fragments are still in registers)")
    BS = [48, 52, 16, 20, 24, 28, 40, 44]
    lgq = ["n"]
    def readsB(st):
        p, s = divmod(st, 2); d = QDEST[p]
        if d < WB: rd_w(vWQ, d + s*4096, BS[st % 8])
        else: rd_w(vWR, d - WB + s*4096, BS[st % 8])
        lgq.extend([st, st])
    FS = OPT["fstep"]; nxt = 0
    a(f"s_lshl_b32 s54, {sRB}, 5")
    a(f"s_add_u32 s53, {sPOLL}, s54")
    for st in range(16):
        if st == FS:
            a("s_waitcnt vmcnt(0)")
            if stamp(a, 18): del lgq[:]
            a("s_barrier", "every wave's K/V is written through, all of Wq has landed")
            a(f"s_cmp_lg_u32 {sWAVE}, 0")
            a("s_cbranch_scc1 L_nflag")
            a("s_mov_b64 exec, 1")
            a(f"buffer_store_dwordx2 {vr(vPD,2)}, off, {WS}, s53 " + SC[OPT["fsc"]], "K/V flag of this workgroup")
            a("s_mov_b64 exec, -1")
            a.label("L_nflag")
            if stamp(a, 24): del lgq[:]
        while nxt < min(6 if st < FS else 16, st + 6):
            readsB(nxt); nxt += 1
        if st in lgq:
            last = max(i for i, t in enumerate(lgq) if t == st)
            a(f"s_waitcnt lgkmcnt({len(lgq) - 1 - last})"); del lgq[:last + 1]
        if st == 0:
            a(f"v_readfirstlane_b32 s46, v{vPD}")
            a(f"v_readfirstlane_b32 s47, v{vPD+1}")
        f = XF + 8*st; w = BS[st % 8]
        c0, c1 = ("0", "0") if st == 0 else (vr(AQ,4), vr(AQ+4,4))
        a(f"v_mfma_f32_16x16x32_bf16 {vr(AQ,4)}, {vr(w,4)}, {vr(f,4)}, {c0}")
        a(f"v_mfma_f32_16x16x32_bf16 {vr(AQ+4,4)}, {vr(w,4)}, {vr(f+4,4)}, {c1}")
        if st == 2:
            for i in range(4): a(f"v_mov_b32 v{12+i}, 0")
        if st == 3:
            a(f"v_mfma_f32_32x32x16_bf16 {vr(O[0],16)}, v[12:15], v[12:15], 0", "clear the O accumulators")
            a(f"v_mfma_f32_32x32x16_bf16 {vr(O[1],16)}, v[12:15], v[12:15], 0")
    if OPT["ppos"] == 1: a(f"buffer_load_dwordx2 {vr(vT,2)}, v{vPOLL}, {WS}, {sPOLL} offen sc1")
    a(f"s_xor_b32 s53, {sSLOT}, 16384")
    a(f"s_mov_b32 s54, {hex(f2u(CSCALE))}", "log2(e)/4 goes into Q")
    a(f"v_add_u32 v10, s53, v{vL16}")
    a("s_mov_b64 s[76:77], s[20:21]")
    a("s_mov_b32 s78, s22")
    a("s_mov_b32 s79, 0x00020000")
    a("s_mov_b32 s67, 8")
    a("s_nop 0")
    for i in range(0, 8, 2): a(f"v_pk_mul_f32 {vr(AQ+i,2)}, s[54:55], {vr(AQ+i,2)} op_sel_hi:[0,1]")
    for i in range(4): a(f"v_cvt_pk_bf16_f32 v{QB+i}, v{AQ+2*i}, v{AQ+2*i+1}")
    a("s_nop 1")
    a(f"v_permlane16_swap_b32 v{QB}, v{QB+2}")
    a(f"v_permlane16_swap_b32 v{QB+1}, v{QB+3}")
    a(f"ds_write_b128 v10, {vr(QB,4)} offset:3072", "the partner wave needs this Q tile too")
    def qk(j, q, c="0.15915494"): a(f"v_mfma_f32_32x32x16_bf16 {vr(S[q],16)}, {vr(KV[j],4)}, {vr(QA if q == 0 else QB,4)}, {c}")
    def pv0(j, q): a(f"v_smfmac_f32_32x32x32_bf16 {vr(O[q],16)}, {vr(KV[j]+4,4)}, {vr(S[q],8)}, v{vIDX}")
    def pv1(j, q): a(f"v_smfmac_f32_32x32x32_bf16 {vr(O[q],16)}, {vr(KV[j]+8,4)}, {vr(S[q]+8,8)}, v{vIDX}")
    def ex(q, i): a(f"v_exp_f32 v{S[q]+i}, v{S[q]+i}")
    def poll_kv(): a(f"buffer_load_dwordx2 {vr(vT,2)}, v{vPOLL}, {WS}, {sPOLL} offen sc1")
    a(f"s_mov_b32 s53, {SPIN_MAX}")
    a.c("the constant added to every score (1/2pi) cancels in the normalisation; it keeps exp2(0) off a bf16 step")
    qk(0, 1)
    stamp(a, 16)
    a("s_waitcnt lgkmcnt(0)")
    a("s_barrier")
    a(f"ds_read_b128 {vr(QA,4)}, v11 offset:3072")
    if OPT["ppos"] == 0: poll_kv()
    else: a("s_nop 0")
    stamp(a, 5)
    a("s_nop 7")
    a.c("---- attention on the own key tile while the other workgroups' flags arrive")
    ex(1, 0); ex(1, 1); ex(1, 2); ex(1, 3)
    a("s_waitcnt lgkmcnt(0)")
    qk(0, 0)
    for i in range(4, 10): ex(1, i)
    pv0(0, 1)
    for i in range(10, 16): ex(1, i)
    def unit01():
        for i in range(16):
            if i == 11: pv0(0, 0)
            ex(0, i)
        a("s_nop 1")
        pv1(0, 0)
    def ldK(j):
        a("s_add_u32 s64, s64, 4096"); a("s_and_b32 s64, s64, 0x1ffff")
        a(f"buffer_load_dwordx4 {vr(KV[j],4)}, v{vKG}, {KS}, s64 offen sc1")
    def ldV(j):
        a(f"s_mov_b64 exec, {VMASK}")
        a(f"buffer_load_dwordx4 {vr(KV[j]+4,4)}, v{vVG}, {KS}, s64 offen sc1")
        a(f"buffer_load_dwordx4 {vr(KV[j]+8,4)}, v{vVG}, {KS}, s64 offen offset:512 sc1")
        a("s_mov_b64 exec, -1")
    def first_loads():
        for j in (1, 2, 3): ldK(j); ldV(j)
    a("s_waitcnt vmcnt(0)")
    a(f"v_cmp_eq_u64 vcc, {NONCE}, {vr(vT,2)}")
    a("s_nop 1")
    a("s_cmp_eq_u64 vcc, -1")
    a("s_cbranch_scc0 L_late")
    stamp(a, 22); stamp(a, 23)
    first_loads()
    unit01()
    a("s_branch L_go")
    a.label("L_late")
    stamp(a, 22)
    poll_kv()
    unit01()
    a.label("L_kvspin")
    a("s_waitcnt vmcnt(0)")
    a(f"v_cmp_eq_u64 vcc, {NONCE}, {vr(vT,2)}")
    a("s_sub_u32 s53, s53, 1")
    a("s_cbranch_scc1 L_kvgo")
    a("s_cmp_eq_u64 vcc, -1")
    a("s_cbranch_scc1 L_kvgo")
    a("s_sleep 1")
    poll_kv()
    a("s_branch L_kvspin")
    a.label("L_kvgo")
    stamp(a, 23)
    first_loads()
    a.label("L_go")
    a.c("phase-3 addresses: wave = (32-column pair w&3, 16-token half w>>2)")
    a("v_lshrrev_b32 v12, 5, v0")
    a("v_bfe_u32 v13, v0, 2, 3")
    a("v_lshl_add_u32 v14, v12, 4, v13")
    a("v_lshlrev_b32 v14, 8, v14")
    a(f"s_lshl_b32 s54, {sHD}, 1")
    a("v_xor_b32 v13, s54, v13")
    a("v_lshl_add_u32 v14, v13, 5, v14")
    a("v_and_b32 v13, 3, v0")
    a(f"v_lshl_add_u32 v{vA[0][0]}, v13, 3, v14")
    a(f"v_add_u32 v{vA[0][1]}, 65536, v{vA[0][0]}")
    a(f"v_xor_b32 v{vA[1][0]}, 32, v{vA[0][0]}")
    a(f"v_xor_b32 v{vA[1][1]}, 32, v{vA[0][1]}")
    a("v_and_b32 v10, 15, v0")
    a("v_lshrrev_b32 v13, 4, v0")
    a("v_lshlrev_b32 v14, 9, v13")
    a("v_lshl_add_u32 v14, v10, 4, v14")
    a(f"s_lshl_b32 s54, {sTT}, 8")
    a(f"s_add_u32 s54, s54, {R3}")
    a(f"v_add_u32 v{vBO}, s54, v14")
    a("v_lshlrev_b32 v14, 10, v10")
    a("v_lshl_add_u32 v14, v12, 4, v14")
    a("v_and_b32 v13, 1, v13")
    a(f"v_lshl_add_u32 v{vSTO}, v13, 5, v14")
    a(f"s_lshl_b32 s53, {sQUAD}, 12")
    a(f"s_lshl_b32 s54, {sHD}, 10")
    a("s_add_u32 s53, s53, s54")
    a(f"s_add_u32 s53, s53, {R3}")
    a(f"v_add_u32 v{vOWN}, s53, v{vL16}")
    a(f"v_lshlrev_b32 v{vFL}, 7, v0")
    a(f"s_xor_b32 s54, {sSLOT}, 16384")
    a(f"v_add_u32 v24, s54, v{vL16}")
    a("v_lshlrev_b32 v14, 2, v0")
    a("v_add_u32 v25, s54, v14")
    a(f"v_add_u32 v26, {sSLOT}, v14")
    stamp(a, 6)
    a.c("the two waves of a SIMD take turns leading so that both stay runnable to the end")
    a(f"s_cmp_lg_u32 {sTT}, 1")
    a("s_cbranch_scc1 L_noprio")
    a("s_setprio 1")
    a.label("L_noprio")
    a("s_waitcnt vmcnt(6)")
    qk(1, 0)
    a("s_nop 7")
    a("s_nop 2")
    stamp(a, 19)
    a("s_branch L_loop1")
    a.raw(".p2align 6")
    a.c("---- 31 remote key tiles (entered at the second quarter), three tiles in flight")
    a.label("L_loop")
    for u in range(4):
        if u == 1:
            a.label("L_loop1")
            a(f"s_cmp_lg_u32 s67, {8 - OPT['drop']}")
            a("s_cbranch_scc1 L_nodrop")
            a("s_setprio 0")
            a(f"buffer_load_dwordx2 {vr(vT,2)}, off, {WS}, s75 sc1", "first touch of the O flag line")
            if OPT["opre2"] == 1: a(f"buffer_load_dword v{vT}, v{vL16}, {WS}, {sOOWN} offen sc1")
            if OPT["opre2"] == 2: a(f"buffer_store_dwordx4 {vr(QA,4)}, v{vL16}, {WS}, {sOOWN} offen sc1")
            a.label("L_nodrop")
            a("s_cmp_eq_u32 s67, 1")
            a("s_cselect_b32 s78, 0, s78", "the last three prefetches have no consumer: out of range")
        pj = (u - 1) % 4; nj = (u + 1) % 4
        for i in range(16):
            if i == 2: pv1(pj, 1)
            if i == 3: ldK(pj)
            if i == 5: qk(u, 1)
            if i == 7: ldV(pj)
            if i == 11: pv0(u, 0)
            ex(0, i)
        for i in range(16):
            if i == 2: pv1(u, 0)
            if i == 5:
                a("s_waitcnt vmcnt(6)"); qk(nj, 0)
            if i == 11: pv0(u, 1)
            if u == 3 and i == 14:
                a("s_cmp_lg_u32 s67, 1")
                a("s_cbranch_scc1 L_nopart")
                a(f"ds_write_b128 v24, {vr(O[0],4)}", "last pass: the partner's q-tile is final here, hand it over")
                a(f"ds_write_b128 v24, {vr(O[0]+4,4)} offset:1024")
                a(f"ds_write_b32 v25, v{O[0]+8} offset:2048")
                a.label("L_nopart")
            ex(1, i)
    a("s_cmp_le_u32 s67, 4")
    a("s_cbranch_scc1 L_nowo")
    for i in range(4):
        a(f"s_add_u32 m0, s65, {sW1K}", "a quarter of this workgroup's Wo slice per pass" if i == 0 else None)
        a("s_add_u32 s65, s65, 8192")
        a(f"buffer_load_dwordx4 v{vWO}, {WO}, s66 offen lds")
        a("s_and_b32 s65, s65, 0x1ffff")
        a("s_lshl_b32 s66, s65, 2")
    a.label("L_nowo")
    a("s_sub_u32 s67, s67, 1")
    a("s_cmp_lg_u32 s67, 0")
    a("s_cbranch_scc1 L_loop")
    pv1(3, 1)
    stamp(a, 7)
    a.c("---- merge the two key halves: each wave keeps its own q-tile")
    a(f"s_lshl_b32 s54, {sOQ}, 15")
    a(f"s_lshl_b32 s55, {sWAVE}, 12")
    a("s_add_u32 s54, s54, s55")
    a(f"s_add_u32 s64, s54, {hex(O_OFF)}")
    a("s_waitcnt vmcnt(0) lgkmcnt(0)")
    a("s_barrier", "(also: all of Wo is in LDS)")
    stamp(a, 15)
    a(f"ds_read_b32 v{S[0]+8}, v26 offset:2048")
    a(f"ds_read_b128 {vr(S[0],4)}, v11")
    a(f"ds_read_b128 {vr(S[0]+4,4)}, v11 offset:1024")
    a(f"v_mov_b32 v13, {hex(f2u(2.0**-20))}")
    a(f"v_mov_b32 v1, {hex(f2u(2.0**60))}")
    a("s_nop 0")
    a("s_waitcnt lgkmcnt(2)")
    a(f"v_add_f32 v{O[1]+8}, v{O[1]+8}, v{S[0]+8}")
    a(f"v_rcp_f32 v14, v{O[1]+8}")
    a("s_waitcnt lgkmcnt(0)")
    PK = 40
    def finish(add):
        if add:
            for i in range(0, 8, 2): a(f"v_pk_add_f32 {vr(O[1]+i,2)}, {vr(O[1]+i,2)}, {vr(S[0]+i,2)}")
        for i in range(0, 8, 2): a(f"v_pk_mul_f32 {vr(S[0]+i,2)}, v[14:15], {vr(O[1]+i,2)} op_sel_hi:[0,1]")
        for i in range(4): a(f"v_cvt_pk_bf16_f32 v{PK+i}, v{S[0]+2*i}, v{S[0]+2*i+1}")
        a(f"buffer_store_dwordx4 {vr(PK,4)}, v{vL16}, {WS}, {sOOWN} offen " + ["sc1", "sc0 sc1", "sc1 nt"][OPT["osc"]])
    finish(True)
    a.c("unshifted exponentials are exact enough iff 2^-20 <= row sum <= 2^60 and every accumulator is finite;\n"
        "otherwise redo with the true row max (nothing is flagged before the next barrier)")
    a(f"v_cmp_ge_f32 s[68:69], v{O[1]+8}, v13")
    a(f"v_cmp_le_f32 s[70:71], v{O[1]+8}, v1")
    a(f"v_mul_f32 v14, 0, v{O[1]}")
    for i in range(1, 8): a(f"v_fma_f32 v14, v{O[1]+i}, 0, v14")
    a("v_cmp_o_f32 vcc, v14, v14")
    a("s_and_b64 s[68:69], s[68:69], s[70:71]")
    a("s_nop 1")
    a("s_and_b64 s[68:69], s[68:69], vcc")
    a("s_cmp_eq_u64 s[68:69], -1")
    a("s_cbranch_scc0 L_fallback")
    a.label("L_fin")
    def poll_f(): a(f"buffer_load_dwordx2 {vr(vT,2)}, off, {WS}, s75 sc1")
    WF = 112
    wo_list = [(i, s_) for s_ in range(15, -1, -1) for i in range(2)]
    def rdWo(n):
        for _ in range(n):
            i, s_ = wo_list.pop(0)
            b = vA[i][s_ // 8]; o = (s_ % 8) * 8192; r = WF + 64*i + 4*s_
            a(f"ds_read_b64_tr_b16 {vr(r,2)}, v{b} offset:{o}")
            a(f"ds_read_b64_tr_b16 {vr(r+2,2)}, v{b} offset:{o+2048}")
    a.c("---- hand O over; the Wo fragments move to registers meanwhile")
    rdWo(7)
    a("s_waitcnt lgkmcnt(2)")
    rdWo(6)
    a("s_waitcnt vmcnt(0)")
    a("s_barrier", "every wave's O fragment is written through")
    a(f"s_cmp_lg_u32 {sWAVE}, {sQUAD}")
    a("s_cbranch_scc1 L_noflag")
    a("s_mov_b64 exec, 0xff")
    a(f"buffer_store_dwordx2 {vr(vPD,2)}, v{vFL}, {WS}, s74 offen " + SC[OPT["fsc"]], "wave == quad has nothing to fetch: it flags")
    a("s_mov_b64 exec, -1")
    a("s_branch L_flagged")
    a.label("L_noflag")
    poll_f()
    a.label("L_flagged")
    stamp(a, 8)
    a(f"s_lshr_b32 s53, {sQUAD}, 2")
    a(f"s_cmp_lg_u32 s53, {sTT}")
    a("s_waitcnt lgkmcnt(0)")
    a("s_cbranch_scc1 L_noown")
    a(f"ds_write_b128 v{vOWN}, {vr(PK,4)}", "this workgroup's own heads go straight to their staging slot")
    a.label("L_noown")
    rdWo(7)
    a("s_waitcnt lgkmcnt(2)")
    rdWo(6)
    a(f"s_mov_b32 m0, {sSLOT}")
    a("s_waitcnt lgkmcnt(2)")
    rdWo(6)
    a(f"s_mov_b32 s53, {SPIN_MAX}")
    a(f"s_cmp_eq_u32 {sWAVE}, {sQUAD}")
    a("s_cbranch_scc1 L_oskip")
    a("s_branch L_ochk")
    a.label("L_ospin")
    poll_f()
    a.label("L_ochk")
    a("s_waitcnt vmcnt(0)")
    a(f"v_cmp_eq_u64 vcc, {NONCE}, {vr(vT,2)}")
    a("s_sub_u32 s53, s53, 1")
    a("s_cbranch_scc1 L_ogo")
    a("s_cmp_eq_u64 vcc, -1")
    a("s_cbranch_scc0 L_ospin")
    a.label("L_ogo")
    stamp(a, 9)
    for i in range(4):
        a(f"buffer_load_dwordx4 v{vL16}, {WS}, s64 offen offset:{i*1024} sc1 lds")
    a("s_waitcnt vmcnt(0)")
    stamp(a, 21)
    a.label("L_oskip")
    a("s_waitcnt lgkmcnt(0)")
    a("s_barrier")
    stamp(a, 10)
    a.c("---- output projection: 16 tokens x 32 columns per wave, two heads per step")
    ACC = 32; NB = 7
    def rd3(s_): a(f"ds_read_b128 {vr(44 + 4*(s_ % (NB+1)),4)}, v{vBO} offset:{s_*2048}")
    for s_ in range(NB): rd3(s_)
    for s_ in range(16):
        if s_ + NB < 16:
            rd3(s_ + NB); a(f"s_waitcnt lgkmcnt({NB})")
        else:
            a(f"s_waitcnt lgkmcnt({15 - s_})")
        f = 44 + 4*(s_ % (NB+1))
        for i in range(2):
            a(f"v_mfma_f32_16x16x32_bf16 {vr(ACC+4*i,4)}, {vr(WF+64*i+4*s_,4)}, {vr(f,4)}, " + ("0" if s_ == 0 else vr(ACC+4*i,4)))
    a("s_nop 7")
    for i in range(4): a(f"v_cvt_pk_bf16_f32 v{PK+i}, v{ACC+2*i}, v{ACC+2*i+1}")
    a("s_nop 1")
    a(f"v_permlane16_swap_b32 v{PK}, v{PK+2}")
    a(f"v_permlane16_swap_b32 v{PK+1}, v{PK+3}")
    a(f"buffer_store_dwordx4 {vr(PK,4)}, v{vSTO}, {OUT}, {sOST} offen nt")
    if OPT["stamp"]:
        stamp(a, 17)
        a("s_waitcnt vmcnt(0)")
        stamp(a, 11); stamp_out(a)
    a.label("L_end")
    a("s_endpgm")
    a.c("---- fallback (rare): exact row max over all keys, then this q-tile again with it subtracted")
    a.label("L_fallback")
    a(f"s_mul_i32 s53, {sHEAD}, {131072 + OPT['hpad']}")
    a("s_mov_b32 s54, 0")
    a("v_mov_b32 v14, 0xff800000")
    a.label("L_fb1")
    a(f"buffer_load_dwordx4 {vr(KV[0],4)}, v{vL16}, {WS}, s53 offen sc1")
    a("s_waitcnt vmcnt(0)")
    qk(0, 1, "0")
    a("s_add_u32 s53, s53, 2048")
    a("s_add_u32 s54, s54, 1")
    a("s_nop 7"); a("s_nop 3")
    for i in range(8): a(f"v_max3_f32 v14, v{S[1]+2*i}, v{S[1]+2*i+1}, v14")
    a("s_cmp_lt_u32 s54, 64")
    a("s_cbranch_scc1 L_fb1")
    a("v_mov_b32 v1, v14")
    a("s_nop 1")
    a("v_permlane32_swap_b32 v14, v1")
    a("s_nop 1")
    a("v_max_f32 v14, v14, v1")
    for i in range(16): a(f"v_sub_f32 v{S[0]+i}, 0, v14")
    for i in range(16): a(f"v_mov_b32 v{O[1]+i}, 0")
    a(f"s_mul_i32 s53, {sHEAD}, {131072 + OPT['hpad']}")
    a("s_mov_b32 s54, 0")
    a.label("L_fb2")
    a(f"buffer_load_dwordx4 {vr(KV[0],4)}, v{vL16}, {WS}, s53 offen sc1")
    a(f"s_mov_b64 exec, {VMASK}")
    a(f"buffer_load_dwordx4 {vr(KV[0]+4,4)}, v{vVO}, {WS}, s53 offen sc1")
    a(f"buffer_load_dwordx4 {vr(KV[0]+8,4)}, v{vVO}, {WS}, s53 offen offset:512 sc1")
    a("s_mov_b64 exec, -1")
    a("s_waitcnt vmcnt(0)")
    qk(0, 1, vr(S[0], 16))
    a("s_add_u32 s53, s53, 2048")
    a("s_add_u32 s54, s54, 1")
    a("s_nop 7"); a("s_nop 3")
    for i in range(16): ex(1, i)
    a("s_nop 1")
    pv0(0, 1); pv1(0, 1)
    a("s_cmp_lt_u32 s54, 64")
    a("s_cbranch_scc1 L_fb2")
    a("s_nop 7"); a("s_nop 7")
    a(f"v_rcp_f32 v14, v{O[1]+8}")
    a("s_nop 0")
    finish(False)
    a("s_branch L_fin")
    a.label("L_codeend")
    return f""".section .rodata,"a"
.p2align 6
.amdhsa_kernel {name}
  .amdhsa_next_free_vgpr 256
  .amdhsa_next_free_sgpr 100
  .amdhsa_accum_offset 256
  .amdhsa_group_segment_fixed_size 0
  .amdhsa_kernarg_size 48
  .amdhsa_user_sgpr_count 2
  .amdhsa_user_sgpr_kernarg_segment_ptr 1
  .amdhsa_system_sgpr_workgroup_id_x 1
.end_amdhsa_kernel
"""

def annotate(lines):
    def op(t): return t.split(";")[0].strip()
    out = list(lines)
    for i, t in enumerate(lines):
        o = op(t)
        if ";" in t or not o.startswith(("s_nop", "s_sleep")): continue
        prev = op(lines[i-1]); j = i + 1
        while op(lines[j]).startswith("s_nop") or not op(lines[j]) or op(lines[j]).endswith(":"): j += 1
        nxt = op(lines[j])
        if o.startswith("s_sleep"): c = "back off between polls"
        elif " m0," in prev: c = "wait state: M0 write -> LDS-DMA"
        elif nxt.startswith("v_permlane") or prev.startswith("v_permlane"): c = "wait states: VALU write <-> v_permlane"
        elif nxt.startswith(("s_cmp_eq_u64", "s_and_b64", "v_cndmask")): c = "wait states: VALU-written mask"
        elif prev.startswith("v_rcp"): c = "wait state: transcendental result"
        elif nxt.startswith("v_smfmac"): c = "wait states: VALU write -> MFMA operand"
        else: c = "wait states: MFMA result -> VALU / LDS read"
        out[i] = t + " " * max(1, 78 - len(t)) + "; " + c
    return out

if __name__ == "__main__":
    for kv in sys.argv[2:]:
        k, v = kv.split("="); assert k in OPT, k; OPT[k] = int(v)
    a = Asm()
    a.raw(HEADER.rstrip("\n"))
    a.raw('.amdgcn_target "amdgcn-amd-amdhsa--gfx950"')
    a.raw(".text")
    d = gen(a)
    a.l = annotate(a.l)
    open(sys.argv[1], "w").write(a.text() + d)
```

```python
import math, struct, sys

def f2u(x): return struct.unpack("<I", struct.pack("<f", x))[0]
CSCALE = 0.25 * math.log2(math.e)
O_OFF = 5 << 20
FKV_OFF = 7 << 20
FO_OFF = (7 << 20) + (256 << 10)
WB = 65536
R3 = 131072
SPIN_MAX = 1 << 16
OPT = dict(probe=0, ppos=0, cpos=16, ksc=0, fsc=0, psc=0, hpad=0, wrot=1, rotm=2, qmap=0, opre2=0, osc=0, one=0, sched=0, ipf=1, qpf=1, stamp=0, drop=6, fstep=5, order=0)

class Asm:
    def __init__(self): self.l = []
    def __call__(self, s, c=None): self.l.append("    " + s + (" " * max(1, 74 - len(s)) + "; " + c if c else ""))
    def label(self, s): self.l.append(s + ":")
    def raw(self, s): self.l.append(s)
    def c(self, s):
        for t in s.split("\n"): self.l.append("    ; " + t)
    def text(self): return "\n".join(self.l) + "\n"
def vr(a, n): return f"v[{a}:{a+n-1}]"

vST_RT, vST_CY = 252, 253
STAMPS = {1: None, 3: (7, 11), 4: (7, 15, 8, 9, 21, 10, 17, 11), 5: (3, 24, 5, 22, 23, 19, 7, 11), 7: (2, 3, 5, 7, 11), 8: (12, 13, 20, 1, 2, 3, 11), 6: (12, 2, 25, 26, 27, 28, 29, 30, 31, 3, 11)}
def stamp(a, i):
    m = OPT["stamp"]
    if OPT["probe"] == i:
        a("s_memrealtime s[80:81]"); a("s_waitcnt lgkmcnt(0)")
        return True
    if not m or (STAMPS[m] is not None and i not in STAMPS[m] and i != OPT['one']): return False
    a("s_memrealtime s[80:81]"); a("s_memtime s[82:83]"); a("s_waitcnt lgkmcnt(0)")
    a(f"v_writelane_b32 v{vST_RT}, s80, {i}"); a(f"v_writelane_b32 v{vST_CY}, s82, {i}")
    return True
def stamp_out(a):
    a(f"s_add_u32 s76, s20, {hex(16<<20)}"); a("s_addc_u32 s77, s21, 0"); a("s_mov_b32 s78, 0x100000"); a("s_mov_b32 s79, 0x00020000")
    a("s_lshl_b32 s80, s2, 3"); a("s_add_u32 s80, s80, s42"); a("s_lshl_b32 s80, s80, 8")
    a("v_lshlrev_b32 v1, 2, v0"); a("s_mov_b32 exec_hi, 0")
    a(f"buffer_store_dword v{vST_RT}, v1, s[76:79], s80 offen"); a(f"buffer_store_dword v{vST_CY}, v1, s[76:79], s80 offen offset:128")

X, W, WS, WO, OUT, DBG, KS = "s[12:15]", "s[16:19]", "s[20:23]", "s[24:27]", "s[28:31]", "s[32:35]", "s[76:79]"
sQUAD, sRB, sWAVE, sHD, sTT, sSLOT = "s40", "s41", "s42", "s43", "s44", "s45"
NONCE, VMASK = "s[46:47]", "s[48:49]"
sKVOWN, sKVH, sW1K, sHEAD, sQT, sOOWN, sOQ, sCB, sOST, sPOLL = "s50", "s51", "s52", "s56", "s57", "s58", "s60", "s61", "s62", "s63"
def sXT(p): return f"s{84+p}"
def sWT(p): return f"s{92+p}"
vL16, vIDX, vXD, vWD, vXR0, vXR1, vWR, vVO = 2, 3, 4, 5, 6, 7, 8, 9
AK, AV, AQ = 16, 24, 32
FW = [[40, 44, 48, 52], [32, 36, 104, 108]]
KV = [56, 68, 80, 92]
QA, QB = 104, 108
XF = 112
O = [112, 128]; S = [144, 160]
vWO, vPOLL, vPD, vKPOS, vKG, vVG, vWQ, vT, vWR4 = 240, 242, 244, 246, 247, 248, 249, 250, 254
vA = [[16, 17], [18, 19]]; vBO, vSTO, vOWN, vFL = 20, 21, 22, 23

HEADER = """; Multi-head attention block (B=1, S=2048, D=512, H=32, Dh=16) in ONE launch:
;   qkv = x @ wqkv ; o = softmax(q k^T / 4) v ; out = o @ wo
; Kernarg: x(0) wqkv(8) wo(16) out(24) debug(32) ws(40).  Generated by gen/gen_final.py.
; @launch grid=(256,1,1) block=(512,1,1) lds=163840
;
; Workgroup (quad, rb) = 4 heads x 64 tokens, one per CU; wave = (head hd of the quad, half tt).
;           K/V tiles go to the workspace in MFMA-fragment order (write-through), then a flag.
;           pick the high (bf16) half of the raw fp32 P registers, with two all-ones rows appended to V^T.
"""

SC = ['sc1', 'sc0 sc1', 'sc1 nt']
def gen(a):
    name = "standalone__mha_block__prompt_kernel"
    a.raw(f".globl {name}"); a.raw(".p2align 8"); a.raw(f".type {name},@function"); a.label(name)
    a("s_cmp_ge_u32 s2, 256")
    a("s_cbranch_scc1 L_end", "workgroups past the grid leave at once")
    for d, off in ((12, 0), (16, 8), (32, 32), (20, 40), (24, 16), (28, 24)):
        a(f"s_load_dwordx2 s[{d}:{d+1}], s[0:1], {off}")
    a(f"s_memrealtime {NONCE}")
    if OPT["stamp"]: a("s_memtime s[82:83]")
    a.c("pull the rest of this kernel's code towards the L2 while the arguments are on their way")
    a("s_getpc_b64 s[76:77]")
    a.label("L_pc")
    a(f"v_lshlrev_b32 v1, {6 if OPT['ipf'] > 1 else 7}, v0")
    a(f"v_cmp_gt_u32 vcc, (L_codeend-L_pc)/{64 if OPT['ipf'] > 1 else 128}, v0")
    a("s_and_saveexec_b64 s[78:79], vcc")
    a("s_cbranch_execz L_noipf")
    if OPT["ipf"]: a(f"global_load_dword v{vT+1}, v1, s[76:77]")
    a.label("L_noipf")
    a("s_mov_b64 exec, -1")
    a("v_lshrrev_b32 v1, 6, v0")
    a("v_and_b32 v0, 63, v0", "v0 = lane")
    a(f"v_readfirstlane_b32 {sWAVE}, v1")
    a.c("quad = (wg&3)*2 + ((wg>>3)&1), rb = ((wg>>2)&1)*16 + (wg>>4): two quads per XCD under round-robin placement (speed only)")
    if OPT["qmap"] == 0:
        a("s_and_b32 s54, s2, 3")
        a("s_lshl_b32 s54, s54, 1")
        a("s_bfe_u32 s55, s2, 0x10003")
    elif OPT["qmap"] == 1:
        a("s_and_b32 s54, s2, 3")
        a("s_bfe_u32 s55, s2, 0x10003")
        a("s_lshl_b32 s55, s55, 2")
    else:
        a("s_and_b32 s54, s2, 3")
        a("s_mul_i32 s54, s54, 5")
        a("s_and_b32 s54, s54, 5")
        a("s_and_b32 s54, s2, 1")
        a("s_bfe_u32 s55, s2, 0x10001")
        a("s_lshl_b32 s55, s55, 2")
        a("s_add_u32 s54, s54, s55")
        a("s_bfe_u32 s55, s2, 0x10003")
        a("s_lshl_b32 s55, s55, 1")
    a(f"s_add_u32 {sQUAD}, s54, s55")
    a("s_bfe_u32 s54, s2, 0x10002")
    a("s_lshl_b32 s54, s54, 4")
    a("s_lshr_b32 s55, s2, 4")
    a(f"s_add_u32 {sRB}, s54, s55")
    a(f"s_and_b32 {sHD}, {sWAVE}, 3")
    a(f"s_lshr_b32 {sTT}, {sWAVE}, 2")
    a(f"s_lshl_b32 {sW1K}, {sWAVE}, 10")
    a(f"v_lshlrev_b32 v{vL16}, 4, v0")
    a.c("x DMA source: row 8w + l/8 of the block, 16-byte piece (l%8) ^ ((row>>1)&7)  (bank swizzle)")
    a("v_lshrrev_b32 v10, 3, v0")
    a("v_and_b32 v11, 7, v0")
    a("v_lshrrev_b32 v12, 4, v0")
    a(f"s_and_b32 s53, {sWAVE}, 1")
    a("s_lshl_b32 s54, s53, 2")
    a("v_xor_b32 v13, v11, v12")
    a("v_xor_b32 v13, s54, v13")
    a(f"s_lshl_b32 s55, {sWAVE}, 3")
    a("v_add_u32 v10, s55, v10")
    a(f"s_lshl_b32 s55, {sRB}, 16")
    a("v_lshlrev_b32 v14, 10, v10")
    a("v_lshl_add_u32 v14, v13, 4, v14")
    a(f"v_add_u32 v{vXD}, s55, v14")
    a.c("W DMA source: k row 8w + l/8, the quad's 128-byte line, 32-byte slot ^ (((row>>1)&1) | ((row>>3)&1)<<1)")
    a("v_and_b32 v12, 1, v12")
    a("v_lshlrev_b32 v12, 1, v12")
    a("v_xor_b32 v13, v11, v12")
    a("v_xor_b32 v13, s54, v13")
    a("v_mul_u32_u24 v14, 3072, v10")
    a("v_lshl_add_u32 v14, v13, 4, v14")
    a(f"s_lshl_b32 s55, {sQUAD}, 7")
    a(f"v_add_u32 v{vWD}, s55, v14")
    a.c("the 64-deep k chunks are walked in an order rotated per workgroup, so every line is requested early by someone")
    if OPT["rotm"] == 2: a(f"s_add_u32 s53, {sQUAD}, {sRB}")
    elif OPT["rotm"] == 1:
        a(f"s_lshl_b32 s53, {sQUAD}, 2"); a(f"s_add_u32 s53, s53, {sRB}"); a(f"s_lshr_b32 s54, {sQUAD}, 1"); a("s_add_u32 s53, s53, s54")
    elif OPT["rotm"] == 3:
        a(f"s_mul_i32 s53, {sQUAD}, 3"); a(f"s_add_u32 s53, s53, {sRB}")
    elif OPT["rotm"] == 4:
        a(f"s_lshl_b32 s53, {sQUAD}, 1"); a(f"s_add_u32 s53, s53, {sRB}"); a(f"s_lshr_b32 s54, {sQUAD}, 2"); a("s_add_u32 s53, s53, s54")
    for p in range(8):
        a("s_and_b32 s53, s53, 7")
        a(f"s_lshl_b32 {sXT(p)}, s53, 7")
        a(f"s_mul_i32 {sWT(p)}, s53, 196608")
        if p < 7: a("s_add_u32 s53, s53, 1")
    a("v_and_b32 v12, 31, v0")
    a(f"s_lshl_b32 s53, {sRB}, 5")
    a("s_and_b32 s53, s53, 511")
    a("v_add_u32 v12, s53, v12")
    a("v_mul_u32_u24 v15, 3072, v12", "this workgroup's share of the Wq lines (L2 prefetch)")
    if OPT["qpf"] > 1:
        a("v_lshrrev_b32 v12, 5, v0")
        a("v_lshl_add_u32 v15, v12, 6, v15", "this workgroup's share of the Wq lines, both halves (L2 prefetch)")
    for d, size in ((12, 2048*1024), (16, 512*3072), (32, 256), (20, 8 << 20), (24, 512*1024), (28, 2048*1024)):
        a(f"s_mov_b32 s{d+2}, {hex(size)}")
        a(f"s_mov_b32 s{d+3}, 0x00020000")
    a(f"s_mov_b32 m0, {sW1K}")
    a("s_waitcnt lgkmcnt(0)")
    if OPT["stamp"]:
        a(f"v_writelane_b32 v{vST_RT}, s46, 0"); a(f"v_writelane_b32 v{vST_CY}, s82, 0")
    stamp(a, 12)
    issued = []
    def dma_x(p, m0=True):
        if m0:
            a(f"s_add_u32 m0, {sW1K}, {p*8192}"); a("s_nop 0")
        a(f"buffer_load_dwordx4 v{vXD}, {X}, {sXT(p)} offen lds"); issued.append(("x", p))
    def dma_w(t, p, dest, tag):
        a(f"s_add_u32 m0, {sW1K}, {dest - t*1024}")
        a("s_nop 0")
        a(f"buffer_load_dwordx4 v{vWD}, {W}, {sWT(p)} offen offset:{t*1024} lds"); issued.append(tag)
    def dma_kv(p):
        dma_w(1, p, WB + (p%5)*16384, ("kv", p)); dma_w(2, p, WB + (p%5)*16384 + 8192, ("kv", p))
    QDEST = [0, 8192, 16384, 24576, 32768, WB + 3*16384, WB + 3*16384 + 8192, 40960]
    dma_x(0, False); dma_kv(0)
    a.c("launch nonce: workgroup 0, wave 0 publishes its clock reading")
    a("s_or_b32 s46, s46, 1")
    a(f"s_or_b32 s53, s2, {sWAVE}")
    a("s_cbranch_scc1 L_nonon")
    a("v_mov_b32 v10, s46"); a("v_mov_b32 v11, s47")
    a("s_mov_b64 exec, 1")
    a(f"buffer_store_dwordx2 v[10:11], off, {DBG}, 0 sc1")
    a("s_mov_b64 exec, -1")
    a.label("L_nonon")
    a(f"s_cmp_lg_u32 {sWAVE}, 7")
    a("s_cbranch_scc1 L_noqpf")
    if OPT["qpf"]: a(f"buffer_load_dword v{vT}, v15, {W}, s55 offen")
    a.label("L_noqpf")
    if OPT["order"] == 0:
        for p in range(1, 4): dma_x(p)
    elif OPT["order"] == 3:
        dma_x(1)
    stamp(a, 13)
    a.c("scalar offsets")
    a(f"s_lshl_b32 {sSLOT}, {sWAVE}, 12")
    a(f"s_add_u32 {sSLOT}, {sSLOT}, {R3}")
    a(f"s_lshl_b32 s53, {sQUAD}, 2")
    a(f"s_add_u32 {sHEAD}, s53, {sHD}")
    a(f"s_mul_i32 s53, {sHEAD}, {131072 + OPT['hpad']}")
    a(f"s_lshl_b32 s54, {sTT}, 11")
    a(f"s_add_u32 {sKVH}, s53, s54", "K/V stream of this wave: head*128K + tt*2K (+ 4K per 64 tokens)")
    a(f"s_lshl_b32 s64, {sRB}, 12")
    a(f"s_add_u32 {sKVOWN}, {sKVH}, s64")
    a(f"s_lshl_b32 s53, {sRB}, 1")
    a(f"s_add_u32 {sQT}, s53, {sTT}")
    a(f"s_lshl_b32 s53, {sQT}, 15")
    a(f"s_lshl_b32 s54, {sHEAD}, 10")
    a(f"s_add_u32 {sOOWN}, s53, s54")
    a(f"s_add_u32 {sOOWN}, {sOOWN}, {hex(O_OFF)}", "own O fragment")
    a(f"s_lshl_b32 {sPOLL}, {sQUAD}, 10")
    a(f"s_add_u32 {sPOLL}, {sPOLL}, {hex(FKV_OFF)}", "this quad's K/V flags: 32 entries, 32 bytes apart")
    a("v_and_b32 v12, 31, v0")
    a(f"v_lshlrev_b32 v{vPOLL}, 5, v12")
    a(f"s_lshr_b32 s53, {sQUAD}, 2")
    a(f"s_lshl_b32 s54, {sRB}, 1")
    a(f"s_add_u32 {sOQ}, s53, s54", "output tile: tokens of q-tile 2rb + quad/4, columns 128*((quad+rb)%4)")
    if OPT["wrot"]:
        a(f"s_add_u32 {sCB}, {sQUAD}, {sRB}")
        a(f"s_and_b32 {sCB}, {sCB}, 3")
    else:
        a(f"s_and_b32 {sCB}, {sQUAD}, 3")
    a(f"s_lshl_b32 {sCB}, {sCB}, 8")
    a(f"s_lshl_b32 s53, {sOQ}, 15")
    a(f"s_add_u32 {sOST}, s53, {sCB}")
    a(f"s_lshl_b32 s53, {sHD}, 6")
    a(f"s_add_u32 {sOST}, {sOST}, s53")
    a(f"s_lshl_b32 s53, {sTT}, 14")
    a(f"s_add_u32 {sOST}, {sOST}, s53")
    a.c("O flags: one 128-byte line per (writer, reader) pair of the eight workgroups of a row block")
    a(f"s_lshl_b32 s53, {sRB}, 3")
    a(f"s_add_u32 s54, s53, {sQUAD}")
    a("s_lshl_b32 s54, s54, 10")
    a(f"s_add_u32 s74, s54, {hex(FO_OFF)}")
    a(f"s_add_u32 s75, s53, {sWAVE}")
    a("s_lshl_b32 s75, s75, 10")
    a(f"s_lshl_b32 s54, {sQUAD}, 7")
    a("s_add_u32 s75, s75, s54")
    a(f"s_add_u32 s75, s75, {hex(FO_OFF)}")
    a(f"s_lshl_b32 s65, {sRB}, 13")
    a("s_and_b32 s65, s65, 0x1ffff")
    a("s_lshl_b32 s66, s65, 2")
    if OPT["order"] == 2:
        for p in range(1, 4): dma_x(p)
    if OPT["order"] == 3:
        dma_kv(1); dma_x(2); dma_x(3)
    a.c("LDS read addresses: x fragments (two k steps), W fragments (transposing reads)")
    a("v_and_b32 v10, 15, v0")
    a("v_lshrrev_b32 v11, 4, v0")
    a("v_bfe_u32 v12, v0, 1, 3")
    a("v_xor_b32 v12, v11, v12")
    a(f"s_lshl_b32 s53, {sTT}, 12")
    a("v_lshlrev_b32 v13, 7, v10")
    a("v_add_u32 v13, s53, v13")
    a(f"v_lshl_add_u32 v{vXR0}, v12, 4, v13")
    a(f"v_xor_b32 v{vXR1}, 64, v{vXR0}")
    a("v_bfe_u32 v12, v0, 2, 2")
    a("v_lshl_add_u32 v13, v11, 3, v12")
    a("v_lshlrev_b32 v13, 7, v13")
    a("v_bfe_u32 v14, v0, 3, 2")
    a(f"v_xor_b32 v14, {sHD}, v14")
    a("v_lshl_add_u32 v13, v14, 5, v13")
    a("v_and_b32 v14, 3, v0")
    a(f"v_lshl_add_u32 v{vWQ}, v14, 3, v13")
    a(f"v_add_u32 v{vWR}, {WB}, v{vWQ}")
    a(f"v_add_u32 v{vWR4}, {R3}, v{vWQ}")
    a.c("K/V tile = 1 KB K fragment (lane-linear) + 1 KB V^T fragments (4 x 16 lanes x 16 B)")
    a("v_lshrrev_b32 v12, 5, v0")
    a("v_lshlrev_b32 v12, 8, v12")
    a("v_lshl_add_u32 v12, v10, 4, v12")
    a(f"v_add_u32 v{vVO}, 1024, v12")
    a(f"v_add_u32 v{vKG}, {sKVH}, v{vL16}")
    a(f"v_add_u32 v{vVG}, {sKVH}, v{vVO}")
    a("v_and_b32 v12, 0x23, v0")
    a("v_bfe_u32 v13, v0, 2, 2")
    a("v_lshl_add_u32 v12, v13, 3, v12")
    a("v_bfe_u32 v13, v0, 4, 1")
    a("v_lshl_add_u32 v12, v13, 2, v12")
    a(f"v_lshlrev_b32 v{vKPOS}, 4, v12", "K rows are stored in the key order of the V^T fragments")
    a.c("Wo DMA source: row 4w + l/16, 32-byte slot ^ (row&7)")
    a(f"s_lshl_b32 s53, {sWAVE}, 2")
    a("v_add_u32 v12, s53, v11")
    a("v_and_b32 v13, 7, v12")
    a("v_lshlrev_b32 v13, 1, v13")
    a("v_xor_b32 v13, v10, v13")
    a("v_lshlrev_b32 v14, 10, v12")
    a("v_lshl_add_u32 v14, v13, 4, v14")
    a(f"v_add_u32 v{vWO}, {sCB}, v14")
    a(f"v_mov_b32 v{vIDX}, 0xdddddddd", "sparse index: elements 1 and 3 of every 4 = high halves of two fp32")
    a("s_mov_b32 s48, 0xffff"); a("s_mov_b32 s49, 0xffff", "lanes that carry V^T rows 0..15")
    a("v_and_b32 v12, 27, v0")
    a("v_cmp_eq_u32 vcc, 16, v12")
    a("v_mov_b32 v15, 0x3f803f80")
    a("s_nop 0")
    a.c("rows 16 and 20 of the V^T operand are ones (row sums), the other spare rows zero")
    for j in range(4):
        for i in range(8): a(f"v_cndmask_b32 v{KV[j]+4+i}, 0, v15, vcc")
    stamp(a, 20)
    if OPT["order"] == 1:
        dma_x(1); dma_kv(1); dma_x(2); dma_x(3); dma_kv(2)
    elif OPT["order"] == 3:
        dma_kv(2)
    else:
        dma_kv(1); dma_kv(2)
    stamp(a, 1)

    def waitvm(pred):
        last = max(i for i, t in enumerate(issued) if pred(t))
        a(f"s_waitcnt vmcnt({len(issued) - 1 - last})")
    def xf(p, s): return XF + 8*(2*p + s)
    def rd_w(base, off, r):
        a(f"ds_read_b64_tr_b16 {vr(r,2)}, v{base} offset:{off}")
        a(f"ds_read_b64_tr_b16 {vr(r+2,2)}, v{base} offset:{off + 512}")
    def readsA(p):
        fw = FW[p % 2]
        for s in range(2):
            b = vXR0 if s == 0 else vXR1; f = xf(p, s)
            a(f"ds_read_b128 {vr(f,4)}, v{b} offset:{p*8192}")
            a(f"ds_read_b128 {vr(f+4,4)}, v{b} offset:{p*8192+2048}")
            wb, wo = (vWR, (p%5)*16384) if p % 5 < 4 else (vWR4, 0)
            rd_w(wb, wo + s*4096, fw[2*s]); rd_w(wb, wo + 8192 + s*4096, fw[2*s+1])
    def mfmaA(p, s):
        f = xf(p, s); wk, wv = FW[p % 2][2*s], FW[p % 2][2*s+1]
        def c(r): return "0" if p == 0 and s == 0 else vr(r, 4)
        a(f"v_mfma_f32_16x16x32_bf16 {vr(AK,4)}, {vr(wk,4)}, {vr(f,4)}, {c(AK)}")
        a(f"v_mfma_f32_16x16x32_bf16 {vr(AK+4,4)}, {vr(wk,4)}, {vr(f+4,4)}, {c(AK+4)}")
        a(f"v_mfma_f32_16x16x32_bf16 {vr(AV,4)}, {vr(f,4)}, {vr(wv,4)}, {c(AV)}")
        a(f"v_mfma_f32_16x16x32_bf16 {vr(AV+4,4)}, {vr(f+4,4)}, {vr(wv,4)}, {c(AV+4)}")
    def grab(fn):
        n0 = len(a.l); fn(); out = a.l[n0:]; del a.l[n0:]; return out
    a.c("---- K, V.  Step p: chunk p has landed -> read its fragments, request later chunks, multiply chunk p-1.\n"
        "     A ring slot / x slot is refilled two barriers after its last reader issued (covered by lgkmcnt(0) in between).")
    QSCHED = {5: [0, 1, 2], 6: [3, 4, 5], 7: [6, 7]}
    for p in range(8):
        waitvm(lambda t: t[1] == p and t[0] in ("x", "kv"))
        a("s_barrier")
        if p == 0: stamp(a, 2)
        elif OPT["stamp"] == 6: stamp(a, 24 + p)
        if p >= 1: a("s_waitcnt lgkmcnt(0)")
        rd = grab(lambda: readsA(p))
        mf = grab(lambda: (mfmaA(p-1, 0), mfmaA(p-1, 1))) if p >= 1 else []
        dm = []
        if p + 3 < 8:
            kvl = grab(lambda: dma_kv(p + 3)); dm += [kvl[:3], kvl[3:]]
        if p + 4 < 8: dm.append(grab(lambda: dma_x(p + 4)))
        for j in QSCHED.get(p, []): dm.append(grab(lambda: dma_w(0, j, QDEST[j], ("q", j))))
        k = 0
        sc = OPT["sched"]
        if sc == 0:
            for i in range(12):
                a.l.append(rd[i])
                while k < len(mf) and k < (i + 1) * 8 // 12:
                    a.l.append(mf[k]); k += 1
                if i % 4 == 3 and i // 4 < len(dm): a.l += dm[i // 4]
        elif sc == 1:
            for i in range(12):
                if k < len(mf) and k <= i * 8 // 12:
                    a.l.append(mf[k]); k += 1
                d = dm[i // 4] if i % 4 == 2 and i // 4 < len(dm) else None
                if d: a.l.append(d[0])
                a.l.append(rd[i])
                if d: a.l.append(d[2])
            a.l += mf[k:]
        elif sc == 2:
            for d in dm: a.l += d
            for i in range(12):
                if k < len(mf) and k <= i * 8 // 12:
                    a.l.append(mf[k]); k += 1
                a.l.append(rd[i])
            a.l += mf[k:]
        elif sc == 3:
            a.l += mf[:1] + rd[:6] + mf[1:2] + rd[6:]
            rest = mf[2:]
            for i, d in enumerate(dm):
                a.l.append(d[0]); a.l += rest[2*i:2*i+1] or ["    s_nop 0"]; a.l.append(d[2]); a.l += rest[2*i+1:2*i+2]
            a.l += rest[2*len(dm):]
        assert len(dm) <= 3
        if p == 2:
            a(f"s_cmp_lg_u32 {sWAVE}, 0")
            a("s_cbranch_scc1 L_nf1")
            a(f"buffer_load_dwordx2 {vr(vPD,2)}, off, {DBG}, 0 sc1", "fetch the nonce")
            a.label("L_nf1")
    a("s_waitcnt lgkmcnt(6)")
    mfmaA(7, 0)
    a("s_waitcnt lgkmcnt(0)")
    mfmaA(7, 1)
    stamp(a, 3)
    a.c("---- publish K/V (write-through) and keep a copy of the own tile through this wave's LDS slot")
    F = 40
    a(f"v_add_u32 v10, {sSLOT}, v{vKPOS}")
    a(f"v_add_u32 v11, {sSLOT}, v{vL16}")
    a(f"v_add_u32 v12, {sSLOT}, v{vVO}")
    a("s_nop 4")
    for i in range(4): a(f"v_cvt_pk_bf16_f32 v{F+i}, v{AK+2*i}, v{AK+2*i+1}")
    for i in range(4): a(f"v_cvt_pk_bf16_f32 v{F+4+i}, v{AV+2*i}, v{AV+2*i+1}")
    a(f"v_permlane16_swap_b32 v{F}, v{F+2}")
    a(f"v_permlane16_swap_b32 v{F+1}, v{F+3}")
    a(f"buffer_store_dwordx4 {vr(F+4,4)}, v{vL16}, {WS}, {sKVOWN} offen offset:1024 " + SC[OPT["ksc"]])
    a(f"buffer_store_dwordx4 {vr(F,4)}, v{vKPOS}, {WS}, {sKVOWN} offen " + SC[OPT["ksc"]])
    a(f"ds_write_b128 v11, {vr(F+4,4)} offset:1024")
    a(f"ds_write_b128 v10, {vr(F,4)}")
    a("s_waitcnt lgkmcnt(0)")
    a(f"ds_read_b128 {vr(KV[0],4)}, v11")
    a(f"s_mov_b64 exec, {VMASK}")
    a(f"ds_read_b128 {vr(KV[0]+4,4)}, v12")
    a(f"ds_read_b128 {vr(KV[0]+8,4)}, v12 offset:512")
    a("s_mov_b64 exec, -1")
    a("s_waitcnt vmcnt(7)", "Wq chunks 0..2 (and the nonce)")
    a(f"s_cmp_lg_u32 {sWAVE}, 0")
    a("s_cbranch_scc1 L_nf2")
    a(f"s_mov_b32 s53, {SPIN_MAX}")
    a.label("L_nspin")
    a(f"v_readfirstlane_b32 s54, v{vPD}")
    a("s_sub_u32 s53, s53, 1")
    a("s_cbranch_scc1 L_ngot")
    a("s_cmp_lg_u32 s54, 0")
    a("s_cbranch_scc1 L_ngot")
    a("s_sleep 2")
    a(f"buffer_load_dwordx2 {vr(vPD,2)}, off, {DBG}, 0 sc1")
    a("s_waitcnt vmcnt(0)")
    a("s_branch L_nspin")
    a.label("L_ngot")
    a(f"v_mov_b32 v10, {R3 + 2816}")
    a(f"ds_write_b64 v10, {vr(vPD,2)}")
    a.label("L_nf2")
    a("s_waitcnt lgkmcnt(0)")
    a("s_barrier")
    stamp(a, 14)
    a(f"v_mov_b32 v10, {R3 + 2816}")
    a(f"ds_read_b64 {vr(vPD,2)}, v10")
    a.c("---- Q (the x fragments are still in registers)")
    BS = [48, 52, 16, 20, 24, 28, 40, 44]
    lgq = ["n"]
    def readsB(st):
        p, s = divmod(st, 2); d = QDEST[p]
        if d < WB: rd_w(vWQ, d + s*4096, BS[st % 8])
        else: rd_w(vWR, d - WB + s*4096, BS[st % 8])
        lgq.extend([st, st])
    FS = OPT["fstep"]; nxt = 0
    a(f"s_lshl_b32 s54, {sRB}, 5")
    a(f"s_add_u32 s53, {sPOLL}, s54")
    for st in range(16):
        if st == FS:
            a("s_waitcnt vmcnt(0)")
            if stamp(a, 18): del lgq[:]
            a("s_barrier", "every wave's K/V is written through, all of Wq has landed")
            a(f"s_cmp_lg_u32 {sWAVE}, 0")
            a("s_cbranch_scc1 L_nflag")
            a("s_mov_b64 exec, 1")
            a(f"buffer_store_dwordx2 {vr(vPD,2)}, off, {WS}, s53 " + SC[OPT["fsc"]], "K/V flag of this workgroup")
            a("s_mov_b64 exec, -1")
            a.label("L_nflag")
            if stamp(a, 24): del lgq[:]
        while nxt < min(6 if st < FS else 16, st + 6):
            readsB(nxt); nxt += 1
        if st in lgq:
            last = max(i for i, t in enumerate(lgq) if t == st)
            a(f"s_waitcnt lgkmcnt({len(lgq) - 1 - last})"); del lgq[:last + 1]
        if st == 0:
            a(f"v_readfirstlane_b32 s46, v{vPD}")
            a(f"v_readfirstlane_b32 s47, v{vPD+1}")
        f = XF + 8*st; w = BS[st % 8]
        c0, c1 = ("0", "0") if st == 0 else (vr(AQ,4), vr(AQ+4,4))
        a(f"v_mfma_f32_16x16x32_bf16 {vr(AQ,4)}, {vr(w,4)}, {vr(f,4)}, {c0}")
        a(f"v_mfma_f32_16x16x32_bf16 {vr(AQ+4,4)}, {vr(w,4)}, {vr(f+4,4)}, {c1}")
        if st == 2:
            for i in range(4): a(f"v_mov_b32 v{12+i}, 0")
        if st == 3:
            a(f"v_mfma_f32_32x32x16_bf16 {vr(O[0],16)}, v[12:15], v[12:15], 0", "clear the O accumulators")
            a(f"v_mfma_f32_32x32x16_bf16 {vr(O[1],16)}, v[12:15], v[12:15], 0")
    if OPT["ppos"] == 1: a(f"buffer_load_dwordx2 {vr(vT,2)}, v{vPOLL}, {WS}, {sPOLL} offen sc1")
    a(f"s_xor_b32 s53, {sSLOT}, 16384")
    a(f"s_mov_b32 s54, {hex(f2u(CSCALE))}", "log2(e)/4 goes into Q")
    a(f"v_add_u32 v10, s53, v{vL16}")
    a("s_mov_b64 s[76:77], s[20:21]")
    a("s_mov_b32 s78, s22")
    a("s_mov_b32 s79, 0x00020000")
    a("s_mov_b32 s67, 8")
    a("s_nop 0")
    for i in range(0, 8, 2): a(f"v_pk_mul_f32 {vr(AQ+i,2)}, s[54:55], {vr(AQ+i,2)} op_sel_hi:[0,1]")
    for i in range(4): a(f"v_cvt_pk_bf16_f32 v{QB+i}, v{AQ+2*i}, v{AQ+2*i+1}")
    a("s_nop 1")
    a(f"v_permlane16_swap_b32 v{QB}, v{QB+2}")
    a(f"v_permlane16_swap_b32 v{QB+1}, v{QB+3}")
    a(f"ds_write_b128 v10, {vr(QB,4)} offset:3072", "the partner wave needs this Q tile too")
    def qk(j, q, c="0.15915494"): a(f"v_mfma_f32_32x32x16_bf16 {vr(S[q],16)}, {vr(KV[j],4)}, {vr(QA if q == 0 else QB,4)}, {c}")
    def pv0(j, q): a(f"v_smfmac_f32_32x32x32_bf16 {vr(O[q],16)}, {vr(KV[j]+4,4)}, {vr(S[q],8)}, v{vIDX}")
    def pv1(j, q): a(f"v_smfmac_f32_32x32x32_bf16 {vr(O[q],16)}, {vr(KV[j]+8,4)}, {vr(S[q]+8,8)}, v{vIDX}")
    def ex(q, i): a(f"v_exp_f32 v{S[q]+i}, v{S[q]+i}")
    def poll_kv(): a(f"buffer_load_dwordx2 {vr(vT,2)}, v{vPOLL}, {WS}, {sPOLL} offen sc1")
    a(f"s_mov_b32 s53, {SPIN_MAX}")
    a.c("the constant added to every score (1/2pi) cancels in the normalisation; it keeps exp2(0) off a bf16 step")
    qk(0, 1)
    stamp(a, 16)
    a("s_waitcnt lgkmcnt(0)")
    a("s_barrier")
    a(f"ds_read_b128 {vr(QA,4)}, v11 offset:3072")
    if OPT["ppos"] == 0: poll_kv()
    else: a("s_nop 0")
    stamp(a, 5)
    a("s_nop 7")
    a.c("---- attention on the own key tile while the other workgroups' flags arrive")
    ex(1, 0); ex(1, 1); ex(1, 2); ex(1, 3)
    a("s_waitcnt lgkmcnt(0)")
    qk(0, 0)
    for i in range(4, 10): ex(1, i)
    pv0(0, 1)
    for i in range(10, 16): ex(1, i)
    def unit01():
        for i in range(16):
            if i == 11: pv0(0, 0)
            ex(0, i)
        a("s_nop 1")
        pv1(0, 0)
    def ldK(j):
        a("s_add_u32 s64, s64, 4096"); a("s_and_b32 s64, s64, 0x1ffff")
        a(f"buffer_load_dwordx4 {vr(KV[j],4)}, v{vKG}, {KS}, s64 offen sc1")
    def ldV(j):
        a(f"s_mov_b64 exec, {VMASK}")
        a(f"buffer_load_dwordx4 {vr(KV[j]+4,4)}, v{vVG}, {KS}, s64 offen sc1")
        a(f"buffer_load_dwordx4 {vr(KV[j]+8,4)}, v{vVG}, {KS}, s64 offen offset:512 sc1")
        a("s_mov_b64 exec, -1")
    def first_loads():
        for j in (1, 2, 3): ldK(j); ldV(j)
    a("s_waitcnt vmcnt(0)")
    a(f"v_cmp_eq_u64 vcc, {NONCE}, {vr(vT,2)}")
    a("s_nop 1")
    a("s_cmp_eq_u64 vcc, -1")
    a("s_cbranch_scc0 L_late")
    stamp(a, 22); stamp(a, 23)
    first_loads()
    unit01()
    a("s_branch L_go")
    a.label("L_late")
    stamp(a, 22)
    poll_kv()
    unit01()
    a.label("L_kvspin")
    a("s_waitcnt vmcnt(0)")
    a(f"v_cmp_eq_u64 vcc, {NONCE}, {vr(vT,2)}")
    a("s_sub_u32 s53, s53, 1")
    a("s_cbranch_scc1 L_kvgo")
    a("s_cmp_eq_u64 vcc, -1")
    a("s_cbranch_scc1 L_kvgo")
    a("s_sleep 1")
    poll_kv()
    a("s_branch L_kvspin")
    a.label("L_kvgo")
    stamp(a, 23)
    first_loads()
    a.label("L_go")
    a.c("phase-3 addresses: wave = (32-column pair w&3, 16-token half w>>2)")
    a("v_lshrrev_b32 v12, 5, v0")
    a("v_bfe_u32 v13, v0, 2, 3")
    a("v_lshl_add_u32 v14, v12, 4, v13")
    a("v_lshlrev_b32 v14, 8, v14")
    a(f"s_lshl_b32 s54, {sHD}, 1")
    a("v_xor_b32 v13, s54, v13")
    a("v_lshl_add_u32 v14, v13, 5, v14")
    a("v_and_b32 v13, 3, v0")
    a(f"v_lshl_add_u32 v{vA[0][0]}, v13, 3, v14")
    a(f"v_add_u32 v{vA[0][1]}, 65536, v{vA[0][0]}")
    a(f"v_xor_b32 v{vA[1][0]}, 32, v{vA[0][0]}")
    a(f"v_xor_b32 v{vA[1][1]}, 32, v{vA[0][1]}")
    a("v_and_b32 v10, 15, v0")
    a("v_lshrrev_b32 v13, 4, v0")
    a("v_lshlrev_b32 v14, 9, v13")
    a("v_lshl_add_u32 v14, v10, 4, v14")
    a(f"s_lshl_b32 s54, {sTT}, 8")
    a(f"s_add_u32 s54, s54, {R3}")
    a(f"v_add_u32 v{vBO}, s54, v14")
    a("v_lshlrev_b32 v14, 10, v10")
    a("v_lshl_add_u32 v14, v12, 4, v14")
    a("v_and_b32 v13, 1, v13")
    a(f"v_lshl_add_u32 v{vSTO}, v13, 5, v14")
    a(f"s_lshl_b32 s53, {sQUAD}, 12")
    a(f"s_lshl_b32 s54, {sHD}, 10")
    a("s_add_u32 s53, s53, s54")
    a(f"s_add_u32 s53, s53, {R3}")
    a(f"v_add_u32 v{vOWN}, s53, v{vL16}")
    a(f"v_lshlrev_b32 v{vFL}, 7, v0")
    a(f"s_xor_b32 s54, {sSLOT}, 16384")
    a(f"v_add_u32 v24, s54, v{vL16}")
    a("v_lshlrev_b32 v14, 2, v0")
    a("v_add_u32 v25, s54, v14")
    a(f"v_add_u32 v26, {sSLOT}, v14")
    stamp(a, 6)
    a.c("the two waves of a SIMD take turns leading so that both stay runnable to the end")
    a(f"s_cmp_lg_u32 {sTT}, 1")
    a("s_cbranch_scc1 L_noprio")
    a("s_setprio 1")
    a.label("L_noprio")
    a("s_waitcnt vmcnt(6)")
    qk(1, 0)
    a("s_nop 7")
    a("s_nop 2")
    stamp(a, 19)
    a("s_branch L_loop1")
    a.raw(".p2align 6")
    a.c("---- 31 remote key tiles (entered at the second quarter), three tiles in flight")
    a.label("L_loop")
    for u in range(4):
        if u == 1:
            a.label("L_loop1")
            a(f"s_cmp_lg_u32 s67, {8 - OPT['drop']}")
            a("s_cbranch_scc1 L_nodrop")
            a("s_setprio 0")
            a(f"buffer_load_dwordx2 {vr(vT,2)}, off, {WS}, s75 sc1", "first touch of the O flag line")
            if OPT["opre2"] == 1: a(f"buffer_load_dword v{vT}, v{vL16}, {WS}, {sOOWN} offen sc1")
            if OPT["opre2"] == 2: a(f"buffer_store_dwordx4 {vr(QA,4)}, v{vL16}, {WS}, {sOOWN} offen sc1")
            a.label("L_nodrop")
            a("s_cmp_eq_u32 s67, 1")
            a("s_cselect_b32 s78, 0, s78", "the last three prefetches have no consumer: out of range")
        pj = (u - 1) % 4; nj = (u + 1) % 4
        for i in range(16):
            if i == 2: pv1(pj, 1)
            if i == 3: ldK(pj)
            if i == 5: qk(u, 1)
            if i == 7: ldV(pj)
            if i == 11: pv0(u, 0)
            ex(0, i)
        for i in range(16):
            if i == 2: pv1(u, 0)
            if i == 5:
                a("s_waitcnt vmcnt(6)"); qk(nj, 0)
            if i == 11: pv0(u, 1)
            if u == 3 and i == 14:
                a("s_cmp_lg_u32 s67, 1")
                a("s_cbranch_scc1 L_nopart")
                a(f"ds_write_b128 v24, {vr(O[0],4)}", "last pass: the partner's q-tile is final here, hand it over")
                a(f"ds_write_b128 v24, {vr(O[0]+4,4)} offset:1024")
                a(f"ds_write_b32 v25, v{O[0]+8} offset:2048")
                a.label("L_nopart")
            ex(1, i)
    a("s_cmp_le_u32 s67, 4")
    a("s_cbranch_scc1 L_nowo")
    for i in range(4):
        a(f"s_add_u32 m0, s65, {sW1K}", "a quarter of this workgroup's Wo slice per pass" if i == 0 else None)
        a("s_add_u32 s65, s65, 8192")
        a(f"buffer_load_dwordx4 v{vWO}, {WO}, s66 offen lds")
        a("s_and_b32 s65, s65, 0x1ffff")
        a("s_lshl_b32 s66, s65, 2")
    a.label("L_nowo")
    a("s_sub_u32 s67, s67, 1")
    a("s_cmp_lg_u32 s67, 0")
    a("s_cbranch_scc1 L_loop")
    pv1(3, 1)
    stamp(a, 7)
    a.c("---- merge the two key halves: each wave keeps its own q-tile")
    a(f"s_lshl_b32 s54, {sOQ}, 15")
    a(f"s_lshl_b32 s55, {sWAVE}, 12")
    a("s_add_u32 s54, s54, s55")
    a(f"s_add_u32 s64, s54, {hex(O_OFF)}")
    a("s_waitcnt vmcnt(0) lgkmcnt(0)")
    a("s_barrier", "(also: all of Wo is in LDS)")
    stamp(a, 15)
    a(f"ds_read_b32 v{S[0]+8}, v26 offset:2048")
    a(f"ds_read_b128 {vr(S[0],4)}, v11")
    a(f"ds_read_b128 {vr(S[0]+4,4)}, v11 offset:1024")
    a(f"v_mov_b32 v13, {hex(f2u(2.0**-20))}")
    a(f"v_mov_b32 v1, {hex(f2u(2.0**60))}")
    a("s_nop 0")
    a("s_waitcnt lgkmcnt(2)")
    a(f"v_add_f32 v{O[1]+8}, v{O[1]+8}, v{S[0]+8}")
    a(f"v_rcp_f32 v14, v{O[1]+8}")
    a("s_waitcnt lgkmcnt(0)")
    PK = 40
    def finish(add):
        if add:
            for i in range(0, 8, 2): a(f"v_pk_add_f32 {vr(O[1]+i,2)}, {vr(O[1]+i,2)}, {vr(S[0]+i,2)}")
        for i in range(0, 8, 2): a(f"v_pk_mul_f32 {vr(S[0]+i,2)}, v[14:15], {vr(O[1]+i,2)} op_sel_hi:[0,1]")
        for i in range(4): a(f"v_cvt_pk_bf16_f32 v{PK+i}, v{S[0]+2*i}, v{S[0]+2*i+1}")
        a(f"buffer_store_dwordx4 {vr(PK,4)}, v{vL16}, {WS}, {sOOWN} offen " + ["sc1", "sc0 sc1", "sc1 nt"][OPT["osc"]])
    finish(True)
    a.c("unshifted exponentials are exact enough iff 2^-20 <= row sum <= 2^60 and every accumulator is finite;\n"
        "otherwise redo with the true row max (nothing is flagged before the next barrier)")
    a(f"v_cmp_ge_f32 s[68:69], v{O[1]+8}, v13")
    a(f"v_cmp_le_f32 s[70:71], v{O[1]+8}, v1")
    a(f"v_mul_f32 v14, 0, v{O[1]}")
    for i in range(1, 8): a(f"v_fma_f32 v14, v{O[1]+i}, 0, v14")
    a("v_cmp_o_f32 vcc, v14, v14")
    a("s_and_b64 s[68:69], s[68:69], s[70:71]")
    a("s_nop 1")
    a("s_and_b64 s[68:69], s[68:69], vcc")
    a("s_cmp_eq_u64 s[68:69], -1")
    a("s_cbranch_scc0 L_fallback")
    a.label("L_fin")
    def poll_f(): a(f"buffer_load_dwordx2 {vr(vT,2)}, off, {WS}, s75 sc1")
    WF = 112
    wo_list = [(i, s_) for s_ in range(15, -1, -1) for i in range(2)]
    def rdWo(n):
        for _ in range(n):
            i, s_ = wo_list.pop(0)
            b = vA[i][s_ // 8]; o = (s_ % 8) * 8192; r = WF + 64*i + 4*s_
            a(f"ds_read_b64_tr_b16 {vr(r,2)}, v{b} offset:{o}")
            a(f"ds_read_b64_tr_b16 {vr(r+2,2)}, v{b} offset:{o+2048}")
    a.c("---- hand O over; the Wo fragments move to registers meanwhile")
    rdWo(7)
    a("s_waitcnt lgkmcnt(2)")
    rdWo(6)
    a("s_waitcnt vmcnt(0)")
    a("s_barrier", "every wave's O fragment is written through")
    a(f"s_cmp_lg_u32 {sWAVE}, {sQUAD}")
    a("s_cbranch_scc1 L_noflag")
    a("s_mov_b64 exec, 0xff")
    a(f"buffer_store_dwordx2 {vr(vPD,2)}, v{vFL}, {WS}, s74 offen " + SC[OPT["fsc"]], "wave == quad has nothing to fetch: it flags")
    a("s_mov_b64 exec, -1")
    a("s_branch L_flagged")
    a.label("L_noflag")
    poll_f()
    a.label("L_flagged")
    stamp(a, 8)
    a(f"s_lshr_b32 s53, {sQUAD}, 2")
    a(f"s_cmp_lg_u32 s53, {sTT}")
    a("s_waitcnt lgkmcnt(0)")
    a("s_cbranch_scc1 L_noown")
    a(f"ds_write_b128 v{vOWN}, {vr(PK,4)}", "this workgroup's own heads go straight to their staging slot")
    a.label("L_noown")
    rdWo(7)
    a("s_waitcnt lgkmcnt(2)")
    rdWo(6)
    a(f"s_mov_b32 m0, {sSLOT}")
    a("s_waitcnt lgkmcnt(2)")
    rdWo(6)
    a(f"s_mov_b32 s53, {SPIN_MAX}")
    a(f"s_cmp_eq_u32 {sWAVE}, {sQUAD}")
    a("s_cbranch_scc1 L_oskip")
    a("s_branch L_ochk")
    a.label("L_ospin")
    poll_f()
    a.label("L_ochk")
    a("s_waitcnt vmcnt(0)")
    a(f"v_cmp_eq_u64 vcc, {NONCE}, {vr(vT,2)}")
    a("s_sub_u32 s53, s53, 1")
    a("s_cbranch_scc1 L_ogo")
    a("s_cmp_eq_u64 vcc, -1")
    a("s_cbranch_scc0 L_ospin")
    a.label("L_ogo")
    stamp(a, 9)
    for i in range(4):
        a(f"buffer_load_dwordx4 v{vL16}, {WS}, s64 offen offset:{i*1024} sc1 lds")
    a("s_waitcnt vmcnt(0)")
    stamp(a, 21)
    a.label("L_oskip")
    a("s_waitcnt lgkmcnt(0)")
    a("s_barrier")
    stamp(a, 10)
    a.c("---- output projection: 16 tokens x 32 columns per wave, two heads per step")
    ACC = 32; NB = 7
    def rd3(s_): a(f"ds_read_b128 {vr(44 + 4*(s_ % (NB+1)),4)}, v{vBO} offset:{s_*2048}")
    for s_ in range(NB): rd3(s_)
    for s_ in range(16):
        if s_ + NB < 16:
            rd3(s_ + NB); a(f"s_waitcnt lgkmcnt({NB})")
        else:
            a(f"s_waitcnt lgkmcnt({15 - s_})")
        f = 44 + 4*(s_ % (NB+1))
        for i in range(2):
            a(f"v_mfma_f32_16x16x32_bf16 {vr(ACC+4*i,4)}, {vr(WF+64*i+4*s_,4)}, {vr(f,4)}, " + ("0" if s_ == 0 else vr(ACC+4*i,4)))
    a("s_nop 7")
    for i in range(4): a(f"v_cvt_pk_bf16_f32 v{PK+i}, v{ACC+2*i}, v{ACC+2*i+1}")
    a("s_nop 1")
    a(f"v_permlane16_swap_b32 v{PK}, v{PK+2}")
    a(f"v_permlane16_swap_b32 v{PK+1}, v{PK+3}")
    a(f"buffer_store_dwordx4 {vr(PK,4)}, v{vSTO}, {OUT}, {sOST} offen nt")
    if OPT["probe"]:
        stamp(a, 17)
        a("s_memrealtime s[82:83]"); a("s_waitcnt lgkmcnt(0)")
        a("s_sub_u32 s80, s80, s46"); a("s_max_i32 s80, s80, 0"); a("s_min_i32 s80, s80, 4000")
        a("s_lshl_b32 s80, s80, 2"); a("s_add_u32 s80, s80, s82")
        a.label("L_probe")
        a("s_sleep 4"); a("s_memrealtime s[82:83]"); a("s_waitcnt lgkmcnt(0)")
        a("s_sub_u32 s82, s82, s80"); a("s_cmp_lt_i32 s82, 0"); a("s_cbranch_scc1 L_probe")
    if OPT["stamp"]:
        stamp(a, 17)
        a("s_waitcnt vmcnt(0)")
        stamp(a, 11); stamp_out(a)
    a.label("L_end")
    a("s_endpgm")
    a.c("---- fallback (rare): exact row max over all keys, then this q-tile again with it subtracted")
    a.label("L_fallback")
    a(f"s_mul_i32 s53, {sHEAD}, {131072 + OPT['hpad']}")
    a("s_mov_b32 s54, 0")
    a("v_mov_b32 v14, 0xff800000")
    a.label("L_fb1")
    a(f"buffer_load_dwordx4 {vr(KV[0],4)}, v{vL16}, {WS}, s53 offen sc1")
    a("s_waitcnt vmcnt(0)")
    qk(0, 1, "0")
    a("s_add_u32 s53, s53, 2048")
    a("s_add_u32 s54, s54, 1")
    a("s_nop 7"); a("s_nop 3")
    for i in range(8): a(f"v_max3_f32 v14, v{S[1]+2*i}, v{S[1]+2*i+1}, v14")
    a("s_cmp_lt_u32 s54, 64")
    a("s_cbranch_scc1 L_fb1")
    a("v_mov_b32 v1, v14")
    a("s_nop 1")
    a("v_permlane32_swap_b32 v14, v1")
    a("s_nop 1")
    a("v_max_f32 v14, v14, v1")
    for i in range(16): a(f"v_sub_f32 v{S[0]+i}, 0, v14")
    for i in range(16): a(f"v_mov_b32 v{O[1]+i}, 0")
    a(f"s_mul_i32 s53, {sHEAD}, {131072 + OPT['hpad']}")
    a("s_mov_b32 s54, 0")
    a.label("L_fb2")
    a(f"buffer_load_dwordx4 {vr(KV[0],4)}, v{vL16}, {WS}, s53 offen sc1")
    a(f"s_mov_b64 exec, {VMASK}")
    a(f"buffer_load_dwordx4 {vr(KV[0]+4,4)}, v{vVO}, {WS}, s53 offen sc1")
    a(f"buffer_load_dwordx4 {vr(KV[0]+8,4)}, v{vVO}, {WS}, s53 offen offset:512 sc1")
    a("s_mov_b64 exec, -1")
    a("s_waitcnt vmcnt(0)")
    qk(0, 1, vr(S[0], 16))
    a("s_add_u32 s53, s53, 2048")
    a("s_add_u32 s54, s54, 1")
    a("s_nop 7"); a("s_nop 3")
    for i in range(16): ex(1, i)
    a("s_nop 1")
    pv0(0, 1); pv1(0, 1)
    a("s_cmp_lt_u32 s54, 64")
    a("s_cbranch_scc1 L_fb2")
    a("s_nop 7"); a("s_nop 7")
    a(f"v_rcp_f32 v14, v{O[1]+8}")
    a("s_nop 0")
    finish(False)
    a("s_branch L_fin")
    a.label("L_codeend")
    return f""".section .rodata,"a"
.p2align 6
.amdhsa_kernel {name}
  .amdhsa_next_free_vgpr 256
  .amdhsa_next_free_sgpr 100
  .amdhsa_accum_offset 256
  .amdhsa_group_segment_fixed_size 0
  .amdhsa_kernarg_size 48
  .amdhsa_user_sgpr_count 2
  .amdhsa_user_sgpr_kernarg_segment_ptr 1
  .amdhsa_system_sgpr_workgroup_id_x 1
.end_amdhsa_kernel
"""

def annotate(lines):
    def op(t): return t.split(";")[0].strip()
    out = list(lines)
    for i, t in enumerate(lines):
        o = op(t)
        if ";" in t or not o.startswith(("s_nop", "s_sleep")): continue
        prev = op(lines[i-1]); j = i + 1
        while op(lines[j]).startswith("s_nop") or not op(lines[j]) or op(lines[j]).endswith(":"): j += 1
        nxt = op(lines[j])
        if o.startswith("s_sleep"): c = "back off between polls"
        elif " m0," in prev: c = "wait state: M0 write -> LDS-DMA"
        elif nxt.startswith("v_permlane") or prev.startswith("v_permlane"): c = "wait states: VALU write <-> v_permlane"
        elif nxt.startswith(("s_cmp_eq_u64", "s_and_b64", "v_cndmask")): c = "wait states: VALU-written mask"
        elif prev.startswith("v_rcp"): c = "wait state: transcendental result"
        elif nxt.startswith("v_smfmac"): c = "wait states: VALU write -> MFMA operand"
        else: c = "wait states: MFMA result -> VALU / LDS read"
        out[i] = t + " " * max(1, 78 - len(t)) + "; " + c
    return out

if __name__ == "__main__":
    for kv in sys.argv[2:]:
        k, v = kv.split("="); assert k in OPT, k; OPT[k] = int(v)
    a = Asm()
    a.raw(HEADER.rstrip("\n"))
    a.raw('.amdgcn_target "amdgcn-amd-amdhsa--gfx950"')
    a.raw(".text")
    d = gen(a)
    a.l = annotate(a.l)
    open(sys.argv[1], "w").write(a.text() + d)
```

```python
import math, struct, sys

def f2u(x): return struct.unpack("<I", struct.pack("<f", x))[0]
CSCALE = 0.25 * math.log2(math.e)
O_OFF = 5 << 20
FKV_OFF = 7 << 20
FO_OFF = (7 << 20) + (256 << 10)
WB = 65536
R3 = 131072
SPIN_MAX = 1 << 16
OPT = dict(probe=0, lb=0, nb=3, ls=0, lr=1, tp=0, le=0, lpr=1, dcnt=1, dsub=0, dq=3, lead=0, x2=7, lp=10, ep=15, xs=11, x1=4, fo=0, hpad=0, wrot=1, rotm=2, qmap=0, opre2=0, osc=0, one=0, sched=0, ipf=1, qpf=1, stamp=0, drop=6, fstep=5, order=0)

class Asm:
    def __init__(self): self.l = []
    def __call__(self, s, c=None): self.l.append("    " + s + (" " * max(1, 74 - len(s)) + "; " + c if c else ""))
    def label(self, s): self.l.append(s + ":")
    def raw(self, s): self.l.append(s)
    def c(self, s):
        for t in s.split("\n"): self.l.append("    ; " + t)
    def text(self): return "\n".join(self.l) + "\n"
def vr(a, n): return f"v[{a}:{a+n-1}]"

vST_RT, vST_CY = 252, 253
STAMPS = {1: None, 3: (7, 11), 4: (7, 15, 8, 9, 21, 10, 17, 11), 5: (3, 14, 18, 16, 5, 23, 19, 7, 11), 7: (2, 3, 5, 7, 11), 8: (12, 13, 20, 1, 2, 3, 11), 6: (12, 2, 25, 26, 27, 28, 29, 30, 31, 3, 11)}
def stamp(a, i):
    m = OPT["stamp"]
    if OPT["probe"] == i:
        a("s_memrealtime s[80:81]"); a("s_waitcnt lgkmcnt(0)")
        return True
    if not m or (STAMPS[m] is not None and i not in STAMPS[m] and i != OPT['one']): return False
    a("s_memrealtime s[80:81]"); a("s_memtime s[82:83]"); a("s_waitcnt lgkmcnt(0)")
    a(f"v_writelane_b32 v{vST_RT}, s80, {i}"); a(f"v_writelane_b32 v{vST_CY}, s82, {i}")
    return True
def stamp_out(a):
    a(f"s_add_u32 s76, s20, {hex(16<<20)}"); a("s_addc_u32 s77, s21, 0"); a("s_mov_b32 s78, 0x100000"); a("s_mov_b32 s79, 0x00020000")
    a("s_lshl_b32 s80, s2, 3"); a("s_add_u32 s80, s80, s42"); a("s_lshl_b32 s80, s80, 8")
    a("v_lshlrev_b32 v1, 2, v0"); a("s_mov_b32 exec_hi, 0")
    a(f"buffer_store_dword v{vST_RT}, v1, s[76:79], s80 offen"); a(f"buffer_store_dword v{vST_CY}, v1, s[76:79], s80 offen offset:128")

X, W, WS, WO, OUT, DBG, KS = "s[12:15]", "s[16:19]", "s[20:23]", "s[24:27]", "s[28:31]", "s[32:35]", "s[76:79]"
sQUAD, sRB, sWAVE, sHD, sTT, sSLOT = "s40", "s41", "s42", "s43", "s44", "s45"
NONCE, VMASK = "s[46:47]", "s[48:49]"
sKVOWN, sKVH, sW1K, sHEAD, sQT, sOOWN, sOQ, sCB, sOST, sPOLL = "s50", "s51", "s52", "s56", "s57", "s58", "s60", "s61", "s62", "s63"
def sXT(p): return f"s{84+p}"
def sWT(p): return f"s{92+p}"
vL16, vIDX, vXD, vWD, vXR0, vXR1, vWR, vVO = 2, 3, 4, 5, 6, 7, 8, 9
AK, AV, AQ = 16, 24, 32
FW = [[40, 44, 48, 52], [32, 36, 104, 108]]
KV = [56, 68, 80]
Q = [92, 96, 104, 108]; QP = 100
XF = 112
O = [112, 128, 144, 160]; S = [176, 192]
AUX = 98304
vMO = [24, 25, 26]; vML = [27, 28, 29]; vRA, vRL, vP2, vLP = 30, 31, 241, 243
sHP, sKQ, sHH, sL, sF = "s59", "s72", "s73", "s39", "s11"
vWO, vPOLL, vPD, vKPOS, vKG, vVG, vWQ, vT, vWR4 = 240, 242, 244, 246, 247, 248, 249, 250, 254
vA = [[16, 17], [18, 19]]; vBO, vSTO, vOWN, vFL = 20, 21, 22, 23

HEADER = """; Multi-head attention block (B=1, S=2048, D=512, H=32, Dh=16) in ONE launch:
;   qkv = x @ wqkv ; o = softmax(q k^T / 4) v ; out = o @ wo
; Kernarg: x(0) wqkv(8) wo(16) out(24) debug(32) ws(40).  Generated by gen/gen_e.py.
; @launch grid=(256,1,1) block=(512,1,1) lds=163840
;
; Workgroup (quad, rb) = 4 heads x 64 tokens, one per CU; wave = (head hd of the quad, half tt).
;           K/V tiles go to the workspace in MFMA-fragment order (write-through), then a flag.
;  phase 2  attention: wave (hd,tt) runs both 32-query tiles of head hd over the key tiles of parity tt.
;           pick the high (bf16) half of the raw fp32 P registers, with two all-ones rows appended to V^T.
;           No max is subtracted on this path; a check on the row sum / accumulators sends any tile for which
"""

def gen(a):
    name = "standalone__mha_block__prompt_kernel"
    a.raw(f".globl {name}"); a.raw(".p2align 8"); a.raw(f".type {name},@function"); a.label(name)
    a("s_cmp_ge_u32 s2, 256")
    a("s_cbranch_scc1 L_end", "workgroups past the grid leave at once")
    for d, off in ((12, 0), (16, 8), (32, 32), (20, 40), (24, 16), (28, 24)):
        a(f"s_load_dwordx2 s[{d}:{d+1}], s[0:1], {off}")
    a(f"s_memrealtime {NONCE}")
    if OPT["stamp"]: a("s_memtime s[82:83]")
    a.c("pull the rest of this kernel's code towards the L2 while the arguments are on their way")
    a("s_getpc_b64 s[76:77]")
    a.label("L_pc")
    a(f"v_lshlrev_b32 v1, {6 if OPT['ipf'] > 1 else 7}, v0")
    a(f"v_cmp_gt_u32 vcc, (L_codeend-L_pc)/{64 if OPT['ipf'] > 1 else 128}, v0")
    a("s_and_saveexec_b64 s[78:79], vcc")
    a("s_cbranch_execz L_noipf")
    if OPT["ipf"]: a(f"global_load_dword v{vT+1}, v1, s[76:77]")
    a.label("L_noipf")
    a("s_mov_b64 exec, -1")
    a("v_lshrrev_b32 v1, 6, v0")
    a("v_and_b32 v0, 63, v0", "v0 = lane")
    a(f"v_readfirstlane_b32 {sWAVE}, v1")
    a.c("quad = (wg&3)*2 + ((wg>>3)&1), rb = ((wg>>2)&1)*16 + (wg>>4): two quads per XCD under round-robin placement (speed only)")
    if OPT["qmap"] == 0:
        a("s_and_b32 s54, s2, 3")
        a("s_lshl_b32 s54, s54, 1")
        a("s_bfe_u32 s55, s2, 0x10003")
    elif OPT["qmap"] == 1:
        a("s_and_b32 s54, s2, 3")
        a("s_bfe_u32 s55, s2, 0x10003")
        a("s_lshl_b32 s55, s55, 2")
    else:
        a("s_and_b32 s54, s2, 3")
        a("s_mul_i32 s54, s54, 5")
        a("s_and_b32 s54, s54, 5")
        a("s_and_b32 s54, s2, 1")
        a("s_bfe_u32 s55, s2, 0x10001")
        a("s_lshl_b32 s55, s55, 2")
        a("s_add_u32 s54, s54, s55")
        a("s_bfe_u32 s55, s2, 0x10003")
        a("s_lshl_b32 s55, s55, 1")
    a(f"s_add_u32 {sQUAD}, s54, s55")
    a("s_bfe_u32 s54, s2, 0x10002")
    a("s_lshl_b32 s54, s54, 4")
    a("s_lshr_b32 s55, s2, 4")
    a(f"s_add_u32 {sRB}, s54, s55")
    a(f"s_and_b32 {sHD}, {sWAVE}, 3")
    a(f"s_lshr_b32 {sTT}, {sWAVE}, 2")
    a(f"s_lshl_b32 {sW1K}, {sWAVE}, 10")
    a(f"v_lshlrev_b32 v{vL16}, 4, v0")
    a.c("x DMA source: row 8w + l/8 of the block, 16-byte piece (l%8) ^ ((row>>1)&7)  (bank swizzle)")
    a("v_lshrrev_b32 v10, 3, v0")
    a("v_and_b32 v11, 7, v0")
    a("v_lshrrev_b32 v12, 4, v0")
    a(f"s_and_b32 s53, {sWAVE}, 1")
    a("s_lshl_b32 s54, s53, 2")
    a("v_xor_b32 v13, v11, v12")
    a("v_xor_b32 v13, s54, v13")
    a(f"s_lshl_b32 s55, {sWAVE}, 3")
    a("v_add_u32 v10, s55, v10")
    a(f"s_lshl_b32 s55, {sRB}, 16")
    a("v_lshlrev_b32 v14, 10, v10")
    a("v_lshl_add_u32 v14, v13, 4, v14")
    a(f"v_add_u32 v{vXD}, s55, v14")
    a.c("W DMA source: k row 8w + l/8, the quad's 128-byte line, 32-byte slot ^ (((row>>1)&1) | ((row>>3)&1)<<1)")
    a("v_and_b32 v12, 1, v12")
    a("v_lshlrev_b32 v12, 1, v12")
    a("v_xor_b32 v13, v11, v12")
    a("v_xor_b32 v13, s54, v13")
    a("v_mul_u32_u24 v14, 3072, v10")
    a("v_lshl_add_u32 v14, v13, 4, v14")
    a(f"s_lshl_b32 s55, {sQUAD}, 7")
    a(f"v_add_u32 v{vWD}, s55, v14")
    a.c("the 64-deep k chunks are walked in an order rotated per workgroup, so every line is requested early by someone")
    if OPT["rotm"] == 2: a(f"s_add_u32 s53, {sQUAD}, {sRB}")
    elif OPT["rotm"] == 1:
        a(f"s_lshl_b32 s53, {sQUAD}, 2"); a(f"s_add_u32 s53, s53, {sRB}"); a(f"s_lshr_b32 s54, {sQUAD}, 1"); a("s_add_u32 s53, s53, s54")
    elif OPT["rotm"] == 3:
        a(f"s_mul_i32 s53, {sQUAD}, 3"); a(f"s_add_u32 s53, s53, {sRB}")
    elif OPT["rotm"] == 4:
        a(f"s_lshl_b32 s53, {sQUAD}, 1"); a(f"s_add_u32 s53, s53, {sRB}"); a(f"s_lshr_b32 s54, {sQUAD}, 2"); a("s_add_u32 s53, s53, s54")
    for p in range(8):
        a("s_and_b32 s53, s53, 7")
        a(f"s_lshl_b32 {sXT(p)}, s53, 7")
        a(f"s_mul_i32 {sWT(p)}, s53, 196608")
        if p < 7: a("s_add_u32 s53, s53, 1")
    a("v_and_b32 v12, 31, v0")
    a(f"s_lshl_b32 s53, {sRB}, 5")
    a("s_and_b32 s53, s53, 511")
    a("v_add_u32 v12, s53, v12")
    a("v_mul_u32_u24 v15, 3072, v12", "this workgroup's share of the Wq lines (L2 prefetch)")
    if OPT["qpf"] > 1:
        a("v_lshrrev_b32 v12, 5, v0")
        a("v_lshl_add_u32 v15, v12, 6, v15", "this workgroup's share of the Wq lines, both halves (L2 prefetch)")
    for d, size in ((12, 2048*1024), (16, 512*3072), (32, 256), (20, 8 << 20), (24, 512*1024), (28, 2048*1024)):
        a(f"s_mov_b32 s{d+2}, {hex(size)}")
        a(f"s_mov_b32 s{d+3}, 0x00020000")
    a(f"s_mov_b32 m0, {sW1K}")
    a("s_waitcnt lgkmcnt(0)")
    if OPT["stamp"]:
        a(f"v_writelane_b32 v{vST_RT}, s46, 0"); a(f"v_writelane_b32 v{vST_CY}, s82, 0")
    stamp(a, 12)
    issued = []
    def dma_x(p, m0=True):
        if m0:
            a(f"s_add_u32 m0, {sW1K}, {p*8192}"); a("s_nop 0")
        a(f"buffer_load_dwordx4 v{vXD}, {X}, {sXT(p)} offen lds"); issued.append(("x", p))
    def dma_w(t, p, dest, tag):
        a(f"s_add_u32 m0, {sW1K}, {dest - t*1024}")
        a("s_nop 0")
        a(f"buffer_load_dwordx4 v{vWD}, {W}, {sWT(p)} offen offset:{t*1024} lds"); issued.append(tag)
    def dma_kv(p):
        dma_w(1, p, WB + (p%5)*16384, ("kv", p)); dma_w(2, p, WB + (p%5)*16384 + 8192, ("kv", p))
    QDEST = [0, 8192, 16384, 24576, 32768, WB + 3*16384, WB + 3*16384 + 8192, 40960]
    dma_x(0, False); dma_kv(0)
    a.c("launch nonce: workgroup 0, wave 0 publishes its clock reading")
    a("s_or_b32 s46, s46, 1")
    a(f"s_or_b32 s53, s2, {sWAVE}")
    a("s_cbranch_scc1 L_nonon")
    a("v_mov_b32 v10, s46"); a("v_mov_b32 v11, s47")
    a("s_mov_b64 exec, 1")
    a(f"buffer_store_dwordx2 v[10:11], off, {DBG}, 0 sc1")
    a("s_mov_b64 exec, -1")
    a.label("L_nonon")
    a(f"s_cmp_lg_u32 {sWAVE}, 7")
    a("s_cbranch_scc1 L_noqpf")
    if OPT["qpf"]: a(f"buffer_load_dword v{vT}, v15, {W}, s55 offen")
    a.label("L_noqpf")
    if OPT["order"] == 0:
        for p in range(1, 4): dma_x(p)
    elif OPT["order"] == 3:
        dma_x(1)
    stamp(a, 13)
    a.c("scalar offsets")
    a(f"s_lshl_b32 {sSLOT}, {sWAVE}, 12")
    a(f"s_add_u32 {sSLOT}, {sSLOT}, {R3}")
    a(f"s_lshl_b32 s53, {sQUAD}, 2")
    a(f"s_add_u32 {sHEAD}, s53, {sHD}")
    a(f"s_mul_i32 s53, {sHEAD}, {131072 + OPT['hpad']}")
    a(f"s_lshl_b32 s54, {sTT}, 11")
    a("s_add_u32 s53, s53, s54")
    a(f"s_lshl_b32 s54, {sRB}, 12")
    a(f"s_add_u32 {sKVOWN}, s53, s54", "K/V tile this wave produces")
    a.c("attention role: head 4*quad + 2*(rb&1) + (w&1), key tiles = kq mod 4, finishes q-tile kq of the row-block pair")
    a(f"s_and_b32 {sHP}, {sRB}, 1")
    a(f"s_and_b32 {sHH}, {sWAVE}, 1")
    a(f"s_bfe_u32 s53, {sWAVE}, 0x10001")
    a(f"s_xor_b32 {sL}, s53, {sTT}", "0: this wave computes Q of an own token tile and starts on an own key tile")
    a(f"s_xor_b32 s54, {sL}, {sHP}")
    a("s_lshl_b32 s54, s54, 1")
    a(f"s_add_u32 {sKQ}, s53, s54")
    a(f"s_xor_b32 {sF}, {sKQ}, 2", "pair-local q-tile this wave finishes")
    a(f"s_lshl_b32 s53, {sQUAD}, 2")
    a(f"s_lshl_b32 s54, {sHP}, 1")
    a("s_add_u32 s53, s53, s54")
    a(f"s_add_u32 {sHEAD}, s53, {sHH}")
    a(f"s_lshl_b32 s53, {sHEAD}, 17")
    a(f"s_lshl_b32 s54, {sKQ}, 11")
    a(f"s_add_u32 {sKVH}, s53, s54", "K/V stream of this wave: head*128K + kq*2K + 8K per step")
    a(f"s_lshr_b32 s55, {sRB}, 1")
    a("s_lshl_b32 s64, s55, 13")
    a("s_sub_u32 s64, s64, 8192")
    a("s_lshl_b32 s53, s55, 2")
    a(f"s_add_u32 {sQT}, s53, {sF}")
    a(f"s_lshl_b32 s53, {sQT}, 15")
    a(f"s_lshl_b32 s54, {sHEAD}, 10")
    a(f"s_add_u32 {sOOWN}, s53, s54")
    a(f"s_add_u32 {sOOWN}, {sOOWN}, {hex(O_OFF)}", "own O fragment")
    a(f"s_lshl_b32 {sPOLL}, {sQUAD}, 10")
    a(f"s_add_u32 {sPOLL}, {sPOLL}, {hex(FKV_OFF)}", "this quad's K/V flags: 32 entries, 32 bytes apart")
    a("v_and_b32 v12, 31, v0")
    a(f"v_lshlrev_b32 v{vPOLL}, 5, v12")
    a(f"s_lshr_b32 s53, {sQUAD}, 2")
    a(f"s_lshl_b32 s54, {sRB}, 1")
    a(f"s_add_u32 {sOQ}, s53, s54", "output tile: tokens of q-tile 2rb + quad/4, columns 128*((quad+rb)%4)")
    if OPT["wrot"]:
        a(f"s_add_u32 {sCB}, {sQUAD}, {sRB}")
        a(f"s_and_b32 {sCB}, {sCB}, 3")
    else:
        a(f"s_and_b32 {sCB}, {sQUAD}, 3")
    a(f"s_lshl_b32 {sCB}, {sCB}, 8")
    a(f"s_lshl_b32 s53, {sOQ}, 15")
    a(f"s_add_u32 {sOST}, s53, {sCB}")
    a(f"s_lshl_b32 s53, {sHD}, 6")
    a(f"s_add_u32 {sOST}, {sOST}, s53")
    a(f"s_lshl_b32 s53, {sTT}, 14")
    a(f"s_add_u32 {sOST}, {sOST}, s53")
    a.c("O flags: one 128-byte line per (writer, reader) pair of the sixteen workgroups of a row-block pair")
    a("s_lshl_b32 s55, s55, 4")
    a(f"s_lshl_b32 s53, {sQUAD}, 1")
    a(f"s_add_u32 s53, s53, {sHP}")
    a("s_add_u32 s54, s55, s53")
    a("s_lshl_b32 s54, s54, 11")
    a(f"s_add_u32 s74, s54, {hex(FO_OFF)}")
    a(f"s_lshl_b32 s54, {sWAVE}, 1")
    a("s_add_u32 s75, s55, s54")
    a("s_lshl_b32 s75, s75, 11")
    a("s_lshl_b32 s53, s53, 7")
    a("s_add_u32 s75, s75, s53")
    a(f"s_add_u32 s75, s75, {hex(FO_OFF)}")
    a(f"s_and_b32 s65, {sRB}, 7")
    a("s_lshl_b32 s65, s65, 13")
    a("s_lshl_b32 s66, s65, 2")
    if OPT["order"] == 2:
        for p in range(1, 4): dma_x(p)
    if OPT["order"] == 3:
        dma_kv(1); dma_x(2); dma_x(3)
    a.c("merge partners and Q producers: register sets 0..3 hold pair-local q-tiles kq, kq^1, kq^3, kq^2")
    for i in range(4):
        a(f"s_xor_b32 s53, {sKQ}, {(0, 1, 3, 2)[i]}")
        a("s_and_b32 s54, s53, 1")
        a("s_lshr_b32 s53, s53, 1")
        a("s_mul_i32 s55, s54, 6")
        a("s_lshl_b32 s54, s54, 1")
        if i < 3:
            a("s_sub_u32 s3, 4, s54")
            a(f"s_cmp_lg_u32 s53, {sHP}")
            a("s_cselect_b32 s3, s55, s3")
            a(f"s_add_u32 s3, s3, {sHH}")
            a(f"s_lshl_b32 s{8+i}, s3, 12")
        a("s_add_u32 s54, s54, 2")
        a(f"s_cmp_eq_u32 s53, {sHP}")
        a("s_cselect_b32 s54, s55, s54")
        a(f"s_add_u32 s54, s54, {sHH}")
        a("s_lshl_b32 s54, s54, 12")
        a(f"s_add_u32 s{4+i}, s54, {R3 + 3072}")
    a(f"s_lshl_b32 s36, {sHD}, 1")
    a(f"s_lshl_b32 s37, {sTT}, 8")
    a(f"s_add_u32 s37, s37, {R3}")
    a(f"s_lshl_b32 s53, {sQUAD}, 12")
    a(f"s_and_b32 s54, {sHEAD}, 3")
    a("s_lshl_b32 s54, s54, 10")
    a("s_add_u32 s53, s53, s54")
    a(f"s_add_u32 s38, s53, {R3}")
    a("v_and_b32 v12, 1, v0")
    a(f"s_xor_b32 s53, {sHP}, 1")
    a(f"s_cmp_eq_u32 {sWAVE}, {sQUAD}")
    a("s_cselect_b64 vcc, -1, 0")
    a("v_mov_b32 v13, s53")
    a("v_cndmask_b32 v12, v12, v13, vcc")
    a(f"v_lshlrev_b32 v{vP2}, 11, v12")
    a("v_lshrrev_b32 v12, 1, v0")
    a(f"s_lshl_b32 s53, {sWAVE}, 4")
    a("s_add_u32 s53, s53, 384")
    a("v_add_u32 v12, s53, v12")
    a("v_lshlrev_b32 v12, 10, v12")
    a("v_and_b32 v13, 1, v0")
    a(f"v_lshl_add_u32 v{vLP}, v13, 7, v12")
    a.c("LDS read addresses: x fragments (two k steps), W fragments (transposing reads)")
    a("v_and_b32 v10, 15, v0")
    a("v_lshrrev_b32 v11, 4, v0")
    a("v_bfe_u32 v12, v0, 1, 3")
    a("v_xor_b32 v12, v11, v12")
    a(f"s_lshl_b32 s53, {sTT}, 12")
    a("v_lshlrev_b32 v13, 7, v10")
    a("v_add_u32 v13, s53, v13")
    a(f"v_lshl_add_u32 v{vXR0}, v12, 4, v13")
    a(f"v_xor_b32 v{vXR1}, 64, v{vXR0}")
    a("v_bfe_u32 v12, v0, 2, 2")
    a("v_lshl_add_u32 v13, v11, 3, v12")
    a("v_lshlrev_b32 v13, 7, v13")
    a("v_bfe_u32 v14, v0, 3, 2")
    a(f"v_xor_b32 v14, {sHD}, v14")
    a("v_lshl_add_u32 v13, v14, 5, v13")
    a("v_and_b32 v14, 3, v0")
    a(f"v_lshl_add_u32 v{vWQ}, v14, 3, v13")
    a(f"v_add_u32 v{vWR}, {WB}, v{vWQ}")
    a(f"v_add_u32 v{vWR4}, {R3}, v{vWQ}")
    a.c("K/V tile = 1 KB K fragment (lane-linear) + 1 KB V^T fragments (4 x 16 lanes x 16 B)")
    a("v_lshrrev_b32 v12, 5, v0")
    a("v_lshlrev_b32 v12, 8, v12")
    a("v_lshl_add_u32 v12, v10, 4, v12")
    a(f"v_add_u32 v{vVO}, 1024, v12")
    a(f"v_add_u32 v{vKG}, {sKVH}, v{vL16}")
    a(f"v_add_u32 v{vVG}, {sKVH}, v{vVO}")
    a("v_and_b32 v12, 0x23, v0")
    a("v_bfe_u32 v13, v0, 2, 2")
    a("v_lshl_add_u32 v12, v13, 3, v12")
    a("v_bfe_u32 v13, v0, 4, 1")
    a("v_lshl_add_u32 v12, v13, 2, v12")
    a(f"v_lshlrev_b32 v{vKPOS}, 4, v12", "K rows are stored in the key order of the V^T fragments")
    a.c("Wo DMA source: row 4w + l/16, 32-byte slot ^ (row&7)")
    a(f"s_lshl_b32 s53, {sWAVE}, 2")
    a("v_add_u32 v12, s53, v11")
    a("v_and_b32 v13, 7, v12")
    a("v_lshlrev_b32 v13, 1, v13")
    a("v_xor_b32 v13, v10, v13")
    a("v_lshlrev_b32 v14, 10, v12")
    a("v_lshl_add_u32 v14, v13, 4, v14")
    a(f"v_add_u32 v{vWO}, {sCB}, v14")
    a(f"v_mov_b32 v{vIDX}, 0xdddddddd", "sparse index: elements 1 and 3 of every 4 = high halves of two fp32")
    a("s_mov_b32 s48, 0xffff"); a("s_mov_b32 s49, 0xffff", "lanes that carry V^T rows 0..15")
    a("v_and_b32 v12, 27, v0")
    a("v_cmp_eq_u32 vcc, 16, v12")
    a("v_mov_b32 v15, 0x3f803f80")
    a("s_nop 0")
    a.c("rows 16 and 20 of the V^T operand are ones (row sums), the other spare rows zero")
    for j in range(3):
        for i in range(8): a(f"v_cndmask_b32 v{KV[j]+4+i}, 0, v15, vcc")
    stamp(a, 20)
    if OPT["order"] == 1:
        dma_x(1); dma_kv(1); dma_x(2); dma_x(3); dma_kv(2)
    elif OPT["order"] == 3:
        dma_kv(2)
    else:
        dma_kv(1); dma_kv(2)
    stamp(a, 1)

    def waitvm(pred):
        last = max(i for i, t in enumerate(issued) if pred(t))
        a(f"s_waitcnt vmcnt({len(issued) - 1 - last})")
    def xf(p, s): return XF + 8*(2*p + s)
    def rd_w(base, off, r):
        a(f"ds_read_b64_tr_b16 {vr(r,2)}, v{base} offset:{off}")
        a(f"ds_read_b64_tr_b16 {vr(r+2,2)}, v{base} offset:{off + 512}")
    def readsA(p):
        fw = FW[p % 2]
        for s in range(2):
            b = vXR0 if s == 0 else vXR1; f = xf(p, s)
            a(f"ds_read_b128 {vr(f,4)}, v{b} offset:{p*8192}")
            a(f"ds_read_b128 {vr(f+4,4)}, v{b} offset:{p*8192+2048}")
            wb, wo = (vWR, (p%5)*16384) if p % 5 < 4 else (vWR4, 0)
            rd_w(wb, wo + s*4096, fw[2*s]); rd_w(wb, wo + 8192 + s*4096, fw[2*s+1])
    def mfmaA(p, s):
        f = xf(p, s); wk, wv = FW[p % 2][2*s], FW[p % 2][2*s+1]
        def c(r): return "0" if p == 0 and s == 0 else vr(r, 4)
        a(f"v_mfma_f32_16x16x32_bf16 {vr(AK,4)}, {vr(wk,4)}, {vr(f,4)}, {c(AK)}")
        a(f"v_mfma_f32_16x16x32_bf16 {vr(AK+4,4)}, {vr(wk,4)}, {vr(f+4,4)}, {c(AK+4)}")
        a(f"v_mfma_f32_16x16x32_bf16 {vr(AV,4)}, {vr(f,4)}, {vr(wv,4)}, {c(AV)}")
        a(f"v_mfma_f32_16x16x32_bf16 {vr(AV+4,4)}, {vr(f+4,4)}, {vr(wv,4)}, {c(AV+4)}")
    def grab(fn):
        n0 = len(a.l); fn(); out = a.l[n0:]; del a.l[n0:]; return out
    a.c("---- K, V.  Step p: chunk p has landed -> read its fragments, request later chunks, multiply chunk p-1.\n"
        "     A ring slot / x slot is refilled two barriers after its last reader issued (covered by lgkmcnt(0) in between).")
    QSCHED = {5: [0, 1, 2], 6: [3, 4, 5], 7: [6, 7]}
    for p in range(8):
        waitvm(lambda t: t[1] == p and t[0] in ("x", "kv"))
        a("s_barrier")
        if p == 0: stamp(a, 2)
        elif OPT["stamp"] == 6: stamp(a, 24 + p)
        if p >= 1: a("s_waitcnt lgkmcnt(0)")
        rd = grab(lambda: readsA(p))
        mf = grab(lambda: (mfmaA(p-1, 0), mfmaA(p-1, 1))) if p >= 1 else []
        dm = []
        if p + 3 < 8:
            kvl = grab(lambda: dma_kv(p + 3)); dm += [kvl[:3], kvl[3:]]
        if p + 4 < 8: dm.append(grab(lambda: dma_x(p + 4)))
        for j in QSCHED.get(p, []): dm.append(grab(lambda: dma_w(0, j, QDEST[j], ("q", j))))
        k = 0
        sc = OPT["sched"]
        if sc == 0:
            for i in range(12):
                a.l.append(rd[i])
                while k < len(mf) and k < (i + 1) * 8 // 12:
                    a.l.append(mf[k]); k += 1
                if i % 4 == 3 and i // 4 < len(dm): a.l += dm[i // 4]
        elif sc == 1:
            for i in range(12):
                if k < len(mf) and k <= i * 8 // 12:
                    a.l.append(mf[k]); k += 1
                d = dm[i // 4] if i % 4 == 2 and i // 4 < len(dm) else None
                if d: a.l.append(d[0])
                a.l.append(rd[i])
                if d: a.l.append(d[2])
            a.l += mf[k:]
        elif sc == 2:
            for d in dm: a.l += d
            for i in range(12):
                if k < len(mf) and k <= i * 8 // 12:
                    a.l.append(mf[k]); k += 1
                a.l.append(rd[i])
            a.l += mf[k:]
        elif sc == 3:
            a.l += mf[:1] + rd[:6] + mf[1:2] + rd[6:]
            rest = mf[2:]
            for i, d in enumerate(dm):
                a.l.append(d[0]); a.l += rest[2*i:2*i+1] or ["    s_nop 0"]; a.l.append(d[2]); a.l += rest[2*i+1:2*i+2]
            a.l += rest[2*len(dm):]
        assert len(dm) <= 3
        if p == 2:
            a(f"s_cmp_lg_u32 {sWAVE}, 0")
            a("s_cbranch_scc1 L_nf1")
            a(f"buffer_load_dwordx2 {vr(vPD,2)}, off, {DBG}, 0 sc1", "fetch the nonce")
            a.label("L_nf1")
    a("s_waitcnt lgkmcnt(6)")
    mfmaA(7, 0)
    a("s_waitcnt lgkmcnt(0)")
    mfmaA(7, 1)
    stamp(a, 3)
    a.c("---- publish K/V (write-through) and leave a copy in this wave's LDS slot for the wave that starts on it")
    F = 40
    a(f"v_add_u32 v10, {sSLOT}, v{vKPOS}")
    a(f"v_add_u32 v11, {sSLOT}, v{vL16}")
    a(f"v_xor_b32 v{vXD}, 0x10000, v{vXD}", "x rows of the neighbouring row block")
    a("s_nop 4")
    for i in range(4): a(f"v_cvt_pk_bf16_f32 v{F+i}, v{AK+2*i}, v{AK+2*i+1}")
    for i in range(4): a(f"v_cvt_pk_bf16_f32 v{F+4+i}, v{AV+2*i}, v{AV+2*i+1}")
    a(f"v_permlane16_swap_b32 v{F}, v{F+2}")
    a(f"v_permlane16_swap_b32 v{F+1}, v{F+3}")
    a(f"buffer_store_dwordx4 {vr(F+4,4)}, v{vL16}, {WS}, {sKVOWN} offen offset:1024 sc1")
    a(f"buffer_store_dwordx4 {vr(F,4)}, v{vKPOS}, {WS}, {sKVOWN} offen sc1")
    a(f"ds_write_b128 v11, {vr(F+4,4)} offset:1024")
    a(f"ds_write_b128 v10, {vr(F,4)}")
    a.c("Q job of this wave: head 2*(rb&1) + (w&1) of the quad, token tile tt of the own (hd>>1 == tt) or the other row block")
    a(f"s_lshl_b32 s53, {sHP}, 1")
    a(f"s_add_u32 s53, s53, {sHH}")
    a(f"s_xor_b32 s54, s53, {sHD}")
    a("s_lshl_b32 s54, s54, 5")
    a(f"v_xor_b32 v{vWQ}, s54, v{vWQ}")
    a(f"v_xor_b32 v{vWR}, s54, v{vWR}")
    a(f"s_and_b32 s54, {sKQ}, 1")
    a("s_lshl_b32 s54, s54, 2")
    a("s_add_u32 s53, s53, s54")
    a("s_lshl_b32 s53, s53, 12")
    a(f"s_add_u32 s53, s53, {R3}", "slot of the wave that produced this wave's first key tile (if it is local)")
    a(f"v_add_u32 v13, s53, v{vL16}")
    a(f"v_add_u32 v12, s53, v{vVO}")
    a("s_waitcnt vmcnt(7)", "Wq chunks 0..2 (and the nonce)")
    a(f"s_cmp_lg_u32 {sWAVE}, 0")
    a("s_cbranch_scc1 L_nf2")
    a(f"s_mov_b32 s53, {SPIN_MAX}")
    a.label("L_nspin")
    a(f"v_readfirstlane_b32 s54, v{vPD}")
    a("s_sub_u32 s53, s53, 1")
    a("s_cbranch_scc1 L_ngot")
    a("s_cmp_lg_u32 s54, 0")
    a("s_cbranch_scc1 L_ngot")
    a("s_sleep 2")
    a(f"buffer_load_dwordx2 {vr(vPD,2)}, off, {DBG}, 0 sc1")
    a("s_waitcnt vmcnt(0)")
    a("s_branch L_nspin")
    a.label("L_ngot")
    a(f"v_mov_b32 v10, {R3 + 2816}")
    a(f"ds_write_b64 v10, {vr(vPD,2)}")
    a.label("L_nf2")
    a("s_waitcnt lgkmcnt(0)")
    a("s_barrier")
    stamp(a, 14)
    a(f"v_mov_b32 v10, {R3 + 2816}")
    a(f"ds_read_b64 {vr(vPD,2)}, v10")
    a(f"ds_read_b128 {vr(KV[0],4)}, v13")
    a(f"s_mov_b64 exec, {VMASK}")
    a(f"ds_read_b128 {vr(KV[0]+4,4)}, v12")
    a(f"ds_read_b128 {vr(KV[0]+8,4)}, v12 offset:512")
    a("s_mov_b64 exec, -1")
    XN = 49152
    X1 = OPT["x1"]
    def dma_xn(lo, hi):
        for p in range(lo, hi):
            a(f"s_add_u32 m0, {sW1K}, {XN + p*8192}")
            a("s_nop 0")
            a(f"buffer_load_dwordx4 v{vXD}, {X}, {sXT(p)} offen lds")
    dma_xn(0, X1)
    a(f"s_lshl_b32 s54, {sRB}, 5")
    a(f"s_add_u32 s68, {sPOLL}, s54")
    a("s_mov_b64 s[76:77], s[20:21]")
    a("s_mov_b32 s78, s22")
    a("s_mov_b32 s79, 0x00020000")
    for i in range(4): a(f"v_mov_b32 v{12+i}, 0")
    def qk(j, q, c="0.15915494"): a(f"v_mfma_f32_32x32x16_bf16 {vr(S[q%2],16)}, {vr(KV[j],4)}, {vr(Q[q],4)}, {c}")
    def pv0(j, q): a(f"v_smfmac_f32_32x32x32_bf16 {vr(O[q],16)}, {vr(KV[j]+4,4)}, {vr(S[q%2],8)}, v{vIDX}")
    def pv1(j, q): a(f"v_smfmac_f32_32x32x32_bf16 {vr(O[q],16)}, {vr(KV[j]+8,4)}, {vr(S[q%2]+8,8)}, v{vIDX}")
    def ex(q, i): a(f"v_exp_f32 v{S[q%2]+i}, v{S[q%2]+i}")
    def poll_kv(): a(f"buffer_load_dwordx2 {vr(vT,2)}, v{vPOLL}, {WS}, {sPOLL} offen sc1")
    def zero_o():
        for q in range(4): a(f"v_mfma_f32_32x32x16_bf16 {vr(O[q],16)}, v[12:15], v[12:15], 0")
    def wq_at(p):
        d = QDEST[p]
        return (vWQ, d) if d < WB else (vWR, d - WB)
    def q_pack(QP=QP):
        a(f"s_mov_b32 s54, {hex(f2u(CSCALE))}", "log2(e)/4 goes into Q")
        a("s_nop 6")
        for i in range(0, 8, 2): a(f"v_pk_mul_f32 {vr(AQ+i,2)}, s[54:55], {vr(AQ+i,2)} op_sel_hi:[0,1]")
        for i in range(4): a(f"v_cvt_pk_bf16_f32 v{QP+i}, v{AQ+2*i}, v{AQ+2*i+1}")
        a("s_nop 1")
        a(f"v_permlane16_swap_b32 v{QP}, v{QP+2}")
        a(f"v_permlane16_swap_b32 v{QP+1}, v{QP+3}")
        a(f"ds_write_b128 v11, {vr(QP,4)} offset:3072")
    def addresses():
        a.c("addresses for later: phase 3 (wave = 32-column pair w&3, 16-token half w>>2) and merge")
        a("v_lshrrev_b32 v12, 5, v0")
        a("v_bfe_u32 v13, v0, 2, 3")
        a("v_lshl_add_u32 v14, v12, 4, v13")
        a("v_lshlrev_b32 v14, 8, v14")
        a("v_xor_b32 v13, s36, v13")
        a("v_lshl_add_u32 v14, v13, 5, v14")
        a("v_and_b32 v13, 3, v0")
        a(f"v_lshl_add_u32 v{vA[0][0]}, v13, 3, v14")
        a(f"v_add_u32 v{vA[0][1]}, 65536, v{vA[0][0]}")
        a(f"v_xor_b32 v{vA[1][0]}, 32, v{vA[0][0]}")
        a(f"v_xor_b32 v{vA[1][1]}, 32, v{vA[0][1]}")
        a("v_and_b32 v10, 15, v0")
        a("v_lshrrev_b32 v13, 4, v0")
        a("v_lshlrev_b32 v14, 9, v13")
        a("v_lshl_add_u32 v14, v10, 4, v14")
        a(f"v_add_u32 v{vBO}, s37, v14")
        a("v_lshlrev_b32 v14, 10, v10")
        a("v_lshl_add_u32 v14, v12, 4, v14")
        a("v_and_b32 v13, 1, v13")
        a(f"v_lshl_add_u32 v{vSTO}, v13, 5, v14")
        a(f"v_add_u32 v{vOWN}, s38, v{vL16}")
        a(f"v_lshlrev_b32 v{vFL}, 7, v0")
        a("v_lshlrev_b32 v14, 2, v0")
        a(f"v_add_u32 v{vRA}, {AUX - R3 + (1 << 32)}, v11")
        a(f"v_add_u32 v{vRL}, {sSLOT}, v14")
        a(f"v_add_u32 v13, {R3 + 2048}, v14")
        for i in range(3):
            a(f"v_add_u32 v12, {(R3, AUX, AUX + 2048)[i]}, v{vL16}")
            a(f"v_add_u32 v{vMO[i]}, s{8+i}, v12")
            a(f"v_add_u32 v{vML[i]}, s{8+i}, v13")
    def ldK(j):
        a("s_add_u32 s64, s64, 8192"); a("s_and_b32 s64, s64, 0x1ffff")
        a(f"buffer_load_dwordx4 {vr(KV[j],4)}, v{vKG}, {KS}, s64 offen sc1")
    def ldV(j):
        a(f"s_mov_b64 exec, {VMASK}")
        a(f"buffer_load_dwordx4 {vr(KV[j]+4,4)}, v{vVG}, {KS}, s64 offen sc1")
        a(f"buffer_load_dwordx4 {vr(KV[j]+8,4)}, v{vVG}, {KS}, s64 offen offset:512 sc1")
        a("s_mov_b64 exec, -1")
    def step(u, first=False, last=False, pre=None, qs=range(4), noqk=()):
        pj = (u - 1) % 3; nj = (u + 1) % 3
        for q in qs:
            if pre: pre(q)
            for i in range(16):
                if i == 2:
                    if q == 0:
                        if not first: pv1(pj, 3)
                    else: pv1(u, q - 1)
                if q == 0 and not first and not last:
                    if i == 3: ldK(pj)
                    if i == 7: ldV(pj)
                if i == 5:
                    if q in noqk: pass
                    elif q < 3: qk(u, q + 1)
                    elif not last:
                        a("s_waitcnt vmcnt(3)"); qk(nj, 0)
                if i == 11: pv0(u, q)
                if last and q >= 1 and i == 14:
                    k = q - 1
                    a(f"ds_write_b128 v{vMO[k]}, {vr(O[k],4)}")
                    a(f"ds_write_b128 v{vMO[k]}, {vr(O[k]+4,4)} offset:1024")
                    a(f"ds_write_b32 v{vML[k]}, v{O[k]+8} offset:{256*k}")
                ex(q, i)
    a("s_mov_b32 s67, 5")
    a(f"s_cmp_lg_u32 {sL}, 0")
    a("s_cbranch_scc1 L_qother")
    a.c("---- Q of an own token tile (the x fragments are still in registers)")
    BS = [48, 52, 92, 96, 104, 108, 40, 44]
    lgq = ["n"] * 4
    def waitlg(tag):
        if tag in lgq:
            last = max(i for i, t in enumerate(lgq) if t == tag)
            a(f"s_waitcnt lgkmcnt({len(lgq) - 1 - last})"); del lgq[:last + 1]
    FS = OPT["fstep"]; nxt = 0
    for st in range(16):
        if st == FS:
            addresses()
            for i in range(4): a(f"v_mov_b32 v{12+i}, 0")
            a(f"s_waitcnt vmcnt({X1})")
            a("s_barrier", "every wave's K/V is written through, all of Wq has landed")
            if OPT["fo"]: dma_xn(X1, 8)
            a(f"s_cmp_lg_u32 {sWAVE}, 0")
            a("s_cbranch_scc1 L_nflag")
            a("s_mov_b64 exec, 1")
            a(f"buffer_store_dwordx2 {vr(vPD,2)}, off, {WS}, s68 sc1", "K/V flag of this workgroup")
            a("s_mov_b64 exec, -1")
            a.label("L_nflag")
            if stamp(a, 24): del lgq[:]
            if not OPT["fo"]: dma_xn(X1, 8)
        if OPT["x2"] and st == OPT["x2"]:
            a(f"s_cmp_lg_u32 {sWAVE}, 0")
            a("s_cbranch_scc1 L_xa")
            a(f"s_waitcnt vmcnt({8 - X1 + 1})", "(wave 0 also has its flag store in flight)")
            a("s_branch L_xb")
            a.label("L_xa")
            a(f"s_waitcnt vmcnt({8 - X1})")
            a.label("L_xb")
            a("s_barrier", "the first part of the neighbour's x has landed")
        if OPT["le"] and st == OPT["xs"]:
            a("s_waitcnt vmcnt(0)")
            a("s_barrier", "the neighbour's x has landed")
        while nxt < min(6 if st < FS else 16, st + 5):
            wb, wo = wq_at(nxt // 2); rd_w(wb, wo + (nxt % 2)*4096, BS[nxt % 8]); lgq.extend([nxt, nxt]); nxt += 1
        waitlg(st)
        if st == 0:
            a(f"v_readfirstlane_b32 s46, v{vPD}")
            a(f"v_readfirstlane_b32 s47, v{vPD+1}")
        f = XF + 8*st; w = BS[st % 8]
        c0, c1 = ("0", "0") if st == 0 else (vr(AQ,4), vr(AQ+4,4))
        a(f"v_mfma_f32_16x16x32_bf16 {vr(AQ,4)}, {vr(w,4)}, {vr(f,4)}, {c0}")
        a(f"v_mfma_f32_16x16x32_bf16 {vr(AQ+4,4)}, {vr(w,4)}, {vr(f+4,4)}, {c1}")
        if 5 <= st < 9: a(f"v_mfma_f32_32x32x16_bf16 {vr(O[st-5],16)}, v[12:15], v[12:15], 0")
    q_pack(Q[0])
    for i in range(1, 4): a(f"v_add_u32 v{12+i}, s{4+i}, v{vL16}")
    a.c("the constant added to every score (1/2pi) cancels in the normalisation; it keeps exp2(0) off a bf16 step")
    qk(0, 0)
    a("s_waitcnt vmcnt(0) lgkmcnt(0)")
    a("s_barrier", "the neighbour's x has landed, the Q fragments of the own tokens are in LDS")
    a(f"ds_read_b128 {vr(Q[1],4)}, v13")
    a("s_setprio 2" if OPT["lead"] == 0 else "s_setprio 1")
    a(f"s_mov_b32 s53, {SPIN_MAX}")
    a("s_mov_b32 s70, 0")
    a("s_add_u32 s64, s64, 8192")
    stamp(a, 19)
    a("s_nop 4")
    a.c("---- own key tile, own queries")
    def hk(q):
        if q == 1: poll_kv()
    def st0a():
        for i in range(16):
            if i == 5:
                a("s_waitcnt lgkmcnt(0)"); qk(0, 1)
            if i == 11: pv0(0, 0)
            ex(0, i)
    st0a()
    step(0, first=True, pre=hk, qs=[1], noqk=(1,))
    a("s_barrier", "all Q fragments are in LDS")
    a(f"ds_read_b128 {vr(Q[2],4)}, v14")
    a(f"ds_read_b128 {vr(Q[3],4)}, v15")
    stamp(a, 5)
    a.label("L_espin")
    a("s_waitcnt vmcnt(0)")
    a(f"v_cmp_eq_u64 vcc, {NONCE}, {vr(vT,2)}")
    a("s_sub_u32 s53, s53, 1")
    a("s_cbranch_scc1 L_efirst")
    a("s_cmp_eq_u64 vcc, -1")
    a("s_cbranch_scc1 L_efirst")
    a("s_cmp_lg_u32 s70, 0")
    a("s_cbranch_scc1 L_eagain")
    poll_kv()
    a("s_mov_b32 s70, 1")
    a("s_branch L_e2")
    a.label("L_eagain")
    a("s_sleep 1")
    poll_kv()
    a("s_branch L_espin")
    a.label("L_efirst")
    stamp(a, 23)
    ldK(1); ldV(1); ldK(2); ldV(2)
    a("s_cmp_lg_u32 s70, 0")
    a("s_cbranch_scc1 L_e3")
    a.label("L_e2")
    a("s_waitcnt lgkmcnt(0)")
    qk(0, 2)
    a("s_nop 7")
    a("s_nop 3")
    step(0, first=True, qs=[2])
    a("s_cmp_lg_u32 s70, 0")
    a("s_cbranch_scc1 L_espin")
    a.label("L_e3")
    step(0, first=True, qs=[3])
    a("s_branch L_loop1")
    a.label("L_qother")
    a.c("---- Q of a token tile of the neighbouring row block")
    if OPT["lpr"]: a("s_setprio 3")
    a("s_waitcnt lgkmcnt(0)")
    a(f"v_readfirstlane_b32 s46, v{vPD}")
    a(f"v_readfirstlane_b32 s47, v{vPD+1}")
    zero_o()
    a(f"v_add_u32 v{vXR0}, {XN}, v{vXR0}")
    a(f"v_add_u32 v{vXR1}, {XN}, v{vXR1}")
    a(f"s_waitcnt vmcnt({X1})")
    a("s_barrier")
    dma_xn(X1, 8)
    for st in range(16):
        if st in (7, 14): a("s_waitcnt lgkmcnt(0)")
        wb, wo = wq_at(st // 2); rd_w(wb, wo + (st % 2)*4096, 176 + 4*st)
    addresses()
    a(f"s_waitcnt vmcnt({8 - X1 if OPT['x2'] else 0}) lgkmcnt(0)")
    a("s_barrier")
    stamp(a, 18)
    del lgq[:]; nxt = 0
    XR = [(40, 44), (48, 52), (92, 96), (104, 108)]
    for st in range(16):
        lim = 2*X1 if OPT["x2"] and st < 2*X1 - 2 else 16
        if OPT["x2"] and st == 2*X1 - 2:
            a("s_waitcnt vmcnt(0)")
            a("s_barrier")
        while nxt < min(lim, st + 4):
            p, s_ = divmod(nxt, 2); f = XR[nxt % 4]; b = vXR0 if s_ == 0 else vXR1
            a(f"ds_read_b128 {vr(f[0],4)}, v{b} offset:{p*8192}")
            a(f"ds_read_b128 {vr(f[1],4)}, v{b} offset:{p*8192+2048}")
            lgq.extend([nxt]*2); nxt += 1
        waitlg(st)
        f = XR[st % 4]; w = 176 + 4*st
        c0, c1 = ("0", "0") if st == 0 else (vr(AQ,4), vr(AQ+4,4))
        a(f"v_mfma_f32_16x16x32_bf16 {vr(AQ,4)}, {vr(w,4)}, {vr(f[0],4)}, {c0}")
        a(f"v_mfma_f32_16x16x32_bf16 {vr(AQ+4,4)}, {vr(w,4)}, {vr(f[1],4)}, {c1}")
        if st == OPT["lp"]: poll_kv()
        if OPT["le"] and st == OPT["le"]: a("s_barrier")
    q_pack()
    stamp(a, 16)
    for i in range(4): a(f"v_add_u32 v{12+i}, s{4+i}, v{vL16}")
    a(f"s_mov_b32 s53, {SPIN_MAX}")
    a("s_setprio 1" if OPT["lead"] == 0 else "s_setprio 2")
    a("s_waitcnt lgkmcnt(0)")
    a("s_barrier", "all Q fragments are in LDS")
    for i in range(4): a(f"ds_read_b128 {vr(Q[i],4)}, v{12+i}")
    stamp(a, 5)
    a.label("L_lspin")
    a("s_waitcnt vmcnt(0)")
    a(f"v_cmp_eq_u64 vcc, {NONCE}, {vr(vT,2)}")
    a("s_sub_u32 s53, s53, 1")
    a("s_cbranch_scc1 L_lgo")
    a("s_cmp_eq_u64 vcc, -1")
    a("s_cbranch_scc1 L_lgo")
    a("s_sleep 1")
    poll_kv()
    a("s_branch L_lspin")
    a.label("L_lgo")
    stamp(a, 23)
    ldK(0); ldV(0); ldK(1); ldV(1); ldK(2); ldV(2)
    a.label("L_s0")
    a("s_waitcnt vmcnt(6) lgkmcnt(0)")
    qk(0, 0)
    a("s_nop 7")
    a("s_nop 3")
    stamp(a, 19)
    a.c("---- first key tile")
    step(0, first=True)
    a("s_branch L_loop1")
    a.raw(".p2align 6")
    a.c("---- key tiles 1..14 (entered at the second third), two tiles in flight")
    a.label("L_loop")
    def drop(q):
        if q != OPT["dq"]: return
        a(f"s_cmp_lg_u32 s67, {OPT['dcnt']}")
        a("s_cbranch_scc1 L_nodrop")
        a(f"s_cmp_{'lg' if OPT['lead'] == 0 else 'eq'}_u32 {sL}, 0")
        a("s_cbranch_scc1 L_keep")
        a("s_setprio 0")
        a.label("L_keep")
        a(f"buffer_load_dwordx2 {vr(vT,2)}, v{vP2}, {WS}, s75 offen sc1", "first touch of the O flag lines")
        a("s_mov_b32 exec_hi, 0")
        a(f"buffer_load_dword v{vT}, v{vLP}, {WO}, {sCB} offen", "late Wo rows towards the L2")
        a("s_mov_b64 exec, -1")
        a.label("L_nodrop")
    for u in range(3):
        if u == 1: a.label("L_loop1")
        if u == 2:
            a("s_cmp_eq_u32 s67, 1")
            a("s_cselect_b32 s78, 0, s78", "the last prefetch has no consumer: out of range")
        step(u, pre=drop if u == OPT["dsub"] else None)
    a("s_cmp_le_u32 s67, 1")
    a("s_cbranch_scc1 L_last")
    for i in range(3):
        a(f"s_add_u32 m0, s65, {sW1K}", "three of the first twelve Wo row blocks per pass" if i == 0 else None)
        a("s_add_u32 s65, s65, 8192")
        a(f"buffer_load_dwordx4 v{vWO}, {WO}, s66 offen lds")
        a(f"s_cmp_eq_u32 s65, {AUX}")
        a("s_cselect_b32 s65, 0, s65")
        a("s_lshl_b32 s66, s65, 2")
    a("s_sub_u32 s67, s67, 1")
    a("s_branch L_loop")
    a.label("L_last")
    a.c("---- last key tile; the partial sums of the three q-tiles other waves finish go out as soon as they are final")
    step(0, last=True)
    a(f"s_lshl_b32 s54, {sOQ}, 15")
    a(f"s_lshl_b32 s55, {sWAVE}, 12")
    pv1(0, 3)
    stamp(a, 7)
    a("s_add_u32 s54, s54, s55")
    a(f"s_add_u32 s64, s54, {hex(O_OFF)}")
    a("s_waitcnt vmcnt(0) lgkmcnt(0)")
    if OPT["tp"]: a("s_setprio 0")
    a("s_barrier", "(also: the first twelve Wo row blocks are in LDS)")
    stamp(a, 15)
    OO = O[3]
    for i in range(3): a(f"ds_read_b32 v{S[1]+8+i}, v{vRL} offset:{2048 + 256*i}")
    a(f"ds_read_b128 {vr(S[0],4)}, v11")
    a(f"ds_read_b128 {vr(S[0]+4,4)}, v11 offset:1024")
    a(f"ds_read_b128 {vr(S[0]+8,4)}, v{vRA}")
    a(f"ds_read_b128 {vr(S[0]+12,4)}, v{vRA} offset:1024")
    a(f"ds_read_b128 {vr(S[1],4)}, v{vRA} offset:2048")
    a(f"ds_read_b128 {vr(S[1]+4,4)}, v{vRA} offset:3072")
    a(f"v_mov_b32 v13, {hex(f2u(2.0**-20))}")
    a(f"v_mov_b32 v1, {hex(f2u(2.0**60))}")
    a("s_waitcnt lgkmcnt(6)")
    a(f"v_add_f32 v{OO+8}, v{OO+8}, v{S[1]+8}")
    a(f"v_add_f32 v{S[1]+9}, v{S[1]+9}, v{S[1]+10}")
    a(f"v_add_f32 v{OO+8}, v{OO+8}, v{S[1]+9}")
    a(f"v_rcp_f32 v14, v{OO+8}")
    for k, (src, cnt) in enumerate(((S[0], 4), (S[0]+8, 2), (S[1], 0))):
        a(f"s_waitcnt lgkmcnt({cnt})")
        for i in range(0, 8, 2): a(f"v_pk_add_f32 {vr(OO+i,2)}, {vr(OO+i,2)}, {vr(src+i,2)}")
    PK = 40
    def finish():
        for i in range(0, 8, 2): a(f"v_pk_mul_f32 {vr(S[0]+i,2)}, v[14:15], {vr(OO+i,2)} op_sel_hi:[0,1]")
        for i in range(4): a(f"v_cvt_pk_bf16_f32 v{PK+i}, v{S[0]+2*i}, v{S[0]+2*i+1}")
        a(f"buffer_store_dwordx4 {vr(PK,4)}, v{vL16}, {WS}, {sOOWN} offen sc1")
    finish()
    a.c("unshifted exponentials are exact enough iff 2^-20 <= row sum <= 2^60 and every accumulator is finite;\n"
        "otherwise redo with the true row max (nothing is flagged before the next barrier)")
    a(f"v_cmp_ge_f32 s[68:69], v{OO+8}, v13")
    a(f"v_cmp_le_f32 s[70:71], v{OO+8}, v1")
    a(f"v_mul_f32 v14, 0, v{OO}")
    for i in range(1, 8): a(f"v_fma_f32 v14, v{OO+i}, 0, v14")
    a("v_cmp_o_f32 vcc, v14, v14")
    a("s_and_b64 s[68:69], s[68:69], s[70:71]")
    a("s_nop 1")
    a("s_and_b64 s[68:69], s[68:69], vcc")
    a("s_cmp_eq_u64 s[68:69], -1")
    a("s_cbranch_scc0 L_fallback")
    a.label("L_fin")
    def poll_f(): a(f"buffer_load_dwordx2 {vr(vT,2)}, v{vP2}, {WS}, s75 offen sc1")
    WF = 112
    def rdWo1(i, s_):
        b = vA[i][s_ // 8]; o = (s_ % 8) * 8192; r = WF + 64*i + 4*s_
        a(f"ds_read_b64_tr_b16 {vr(r,2)}, v{b} offset:{o}")
        a(f"ds_read_b64_tr_b16 {vr(r+2,2)}, v{b} offset:{o+2048}")
    wo_list = [(i, s_) for s_ in range(11, -1, -1) for i in range(2)]
    def rdWo(n):
        for _ in range(n): rdWo1(*wo_list.pop(0))
    a.c("---- hand O over; the Wo fragments move to registers meanwhile")
    rdWo(7)
    a("s_waitcnt lgkmcnt(2)")
    rdWo(6)
    a("s_waitcnt vmcnt(0)")
    a("s_barrier", "every wave's O fragment is written through, the merge scratch is free")
    def flag_o():
        a(f"s_cmp_lg_u32 {sWAVE}, {sQUAD}")
        a("s_cbranch_scc1 L_noflag")
        a("s_mov_b64 exec, 0xffff")
        a(f"buffer_store_dwordx2 {vr(vPD,2)}, v{vFL}, {WS}, s74 offen sc1", "O flags of this workgroup")
        a("s_mov_b64 exec, -1")
        a.label("L_noflag")
    def late_dma():
        for i in range(4):
            a(f"s_add_u32 m0, {sW1K}, {AUX + i*8192}")
            a(f"s_mov_b32 s53, {(12 + i)*32768}")
            a(f"buffer_load_dwordx4 v{vWO}, {WO}, s53 offen lds")
    if OPT["lb"]:
        late_dma(); poll_f(); flag_o()
    else:
        flag_o(); poll_f(); late_dma()
    stamp(a, 8)
    a(f"s_and_b32 s53, {sOQ}, 3")
    a(f"s_cmp_lg_u32 s53, {sF}")
    a("s_waitcnt lgkmcnt(0)")
    a("s_cbranch_scc1 L_noown")
    a(f"ds_write_b128 v{vOWN}, {vr(PK,4)}", "this workgroup's own heads go straight to their staging place")
    a.label("L_noown")
    rdWo(7)
    a("s_waitcnt lgkmcnt(6)")
    rdWo(4)
    a(f"s_mov_b32 s53, {SPIN_MAX}")
    if OPT["lb"]:
        a(f"s_cmp_lg_u32 {sWAVE}, {sQUAD}")
        a("s_cbranch_scc1 L_lw")
        a("s_waitcnt vmcnt(2)")
        a("s_branch L_lw2")
        a.label("L_lw")
        a("s_waitcnt vmcnt(1)")
        a.label("L_lw2")
        a("s_waitcnt lgkmcnt(0)")
        a("s_barrier", "the last Wo row blocks are in LDS")
        for s_ in range(12, 16):
            if s_ == 15: a("s_waitcnt lgkmcnt(8)")
            for i in range(2): rdWo1(i, s_)
        a("s_waitcnt vmcnt(0)")
    else:
        a("s_waitcnt vmcnt(4)")
    a("s_branch L_ochk")
    a.label("L_ospin")
    poll_f()
    a("s_waitcnt vmcnt(0)")
    a.label("L_ochk")
    a(f"v_cmp_eq_u64 vcc, {NONCE}, {vr(vT,2)}")
    a("s_sub_u32 s53, s53, 1")
    a("s_cbranch_scc1 L_ogo")
    a("s_cmp_eq_u64 vcc, -1")
    a("s_cbranch_scc0 L_ospin")
    a.label("L_ogo")
    stamp(a, 9)
    a(f"s_cmp_eq_u32 {sWAVE}, {sQUAD}")
    a("s_cbranch_scc1 L_ohalf")
    a(f"s_mov_b32 m0, {sSLOT}")
    a("s_nop 0")
    for i in range(4):
        a(f"buffer_load_dwordx4 v{vL16}, {WS}, s64 offen offset:{i*1024} sc1 lds")
    a("s_branch L_oall")
    a.label("L_ohalf")
    a(f"s_xor_b32 s53, {sHP}, 1")
    a("s_lshl_b32 s53, s53, 11")
    a(f"s_add_u32 m0, {sSLOT}, s53")
    a("s_add_u32 s64, s64, s53")
    for i in range(2):
        a(f"buffer_load_dwordx4 v{vL16}, {WS}, s64 offen offset:{i*1024} sc1 lds")
    a.label("L_oall")
    a("s_waitcnt vmcnt(0) lgkmcnt(0)")
    stamp(a, 21)
    a("s_barrier")
    stamp(a, 10)
    a.c("---- output projection: 16 tokens x 32 columns per wave, two heads per step")
    ACC = 32; NB = OPT['nb']
    del lgq[:]
    late = [] if OPT['lb'] else [(i, s_) for s_ in range(12, 16) for i in range(2)]
    def rd3(s_):
        a(f"ds_read_b128 {vr(44 + 4*(s_ % (NB+1)),4)}, v{vBO} offset:{s_*2048}"); lgq.append(("b", s_))
    for s_ in range(NB): rd3(s_)
    for s_ in range(16):
        if s_ + NB < 16: rd3(s_ + NB)
        for _ in range(OPT["lr"]):
            if late and s_ >= OPT["ls"]:
                i, t = late.pop(0); rdWo1(i, t); lgq.extend([("a", t)] * 2)
        assert len(lgq) <= 15
        need = [k for k, t in enumerate(lgq) if t in (("b", s_), ("a", s_))]
        if need:
            a(f"s_waitcnt lgkmcnt({len(lgq) - 1 - max(need)})"); del lgq[:max(need) + 1]
        assert len(lgq) <= 15
        f = 44 + 4*(s_ % (NB+1))
        for i in range(2):
            a(f"v_mfma_f32_16x16x32_bf16 {vr(ACC+4*i,4)}, {vr(WF+64*i+4*s_,4)}, {vr(f,4)}, " + ("0" if s_ == 0 else vr(ACC+4*i,4)))
    a("s_nop 7")
    for i in range(4): a(f"v_cvt_pk_bf16_f32 v{PK+i}, v{ACC+2*i}, v{ACC+2*i+1}")
    a("s_nop 1")
    a(f"v_permlane16_swap_b32 v{PK}, v{PK+2}")
    a(f"v_permlane16_swap_b32 v{PK+1}, v{PK+3}")
    a(f"buffer_store_dwordx4 {vr(PK,4)}, v{vSTO}, {OUT}, {sOST} offen nt")
    if OPT["probe"]:
        stamp(a, 17)
        a("s_memrealtime s[82:83]"); a("s_waitcnt lgkmcnt(0)")
        a("s_sub_u32 s80, s80, s46"); a("s_max_i32 s80, s80, 0"); a("s_min_i32 s80, s80, 4000")
        a("s_lshl_b32 s80, s80, 2"); a("s_add_u32 s80, s80, s82")
        a.label("L_probe")
        a("s_sleep 4"); a("s_memrealtime s[82:83]"); a("s_waitcnt lgkmcnt(0)")
        a("s_sub_u32 s82, s82, s80"); a("s_cmp_lt_i32 s82, 0"); a("s_cbranch_scc1 L_probe")
    if OPT["stamp"]:
        stamp(a, 17)
        a("s_waitcnt vmcnt(0)")
        stamp(a, 11); stamp_out(a)
    a.label("L_end")
    a("s_endpgm")
    a.c("---- fallback (rare): exact row max over all keys, then this q-tile again with it subtracted")
    a.label("L_fallback")
    a(f"s_lshl_b32 s53, {sHEAD}, 17")
    a("s_mov_b32 s54, 0")
    a("v_mov_b32 v14, 0xff800000")
    a.label("L_fb1")
    a(f"buffer_load_dwordx4 {vr(KV[0],4)}, v{vL16}, {WS}, s53 offen sc1")
    a("s_waitcnt vmcnt(0)")
    qk(0, 3, "0")
    a("s_add_u32 s53, s53, 2048")
    a("s_add_u32 s54, s54, 1")
    a("s_nop 7"); a("s_nop 3")
    for i in range(8): a(f"v_max3_f32 v14, v{S[1]+2*i}, v{S[1]+2*i+1}, v14")
    a("s_cmp_lt_u32 s54, 64")
    a("s_cbranch_scc1 L_fb1")
    a("v_mov_b32 v1, v14")
    a("s_nop 1")
    a("v_permlane32_swap_b32 v14, v1")
    a("s_nop 1")
    a("v_max_f32 v14, v14, v1")
    for i in range(16): a(f"v_sub_f32 v{S[0]+i}, 0, v14")
    for i in range(16): a(f"v_mov_b32 v{OO+i}, 0")
    a(f"s_lshl_b32 s53, {sHEAD}, 17")
    a("s_mov_b32 s54, 0")
    a.label("L_fb2")
    a(f"buffer_load_dwordx4 {vr(KV[0],4)}, v{vL16}, {WS}, s53 offen sc1")
    a(f"s_mov_b64 exec, {VMASK}")
    a(f"buffer_load_dwordx4 {vr(KV[0]+4,4)}, v{vVO}, {WS}, s53 offen sc1")
    a(f"buffer_load_dwordx4 {vr(KV[0]+8,4)}, v{vVO}, {WS}, s53 offen offset:512 sc1")
    a("s_mov_b64 exec, -1")
    a("s_waitcnt vmcnt(0)")
    qk(0, 3, vr(S[0], 16))
    a("s_add_u32 s53, s53, 2048")
    a("s_add_u32 s54, s54, 1")
    a("s_nop 7"); a("s_nop 3")
    for i in range(16): ex(3, i)
    a("s_nop 1")
    pv0(0, 3); pv1(0, 3)
    a("s_cmp_lt_u32 s54, 64")
    a("s_cbranch_scc1 L_fb2")
    a("s_nop 7"); a("s_nop 7")
    a(f"v_rcp_f32 v14, v{OO+8}")
    a("s_nop 0")
    finish()
    a("s_branch L_fin")
    a.label("L_codeend")
    return f""".section .rodata,"a"
.p2align 6
.amdhsa_kernel {name}
  .amdhsa_next_free_vgpr 256
  .amdhsa_next_free_sgpr 100
  .amdhsa_accum_offset 256
  .amdhsa_group_segment_fixed_size 0
  .amdhsa_kernarg_size 48
  .amdhsa_user_sgpr_count 2
  .amdhsa_user_sgpr_kernarg_segment_ptr 1
  .amdhsa_system_sgpr_workgroup_id_x 1
.end_amdhsa_kernel
"""

if __name__ == "__main__":
    for kv in sys.argv[2:]:
        k, v = kv.split("="); assert k in OPT, k; OPT[k] = int(v)
    a = Asm()
    a.raw(HEADER.rstrip("\n"))
    a.raw('.amdgcn_target "amdgcn-amd-amdhsa--gfx950"')
    a.raw(".text")
    d = gen(a)
    open(sys.argv[1], "w").write(a.text() + d)
```
